```python
import torch

def _softmax(x, axis=-1):
    return torch.softmax(x, dim=axis)
def _gelu(x):
    return torch.nn.functional.gelu(x, approximate="tanh")
def _silu(x):
    return torch.nn.functional.silu(x)
def _sigmoid(x):
    return torch.sigmoid(x)
def _layernorm(x, axis=-1, eps=1e-5):
    m = x.mean(dim=axis, keepdim=True)
    v = x.var(dim=axis, keepdim=True, unbiased=False)
    return (x - m) / torch.sqrt(v + eps)
def _scatter_add(tgt, idx, src, axis=0):
    return tgt.clone().index_add_(axis, idx, src)
def _segment_sum(src, seg, n):
    out = torch.zeros((n,) + src.shape[1:], dtype=src.dtype)
    return out.index_add_(0, seg, src)
def _pad(x, pw):
    flat = tuple(v for pair in reversed(pw) for v in pair)
    return torch.nn.functional.pad(x, flat)

kernel_name = 'gated_mix__ssm_conv_s4d__dense_activation_relu__prompt'

def setup_inputs():

    _w = (lambda a: (lambda t: t.to(torch.bfloat16) if t.is_floating_point() else t)(torch.as_tensor(a)))
    def _A_setup():
        Bsz, L, D, N = 1, 2048, 640, 128
        return {
            "u": _w((lambda *s: torch.randn(*s, dtype=torch.bfloat16) * 0.05)(Bsz, L, D)),
            "log_A_real": _w((lambda *s: torch.randn(*s, dtype=torch.bfloat16) * 6.4)(D, N) * 0.5),
            "A_imag": _w((lambda *s: torch.randn(*s, dtype=torch.bfloat16) * 0.2)(D, N) * 3.14),
            "C_real": _w((lambda *s: torch.randn(*s, dtype=torch.bfloat16) * 0.8)(D, N) / N ** 0.5),
            "C_imag": _w((lambda *s: torch.randn(*s, dtype=torch.bfloat16) * 0.8)(D, N) / N ** 0.5),
            "log_dt": _w((lambda *s: torch.randn(*s, dtype=torch.bfloat16) * 0.2)(D) * 0.5 - 4.0),
            "D_skip": _w((lambda *s: torch.randn(*s, dtype=torch.bfloat16) * 0.2)(D)),
        }
    _A_in = _A_setup()

    def _B_setup():
        B, S, D, Dff = 1, 2048, 640, 1728
        return {
            "x": _w((lambda *s: torch.randn(*s, dtype=torch.bfloat16) * 0.05)(B, S, D)),
            "w1": _w((lambda *s: torch.randn(*s, dtype=torch.bfloat16) * 0.05)(D, Dff)),
            "w2": _w((lambda *s: torch.randn(*s, dtype=torch.bfloat16) * 0.05)(Dff, D)),
        }
    _B_in = _B_setup()

    return {
        "A_u": _A_in["u"],
        "A_log_A_real": _A_in["log_A_real"],
        "A_A_imag": _A_in["A_imag"],
        "A_C_real": _A_in["C_real"],
        "A_C_imag": _A_in["C_imag"],
        "A_log_dt": _A_in["log_dt"],
        "A_D_skip": _A_in["D_skip"],
        "B_x": _B_in["x"],
        "B_w1": _B_in["w1"],
        "B_w2": _B_in["w2"],
        "gate_w": _w((lambda *s: torch.randn(*s, dtype=torch.bfloat16) * 0.05)(640) * 16.0),
    }

def reference(A_u, A_log_A_real, A_A_imag, A_C_real, A_C_imag, A_log_dt, A_D_skip, B_x, B_w1, B_w2, gate_w):
    def _A_ref(u, log_A_real, A_imag, C_real, C_imag, log_dt, D_skip):
        L = u.shape[1]
        dt = torch.exp(log_dt)
        A = -torch.exp(log_A_real) + 1j * A_imag
        C = (C_real + 1j * C_imag) * dt[:, None]
        pos = (lambda x, dt: x.to(dt))(torch.arange(L), log_dt.dtype)
        P = torch.exp((A * dt[:, None])[:, :, None] * pos[None, None, :])
        K = 2.0 * torch.einsum("dn,dnl->dl", C, P).real
        L2 = 2 * L
        u_t = (lambda x, *d: x.permute(*d))(u, 0, 2, 1)
        Kf = (lambda x, *a, **k: torch.fft.rfft(x.float(), *a, **k))(K, L2)
        Uf = (lambda x, *a, **k: torch.fft.rfft(x.float(), *a, **k))(u_t, L2)
        y = (lambda x, *a, **k: torch.fft.irfft(x, *a, **k).to(torch.bfloat16))(Uf * Kf[None, :, :], L2)[:, :, :L]
        y = (lambda x, *d: x.permute(*d))(y, 0, 2, 1)
        return y + u * D_skip[None, None, :]

    def _B_ref(x, w1, w2):
        h = torch.einsum("bsd,df->bsf", x, w1)
        zero = torch.zeros_like(h)
        h = torch.maximum(h, zero)
        return torch.einsum("bsf,fd->bsd", h, w2)

    x = A_u
    g = _sigmoid((x * gate_w).sum(-1, keepdims=True))
    a = _A_ref(x, A_log_A_real, A_A_imag, A_C_real, A_C_imag, A_log_dt, A_D_skip)
    b = _B_ref(x, B_w1, B_w2)
    return g * a + (1 - g) * b
```

```python
import sys, struct

NAME = 'gated_mix__ssm_conv_s4d__dense_activation_relu__prompt'
OUT = sys.argv[1] if len(sys.argv) > 1 else f'cdna_kernels/{NAME}.s'
OPT = dict(a.split('=') for a in sys.argv[2:])
STAMP = int(OPT.get('stamp', 0))

L = []
def e(s=''):
    for ln in s.split('\n'):
        ln = ln.strip()
        if not ln: continue
        L.append(ln if ln.endswith(':') else '    ' + ln)
def f2u(x): return struct.unpack('<I', struct.pack('<f', x))[0]
def vr(a, n): return f'v[{a}:{a+n-1}]'

WS_H = 0
H_BYTES = 128*54*1024
WS_Y = 0x800000
Y_BYTES = 640*4096
WS_G = 0xB00000
G_BYTES = 8192
WS_ST = 0xC00000

def srd(d, lo, hi, nbytes, off=0):
    if off:
        e(f's_add_u32 s{d}, s{lo}, {hex(off)}')
        e(f's_addc_u32 s{d+1}, s{hi}, 0')
    else:
        e(f's_mov_b32 s{d}, s{lo}')
        e(f's_mov_b32 s{d+1}, s{hi}')
    e(f's_mov_b32 s{d+2}, {hex(nbytes)}')
    e(f's_mov_b32 s{d+3}, 0x00020000')

def stamp(k, slot):
    if STAMP:
        e(f's_memrealtime s[{80+2*slot}:{81+2*slot}]')
def stamp_flush(k, n):
    if not STAMP: return
    e('s_waitcnt lgkmcnt(0) vmcnt(0)')
    e(f's_memrealtime s[{80+2*n}:{81+2*n}]')
    srd(72, 42, 43, 0x100000, WS_ST)
    e(f's_lshl_b32 s76, s2, 3\n s_add_u32 s76, s76, s3\n s_add_u32 s76, s76, {k*2048}\n s_lshl_b32 s76, s76, 6')
    e('s_waitcnt lgkmcnt(0)')
    e('s_mov_b64 exec, 1\n v_mov_b32 v1, 0')
    for i in range(n+1):
        e(f'v_mov_b32 v2, s{80+2*i}')
        e(f'buffer_store_dword v2, v1, s[72:75], s76 offen offset:{4*i}')

def prologue(k):
    stamp(k, 0)
    e('''s_cmp_ge_u32 s2, 256
         s_cbranch_scc1 L_end%d
         s_load_dwordx16 s[16:31], s[0:1], 0
         s_load_dwordx8 s[32:39], s[0:1], 64
         s_load_dwordx4 s[40:43], s[0:1], 96
         v_lshrrev_b32 v1, 6, v0
         v_and_b32 v0, 63, v0
         v_readfirstlane_b32 s3, v1
         s_and_b32 s4, s2, 7
         s_lshr_b32 s5, s2, 3''' % k)

def k1():
    e('k1_kernel:')
    prologue(1)
    e('s_cmp_lt_u32 s5, 14\n s_cbranch_scc1 L_ssm')
    gemm1()
    ssm()
    e('L_end1:\n s_endpgm')

XR = 0; WR = 65536
def gemm1():
    e('''s_sub_u32 s6, s5, 14
         s_and_b32 s7, s4, 1
         s_mul_i32 s7, s7, 18
         s_add_u32 s6, s6, s7
         s_and_b32 s7, s6, 3
         s_lshr_b32 s6, s6, 2
         s_lshr_b32 s8, s4, 1
         s_lshl_b32 s8, s8, 2
         s_add_u32 s7, s7, s8
         s_cmp_lt_u32 s3, 4
         s_cbranch_scc1 L_g1c''')
    e('s_sub_u32 s9, s3, 4')
    e('''v_lshrrev_b32 v2, 3, v0
         v_mul_u32_u24 v2, 1280, v2
         v_and_b32 v3, 7, v0
         v_lshrrev_b32 v4, 4, v0
         v_xor_b32 v3, v3, v4
         v_lshl_add_u32 v10, v3, 4, v2
         v_xor_b32 v3, 4, v3
         v_lshl_add_u32 v11, v3, 4, v2
         v_add_u32 v11, %d, v11
         v_add_u32 v12, %d, v10
         v_add_u32 v13, %d, v11''' % (9216, 2*9216, 2*9216))
    for b in range(3):
        e(f'''v_add_u32 v2, {64*b}, v0
              v_mul_u32_u24 v3, 2731, v2
              v_lshrrev_b32 v3, 16, v3
              v_mul_u32_u24 v4, 24, v3
              v_sub_u32 v4, v2, v4
              v_bfe_u32 v5, v3, 1, 1
              v_lshlrev_b32 v5, 2, v5
              v_xor_b32 v4, v4, v5
              v_mul_u32_u24 v3, 3456, v3
              v_lshl_add_u32 v{14+b}, v4, 4, v3''')
        if b: e(f'v_subrev_u32 v{14+b}, {1024*b}, v{14+b}')
    e('''s_lshl_b32 s10, s7, 2
         s_add_u32 s10, s10, s9
         s_mul_i32 s10, s10, %d
         s_mul_i32 s11, s9, %d
         s_mul_i32 s12, s6, 384
         s_add_u32 s11, s11, s12
         s_lshl_b32 s12, s9, 12
         s_mul_i32 s13, s9, 6144
         s_add_u32 s13, s13, %d
         s_waitcnt lgkmcnt(0)''' % (32*1280, 16*3456, WR))
    srd(44, 16, 17, 2048*1280)
    srd(48, 32, 33, 640*3456)
    def issue():
        e('''s_mov_b32 m0, s12
             s_add_u32 s15, s11, %d
             buffer_load_dwordx4 v10, s[44:47], s10 offen lds
             buffer_load_dwordx4 v11, s[44:47], s10 offen offset:1024 lds
             buffer_load_dwordx4 v12, s[44:47], s10 offen offset:2048 lds
             buffer_load_dwordx4 v13, s[44:47], s10 offen offset:3072 lds
             s_mov_b32 m0, s13
             s_add_u32 s10, s10, 128
             buffer_load_dwordx4 v14, s[48:51], s11 offen lds
             buffer_load_dwordx4 v15, s[48:51], s11 offen offset:1024 lds
             buffer_load_dwordx4 v16, s[48:51], s11 offen offset:2048 lds
             s_add_u32 m0, s13, 3072
             s_add_u32 s11, s11, %d
             buffer_load_dwordx4 v14, s[48:51], s15 offen lds
             buffer_load_dwordx4 v15, s[48:51], s15 offen offset:1024 lds
             buffer_load_dwordx4 v16, s[48:51], s15 offen offset:2048 lds
             s_add_u32 s12, s12, 16384
             s_and_b32 s12, s12, 0xffff
             s_add_u32 s13, s13, 24576
             s_cmp_ge_u32 s13, %d
             s_cselect_b32 s15, 98304, 0
             s_sub_u32 s13, s13, s15''' % (8*3456, 64*3456, WR + 98304))
    e('s_mov_b32 s14, 0')
    e('L_g1l_loop:')
    issue()
    e('''s_add_u32 s14, s14, 1
         s_cmp_lt_u32 s14, 4
         s_cbranch_scc1 L_g1l_loop
         s_cmp_eq_u32 s14, 4
         s_cbranch_scc0 L_g1l_a
         s_waitcnt vmcnt(30)
         s_barrier
         L_g1l_a:
         s_waitcnt vmcnt(20)
         s_barrier
         s_cmp_lt_u32 s14, 10
         s_cbranch_scc1 L_g1l_loop''')
    srd(52, 36, 37, 1280)
    srd(56, 34, 35, 1728*1280)
    srd(60, 42, 43, G_BYTES, WS_G)
    e('''s_lshl_b32 s10, s7, 3
         s_add_u32 s10, s10, s6
         s_lshl_b32 s10, s10, 2
         s_add_u32 s10, s10, s9
         s_lshl_b32 s10, s10, 2
         v_lshrrev_b32 v2, 4, v0
         v_and_b32 v3, 15, v0
         v_lshlrev_b32 v3, 4, v3
         v_mul_u32_u24 v4, 1280, v2
         v_add_u32 v4, v4, v3
         s_mul_i32 s11, s10, 1280''')
    for n in range(5):
        e(f'buffer_load_dwordx4 {vr(20+4*n,4)}, v4, s[44:47], s11 offen offset:{256*n}')
    for n in range(5):
        e(f'buffer_load_dwordx4 {vr(40+4*n,4)}, v3, s[52:55], 0 offen offset:{256*n}')
    e('''s_sub_u32 s12, s5, 14
         s_lshl_b32 s12, s12, 2
         s_add_u32 s12, s12, s9
         s_mul_i32 s12, s12, %d
         s_and_b32 s13, s4, 1
         s_mul_i32 s13, s13, 640
         s_add_u32 s12, s12, s13''' % (24*1280))
    for n in range(4):
        e(f'''v_add_u32 v5, {64*n}, v0
              v_min_u32 v5, 239, v5
              v_mul_u32_u24 v6, 6554, v5
              v_lshrrev_b32 v6, 16, v6
              v_mul_u32_u24 v7, 10, v6
              v_sub_u32 v7, v5, v7
              v_mul_u32_u24 v6, 1280, v6
              v_lshl_add_u32 v6, v7, 6, v6
              buffer_load_dword v{60+n}, v6, s[56:59], s12 offen''')
    e('''s_waitcnt vmcnt(24)
         s_barrier
         s_waitcnt vmcnt(14)
         s_barrier
         s_waitcnt vmcnt(4)''')
    e('v_mov_b32 v8, 0\n v_mov_b32 v9, 0\n s_mov_b32 s13, 0xffff0000')
    for n in range(20):
        e(f'''v_lshlrev_b32 v64, 16, v{20+n}
              v_and_b32 v65, s13, v{20+n}
              v_lshlrev_b32 v66, 16, v{40+n}
              v_and_b32 v67, s13, v{40+n}
              v_mul_f32 v64, v64, v66
              v_mul_f32 v65, v65, v67
              v_cvt_pk_bf16_f32 v64, v64, v65
              v_lshlrev_b32 v66, 16, v64
              v_and_b32 v67, s13, v64
              v_add_f32 v8, v8, v66
              v_add_f32 v9, v9, v67''')
    e('v_add_f32 v8, v8, v9\n s_nop 1')
    for sh in (8, 4, 2, 1):
        e(f'v_add_f32_dpp v8, v8, v8 row_ror:{sh} row_mask:0xf bank_mask:0xf\n s_nop 1')
    e('''v_cvt_pk_bf16_f32 v8, v8, v8
         v_lshlrev_b32 v8, 16, v8
         v_mul_f32 v8, 0xbfb8aa3b, v8
         v_exp_f32 v8, v8
         s_nop 0
         v_add_f32 v8, 1.0, v8
         v_rcp_f32 v8, v8
         s_nop 0
         v_cvt_pk_bf16_f32 v8, v8, v8
         v_lshlrev_b32 v8, 16, v8
         v_lshlrev_b32 v2, 2, v2
         s_lshl_b32 s10, s10, 2
         s_cmp_ge_u32 s6, 8
         s_cbranch_scc1 L_g1l_done
         buffer_store_dword v8, v2, s[60:63], s10 offen
         L_g1l_done:''')
    stamp_flush(0, 1)
    e('s_endpgm')

    e('L_g1c:')
    ACC = 0 + 16
    FR = 112
    XB = 2
    XA = 8
    e('''s_lshr_b32 s8, s3, 1
         s_and_b32 s9, s3, 1''')
    e('''v_and_b32 v14, 31, v0
         s_lshl_b32 s10, s8, 6
         v_add_u32 v15, s10, v14
         v_lshlrev_b32 v15, 7, v15
         v_bfe_u32 v14, v0, 1, 3
         v_lshrrev_b32 v1, 5, v0
         v_xor_b32 v14, v14, v1''')
    for ks in range(4):
        e(f'v_xor_b32 v1, {2*ks}, v14\n v_lshl_add_u32 v{XB+ks}, v1, 4, v15')
    e('''v_lshrrev_b32 v1, 5, v0
         v_lshlrev_b32 v1, 3, v1
         v_bfe_u32 v14, v0, 2, 2
         v_add_u32 v1, v1, v14
         v_mul_u32_u24 v1, 384, v1
         v_bfe_u32 v14, v0, 4, 1
         v_lshl_add_u32 v1, v14, 5, v1
         v_and_b32 v14, 3, v0
         v_lshl_add_u32 v1, v14, 3, v1
         s_mul_i32 s10, s9, 192
         s_add_u32 s10, s10, %d
         v_add_u32 v1, s10, v1
         v_bfe_u32 v14, v0, 3, 1
         v_lshlrev_b32 v14, 6, v14
         s_lshl_b32 s10, s9, 1
         s_sub_u32 s10, 1, s10
         v_mul_lo_u32 v14, v14, s10
         v_add_u32 v6, v1, v14
         v_sub_u32 v7, v1, v14''' % WR)
    for i in range(96): e(f'v_mov_b32 v{ACC+i}, 0')
    for i in range(40): e(f'v_mov_b32 v{FR+i}, 0')
    e('s_waitcnt lgkmcnt(0)')
    srd(52, 42, 43, H_BYTES, WS_H)
    e('s_mov_b32 s12, 0\n s_mov_b32 s13, 0\n s_mov_b32 s14, 0')
    def reads(ks, st):
        r = []
        base = FR + 20*st
        for ti in range(2):
            r.append(f'ds_read_b128 {vr(base+12+4*ti,4)}, v{XA+ks} offset:{4096*ti}')
        for fi in range(3):
            for half in range(2):
                r.append(f'ds_read_b64_tr_b16 {vr(base+4*fi+2*half,2)}, v{XA+4+(fi&1)} offset:{(16*ks+4*half)*384+64*fi}')
        return [r[0], r[2], r[3], r[1], r[4], r[5], r[6], r[7]]
    def mfmas(st):
        base = FR + 20*st
        m = []
        for fi in range(3):
            for ti in range(2):
                a = ACC + 16*(2*fi+ti)
                m.append(f'v_mfma_f32_32x32x16_bf16 {vr(a,16)}, {vr(base+4*fi,4)}, {vr(base+12+4*ti,4)}, {vr(a,16)}')
        return m
    def step(rd, mm):
        rd = list(rd)
        for i, m in enumerate(mm):
            e(m)
            for _ in range(2):
                if rd: e(rd.pop(0))
        e('s_waitcnt lgkmcnt(0)')
    e('L_g1c_loop:')
    for i in range(4): e(f'v_add_u32 v{XA+i}, s12, v{XB+i}')
    for i in range(2): e(f'v_add_u32 v{XA+4+i}, s13, v{XB+4+i}')
    e('s_barrier')
    step(reads(0, 0), mfmas(1))
    step(reads(1, 1), mfmas(0))
    step(reads(2, 0), mfmas(1))
    e('''s_add_u32 s12, s12, 16384
         s_and_b32 s12, s12, 0xffff
         s_add_u32 s13, s13, 24576
         s_cmp_ge_u32 s13, 98304
         s_cselect_b32 s13, 0, s13
         s_add_u32 s14, s14, 1
         s_cmp_lt_u32 s14, 10''')
    step(reads(3, 1), mfmas(0))
    e('s_cbranch_scc1 L_g1c_loop')
    for m in mfmas(1): e(m)
    stamp(0, 1)
    e('''v_bfe_u32 v1, v0, 4, 1
         v_mul_u32_u24 v1, %d, v1
         v_lshrrev_b32 v14, 5, v0
         v_lshl_add_u32 v1, v14, 8, v1
         v_and_b32 v14, 15, v0
         v_lshl_add_u32 v1, v14, 4, v1
         s_lshl_b32 s10, s7, 1
         s_add_u32 s10, s10, s8
         s_mul_i32 s10, s10, %d
         s_mul_i32 s11, s6, 6
         s_mul_i32 s12, s9, 3
         s_add_u32 s11, s11, s12
         s_add_u32 s10, s10, s11
         s_lshl_b32 s10, s10, 10
         s_add_u32 s11, s10, %d
         s_nop 4''' % (54*1024, 4*54, 2*54*1024))
    k = 0
    for fi in range(3):
        for ti in range(2):
            a = ACC + 16*(2*fi+ti)
            for piece in range(2):
                d = FR + 4*(k % 8); k += 1
                for q in range(4):
                    e(f'v_cvt_pk_bf16_f32 v{d+q}, v{a+8*piece+2*q}, v{a+8*piece+2*q+1}')
                for q in range(4):
                    e(f'v_pk_max_i16 v{d+q}, v{d+q}, 0')
                e(f'buffer_store_dwordx4 {vr(d,4)}, v1, s[52:55], s{10+ti} offen offset:{1024*fi+512*piece}')
    stamp_flush(0, 2)
    e('s_endpgm')

CHS = 12880; UO = 4164; RB = 8304; STG = 77312; STGS = 8704
def ssm():
    e('L_ssm:')
    e('''s_mul_i32 s6, s5, 6
         s_min_u32 s6, s6, 74
         s_mul_i32 s7, s4, 80
         s_add_u32 s6, s6, s7
         s_add_u32 s7, s6, s3
         s_add_u32 s8, s3, s5
         s_and_b32 s8, s8, 7
         s_lshl_b32 s8, s8, 6
         v_add_u32 v2, s8, v0
         v_mul_u32_u24 v3, 5120, v2
         s_lshl_b32 s9, s6, 1
         v_lshlrev_b32 v4, 2, v0
         v_mov_b32 v5, 0
         s_lshl_b32 s10, s7, 8
         s_lshl_b32 s11, s7, 1
         s_waitcnt lgkmcnt(0)''')
    srd(44, 16, 17, 2048*1280)
    e('s_cmp_ge_u32 s3, 6\n s_cbranch_scc1 L_ssm_nop')
    srd(48, 18, 19, 163840); srd(52, 20, 21, 163840); srd(56, 22, 23, 163840); srd(60, 24, 25, 163840)
    srd(64, 26, 27, 1280)
    e('''buffer_load_dword v6, v4, s[48:51], s10 offen
         buffer_load_ushort v10, v5, s[64:67], s11 offen
         buffer_load_dword v7, v4, s[52:55], s10 offen
         buffer_load_dword v8, v4, s[56:59], s10 offen
         buffer_load_dword v9, v4, s[60:63], s10 offen
         L_ssm_nop:''')
    U = 240
    for r in range(4):
        e(f'buffer_load_dwordx3 {vr(U+3*r+(r&1),3)}, v3, s[44:47], s9 offen offset:{1280*r}' if False else '')
    U = 232
    for r in range(4):
        e(f'buffer_load_dwordx3 {vr(U+4*r,3)}, v3, s[44:47], s9 offen offset:{1280*r}')
    e(f'''v_add_u32 v11, s9, v3
          v_subrev_u32 v11, 1280, v11
          s_mov_b64 exec, 1
          buffer_load_dwordx3 {vr(U+16,3)}, v11, s[44:47], 0 offen
          s_mov_b64 exec, -1
          s_cmp_ge_u32 s3, 6
          s_cbranch_scc1 L_ssm_u''')
    kgen()
    e('L_ssm_u:')
    stamp(0, 1)
    e(f'''v_lshlrev_b32 v12, 3, v2
          v_add_u32 v13, {3*CHS}, v12
          s_mov_b32 s12, 0x05040100
          s_mov_b32 s13, 0x07060302
          s_waitcnt vmcnt(0)''')
    for c in range(3):
        e(f'v_mov_b32_dpp v{U+16+c}, v{U+12+c} wave_shr:1 row_mask:0xf bank_mask:0xf')
    for ch in range(6):
        c = ch >> 1; sel = 12 + (ch & 1); t = 16 + 4*(ch & 1)
        e(f'''v_perm_b32 v{t}, v{U+4+c}, v{U+c}, s{sel}
              v_perm_b32 v{t+1}, v{U+12+c}, v{U+8+c}, s{sel}
              v_perm_b32 v{t+2}, v{U+c}, v{U+16+c}, s{sel}
              v_perm_b32 v{t+3}, v{U+8+c}, v{U+4+c}, s{sel}
              ds_write_b64 v{12 + ch//3}, {vr(t,2)} offset:{(ch%3)*CHS+32}
              ds_write_b64 v{12 + ch//3}, {vr(t+2,2)} offset:{(ch%3)*CHS+UO+28}''')
    e(f'''s_and_b32 s8, s3, 3
          s_lshr_b32 s9, s3, 2
          s_mul_i32 s10, s9, {3*CHS}
          s_mov_b32 s11, 0
          s_mov_b32 s14, 0
          s_cmp_eq_u32 s8, 1
          s_cselect_b32 s11, {6*64}, s11
          s_cselect_b32 s14, {CHS - 8*64}, s14
          s_cmp_eq_u32 s8, 2
          s_cselect_b32 s11, {2*CHS}, s11
          s_cselect_b32 s14, {(-CHS + 2*64) & 0xffffffff}, s14
          s_cmp_eq_u32 s8, 3
          s_cselect_b32 s11, {2*CHS + 2*64}, s11
          s_add_u32 s10, s10, s11''')
    e(f'''v_and_b32 v4, 15, v0
          v_lshrrev_b32 v5, 4, v0
          v_add_u32 v6, 1, v4
          v_and_b32 v7, 1, v6
          v_mul_u32_u24 v7, {UO}, v7
          v_lshrrev_b32 v6, 1, v6
          v_lshl_add_u32 v7, v6, 2, v7
          v_lshlrev_b32 v6, 4, v5
          v_sub_u32 v7, v7, v6
          v_add_u32 v7, 48, v7
          v_add_u32 v8, s10, v7
          v_add_u32 v9, 1024, v8
          v_add_u32 v10, 2048, v8
          v_add_u32 v11, 3072, v8
          v_lshlrev_b32 v7, 5, v4
          v_add_u32 v7, v7, v6
          v_sub_u32 v7, {RB+528}, v7
          v_add_u32 v12, s10, v7''')
    ACC = 32; F = 64
    for i in range(32): e(f'v_mov_b32 v{ACC+i}, 0')
    e('s_waitcnt lgkmcnt(0)\n s_barrier')
    stamp(0, 2)
    def reads(st):
        b = F + 64*st
        r = []
        for m in range(8):
            r.append(f'ds_read_b128 {vr(b+32+4*m,4)}, v12 offset:{(7-m)*512}')
            o = 128*(m & 1)
            r.append(f'ds_read2_b32 {vr(b+4*m,2)}, v{8+m//2} offset0:{o} offset1:{o+1}')
            r.append(f'ds_read2_b32 {vr(b+4*m+2,2)}, v{8+m//2} offset0:{o+2} offset1:{o+3}')
        return r
    def adv(src):
        return [f'v_add_u32 v{8+i}, {src}, v{8+i}' for i in range(5)]
    def mfmas(st):
        b = F + 64*st
        mm = []
        for m in range(8):
            for h in range(m, 8):
                mm.append(f'v_mfma_f32_16x16x32_bf16 {vr(ACC+4*h,4)}, {vr(b+4*m,4)}, {vr(b+32+4*(h-m),4)}, {vr(ACC+4*h,4)}')
        return mm
    def unit(st, other):
        other = list(other)
        for i, m in enumerate(mfmas(st)):
            e(m)
            if other: e(other.pop(0))
        assert not other
        e('s_waitcnt lgkmcnt(0)')
    for r in reads(0): e(r)
    e('s_mov_b32 s15, 0\n s_add_u32 s14, s14, 64\n s_waitcnt lgkmcnt(0)')
    e('L_conv_loop:')
    unit(0, adv(64) + reads(1))
    unit(1, adv('s14') + reads(0))
    e('''s_mov_b32 s14, 64
         s_add_u32 s15, s15, 1
         s_cmp_eq_u32 s15, 1
         s_cbranch_scc0 L_conv_nf
         s_sub_u32 s11, s8, 1
         s_cmp_lt_u32 s11, 2
         s_cbranch_scc0 L_conv_loop''')
    e(f'''s_mul_i32 s12, s9, 3
          s_lshl_b32 s11, s11, 1
          s_add_u32 s12, s12, s11
          s_mul_i32 s12, s12, {STGS}
          s_add_u32 s12, s12, {STG}
          v_lshlrev_b32 v13, 4, v0
          v_add_u32 v13, s12, v13
          s_nop 2''')
    for h in range(8): e(f'ds_write_b128 v13, {vr(ACC+4*h,4)} offset:{1024*h}')
    for i in range(32): e(f'v_mov_b32 v{ACC+i}, 0')
    e('''s_nop 1
         s_branch L_conv_loop
         L_conv_nf:
         s_cmp_lt_u32 s15, 3
         s_cbranch_scc1 L_conv_loop''')
    stamp(0, 3)
    e(f'''s_add_u32 s11, s8, 1
          s_lshr_b32 s11, s11, 1
          s_mul_i32 s12, s9, 3
          s_add_u32 s11, s11, s12
          s_mul_i32 s12, s11, {STGS}
          s_add_u32 s12, s12, {STG}
          v_lshlrev_b32 v13, 4, v0
          v_add_u32 v13, s12, v13
          s_add_u32 s11, s11, s6
          s_lshl_b32 s11, s11, 12
          v_lshlrev_b32 v14, 5, v4
          v_lshl_add_u32 v14, v5, 3, v14''')
    srd(48, 42, 43, Y_BYTES, WS_Y)
    e('s_cmp_eq_u32 s8, 1\n s_cbranch_scc0 L_fin_a')
    for h in range(4, 8): e(f'ds_write_b128 v13, {vr(ACC+4*h,4)} offset:{1024*h}')
    e('L_fin_a:\n s_cmp_eq_u32 s8, 2\n s_cbranch_scc0 L_fin_b')
    for h in range(0, 4): e(f'ds_write_b128 v13, {vr(ACC+4*h,4)} offset:{1024*h}')
    e('L_fin_b:\n s_waitcnt lgkmcnt(0)\n s_barrier')
    def fin(hs):
        for h in hs: e(f'ds_read_b128 {vr(F+4*h,4)}, v13 offset:{1024*h}')
        for n, h in enumerate(hs):
            e(f's_waitcnt lgkmcnt({len(hs)-1-n})')
            for r in range(4): e(f'v_add_f32 v{F+4*h+r}, v{F+4*h+r}, v{ACC+4*h+r}')
            e(f'v_cvt_pk_bf16_f32 v{F+4*h}, v{F+4*h}, v{F+4*h+1}')
            e(f'v_cvt_pk_bf16_f32 v{F+4*h+1}, v{F+4*h+2}, v{F+4*h+3}')
            e(f'buffer_store_dwordx2 {vr(F+4*h,2)}, v14, s[48:51], s11 offen offset:{512*h}')
    e('s_cmp_eq_u32 s8, 2\n s_cbranch_scc1 L_fin_c')
    fin(range(0, 4))
    e('L_fin_c:\n s_cmp_eq_u32 s8, 1\n s_cbranch_scc1 L_fin_d')
    fin(range(4, 8))
    e('L_fin_d:')
    stamp_flush(0, 4)

def kgen():
    L2E = 1.4426950408889634
    l2e_hi = struct.unpack('<f', struct.pack('<f', L2E))[0]
    l2e_lo = L2E - l2e_hi
    e(f'''s_mul_i32 s12, s3, {CHS}
          v_add_u32 v12, s12, v4
          v_mov_b32 v14, 0
          v_mov_b32 v15, 0
          v_lshl_add_u32 v13, v0, 2, v12
          s_mov_b64 exec, 0xff
          ds_write_b32 v12, v14
          ds_write_b32 v12, v14 offset:{UO-4}
          s_mov_b32 exec_lo, -1
          s_mov_b32 exec_hi, 0x0fffffff
          ds_write_b64 v13, v[14:15] offset:{RB+4096}
          s_mov_b64 exec, -1''')
    e(f'''s_mul_i32 s13, s3, {STGS}
          s_add_u32 s13, s13, {STG}
          v_lshlrev_b32 v16, 3, v0
          v_add_u32 v16, s13, v16
          v_and_b32 v18, 15, v0
          v_lshrrev_b32 v19, 4, v0
          v_mul_u32_u24 v17, 544, v18
          v_lshl_add_u32 v17, v19, 4, v17
          v_add_u32 v17, s13, v17
          s_mov_b32 s68, {hex(f2u(l2e_hi))}
          s_mov_b32 s69, {hex(f2u(l2e_lo))}
          s_mov_b32 s70, {hex(f2u(0.6931471805599453))}
          s_mov_b32 s71, 0xffff0000
          s_waitcnt vmcnt(8)''')
    def exp_acc(x, t, lo):
        e(f'''v_mul_f32 v{t}, s68, v{x}
              v_fma_f32 v{lo}, v{x}, s68, -v{t}
              v_fma_f32 v{lo}, v{x}, s69, v{lo}
              v_exp_f32 v{t}, v{t}
              v_mul_f32 v{lo}, s70, v{lo}
              v_fma_f32 v{x}, v{t}, v{lo}, v{t}''')
    e('v_lshlrev_b32 v10, 16, v10\n v_lshlrev_b32 v20, 16, v6\n v_and_b32 v21, s71, v6')
    exp_acc(10, 22, 23); exp_acc(20, 24, 25); exp_acc(21, 26, 27)
    e('''v_cvt_pk_bf16_f32 v10, v10, v10
         v_cvt_pk_bf16_f32 v20, v20, v21
         v_lshlrev_b32 v10, 16, v10
         v_and_b32 v21, s71, v20
         v_lshlrev_b32 v20, 16, v20
         v_mul_f32 v20, v20, v10
         v_mul_f32 v21, v21, v10
         v_mul_f32 v20, 0xbfb8aa3b, v20
         v_mul_f32 v21, 0xbfb8aa3b, v21
         s_waitcnt vmcnt(5)
         v_lshlrev_b32 v22, 16, v7
         v_and_b32 v23, s71, v7
         v_mul_f32 v22, v22, v10
         v_mul_f32 v23, v23, v10
         v_mul_f32 v22, 0.15915494, v22
         v_mul_f32 v23, 0.15915494, v23''')
    M1, M8, M128, M256, M512, M1024, M2048 = 28, 32, 36, 40, 44, 48, 52
    X = 56
    XK = 88
    XL = 104
    XM = 120
    T = 136
    CV = 144
    BF = 152
    AF = 184
    D = 216
    def cexp(dst, scale):
        for m in range(2):
            a, p = 20+m, 22+m
            t = T + 4*m
            if scale != 1:
                e(f'v_mul_f32 v{t}, {hex(f2u(scale))}, v{a}\n v_mul_f32 v{t+1}, {hex(f2u(scale))}, v{p}')
                a, p = t, t+1
            e(f'''v_rndne_f32 v{t+2}, v{p}
                  v_exp_f32 v{t+3}, v{a}
                  v_sub_f32 v{t+2}, v{p}, v{t+2}
                  v_cos_f32 v{dst+2*m}, v{t+2}
                  v_sin_f32 v{dst+2*m+1}, v{t+2}
                  s_nop 0
                  v_mul_f32 v{dst+2*m}, v{dst+2*m}, v{t+3}
                  v_mul_f32 v{dst+2*m+1}, v{dst+2*m+1}, v{t+3}''')
    def cmul(dst, x, m):
        assert dst != x and dst != m
        for k in range(2):
            e(f'v_pk_mul_f32 {vr(dst+2*k,2)}, {vr(x+2*k,2)}, {vr(m+2*k,2)} op_sel:[0,0] op_sel_hi:[1,0]')
        for k in range(2):
            e(f'v_pk_fma_f32 {vr(dst+2*k,2)}, {vr(x+2*k,2)}, {vr(m+2*k,2)}, {vr(dst+2*k,2)} op_sel:[1,1,0] op_sel_hi:[0,1,1] neg_lo:[0,1,0]')
    cvn = [0]
    def row(r, x, conj):
        c = CV + 2*(cvn[0] % 4); cvn[0] += 1
        n = '-' if conj else ''
        e(f'v_cvt_pk_bf16_f32 v{c}, v{x}, {n}v{x+1}')
        e(f'v_cvt_pk_bf16_f32 v{c+1}, v{x+2}, {n}v{x+3}')
        e(f'ds_write_b64 v16, {vr(c,2)} offset:{544*r}')
    def rdfr(dst):
        for s in range(8): e(f'ds_read_b128 {vr(dst+4*s,4)}, v17 offset:{64*s}')
    def mm(d):
        for s in range(8):
            c = '0' if s == 0 else vr(d,4)
            e(f'v_mfma_f32_16x16x32_bf16 {vr(d,4)}, {vr(AF+4*s,4)}, {vr(BF+4*s,4)}, {c}')
    cexp(M1, 1); cexp(M128, 128.0)
    cmul(XK, M1, M1); cmul(M256, M128, M128)
    cmul(XK+4, XK, XK); cmul(M512, M256, M256)
    cmul(M8, XK+4, XK+4); cmul(M1024, M512, M512)
    cmul(M2048, M1024, M1024)
    e(f'''v_add_f32 v10, v10, v10
          v_lshlrev_b32 v{X}, 16, v8
          v_lshlrev_b32 v{X+1}, 16, v9
          v_and_b32 v{X+2}, s71, v8
          v_and_b32 v{X+3}, s71, v9''')
    for i in range(4): e(f'v_mul_f32 v{X+i}, v{X+i}, v10')
    e(f'v_mov_b32 v{CV+6}, 0x3f80\n v_mov_b32 v{CV+7}, 0x3f80\n ds_write_b64 v16, {vr(CV+6,2)}')
    row(1, M8, False)
    prev = M8
    for j in range(2, 16):
        cur = T + 4*(j & 1)
        cmul(cur, prev, M8)
        if j - 1 <= 7: cmul(X+4*(j-1), X+4*(j-2), M1)
        row(j, cur, False)
        prev = cur
    rdfr(BF)
    for a in range(8): row(a, X+4*a, True)
    for a in range(8):
        dst = XK + 2*a if a % 2 == 0 else T + 4*((a >> 1) & 1)
        cmul(dst, X+4*a, M128)
        row(8+a, dst, True)
    rdfr(AF)
    pend = True
    for n in range(8):
        src = (X + 8*n) if n < 4 else (XK + 4*(n-4))
        dst = XL + 2*n if n % 2 == 0 else T + 4*((n >> 1) & 1)
        cmul(dst, src, M256)
        row(n, dst, True)
        if n == 3:
            e('s_waitcnt lgkmcnt(4)')
            mm(D)
    cmul(T, X, M2048); row(8, T, True)
    rdfr(AF)
    s2 = [X, X+16, XK, XK+8, XL, XL+4, XL+8, XL+12]
    for g in range(4):
        cmul(XM+4*g, s2[2*g], M512); row(4*g, XM+4*g, True)
        cmul(T, s2[2*g+1], M512); row(4*g+1, T, True)
        if g == 1:
            e('s_waitcnt lgkmcnt(4)')
            mm(D+4)
    s3 = [X, XK, XL, XL+8, XM, XM+4, XM+8, XM+12]
    for i in range(8):
        t = T + 4*(i & 1)
        cmul(t, s3[i], M1024); row(4*(i >> 1) + 2 + (i & 1), t, True)
    rdfr(AF)
    e(f'''s_add_u32 s12, s12, {RB}
          v_lshlrev_b32 v12, 4, v18
          v_sub_u32 v12, s12, v12
          v_lshlrev_b32 v13, 9, v19
          v_sub_u32 v20, v12, v13
          v_add_u32 v20, {2040-256}, v20
          v_lshlrev_b32 v13, 8, v19
          v_sub_u32 v21, v12, v13
          v_add_u32 v21, 3060, v21
          v_lshrrev_b32 v13, 1, v19
          v_lshlrev_b32 v13, 8, v13
          v_sub_u32 v22, v12, v13
          v_and_b32 v13, 1, v19
          v_lshlrev_b32 v13, 3, v13
          v_sub_u32 v22, v22, v13
          s_waitcnt lgkmcnt(0)''')
    mm(D+8)
    B1 = D+4
    e(f'''v_cvt_pk_bf16_f32 v28, v{B1+3}, v{B1+3}
          v_cvt_pk_bf16_f32 v29, v{B1+2}, v{B1+2}
          v_cvt_pk_bf16_f32 v30, v{B1+2}, v{B1+1}
          v_cvt_pk_bf16_f32 v31, v{B1}, v{B1}
          v_cvt_pk_bf16_f32 v32, v{D+3}, v{D+2}
          v_cvt_pk_bf16_f32 v33, v{D+1}, v{D}
          s_nop 1''')
    A = D+8
    e(f'''v_mov_b32_dpp v34, v{A+2} quad_perm:[0,0,2,2] row_mask:0xf bank_mask:0xf
          v_mov_b32_dpp v35, v{A+3} quad_perm:[0,0,2,2] row_mask:0xf bank_mask:0xf
          v_cvt_pk_bf16_f32 v36, v{A+2}, v{A+2}
          v_cvt_pk_bf16_f32 v37, v{A+2}, v34
          v_cvt_pk_bf16_f32 v38, v{A+3}, v{A+3}
          v_cvt_pk_bf16_f32 v39, v{A+3}, v35
          ds_write2_b32 v20, v36, v36 offset0:64 offset1:65
          ds_write2_b32 v20, v36, v37 offset0:66 offset1:67
          ds_write2_b32 v20, v38, v38 offset0:0 offset1:1
          ds_write2_b32 v20, v38, v39 offset0:2 offset1:3
          v_cvt_pk_bf16_f32 v40, v{A+1}, v{A+1}
          v_cvt_pk_bf16_f32 v41, v{A+1}, v{A}
          v_cvt_pk_bf16_f32 v42, v{A}, v{A}
          ds_write2_b32 v21, v40, v41 offset0:0 offset1:1
          ds_write2_b32 v21, v42, v42 offset0:2 offset1:3
          s_mov_b32 exec_lo, 0
          s_mov_b32 exec_hi, 1
          ds_write2_b32 v12, v31, v31 offset0:0 offset1:1
          s_mov_b32 exec_lo, -1
          s_mov_b32 exec_hi, 0
          ds_write_b16 v21, v28 offset:510
          ds_write2_b32 v21, v29, v30 offset0:128 offset1:129
          ds_write_b32 v21, v31 offset:520
          ds_write_b16 v21, v31 offset:524
          s_mov_b64 exec, -1
          ds_write_b64 v22, v[32:33] offset:4088''')

HR = 0; W2R = 65536
def k2():
    e('s_endpgm')
    L.append('.p2align 8')
    e('k2_kernel:')
    prologue(2)
    e('''s_lshr_b32 s6, s4, 1
         s_lshl_b32 s6, s6, 5
         s_and_b32 s8, s5, 0xfc
         s_add_u32 s6, s6, s8
         s_and_b32 s7, s4, 1
         s_lshl_b32 s7, s7, 2
         s_and_b32 s8, s5, 3
         s_add_u32 s7, s7, s8
         s_mul_i32 s7, s7, 80
         s_cmp_lt_u32 s3, 4
         s_cbranch_scc1 L_g2c''')
    e('s_sub_u32 s9, s3, 4\n v_lshlrev_b32 v10, 4, v0')
    for b in range(3):
        e(f'''v_add_u32 v2, {64*b}, v0
              v_mul_u32_u24 v3, 6554, v2
              v_lshrrev_b32 v3, 16, v3
              v_mul_u32_u24 v4, 10, v3
              v_sub_u32 v4, v2, v4
              v_mul_u32_u24 v3, 1280, v3
              v_lshl_add_u32 v{11+b}, v4, 4, v3''')
        if b: e(f'v_subrev_u32 v{11+b}, {1024*b}, v{11+b}')
    e('''v_mov_b32 v2, 0x7fff0000
         v_cmp_gt_u32 vcc, 32, v0
         s_add_u32 s10, s6, s9
         s_mul_i32 s10, s10, %d
         v_cndmask_b32 v13, v2, v13, vcc
         s_mul_i32 s11, s9, %d
         s_lshl_b32 s12, s7, 1
         s_add_u32 s11, s11, s12
         s_lshl_b32 s12, s9, 11
         s_mul_i32 s13, s9, 3072
         s_add_u32 s13, s13, %d
         s_waitcnt lgkmcnt(0)''' % (54*1024, 16*1280, W2R))
    srd(44, 42, 43, H_BYTES, WS_H)
    srd(48, 34, 35, 1728*1280)
    e('s_mov_b32 s14, 0')
    e('L_g2l_loop:')
    e('''s_mov_b32 m0, s13
         s_add_u32 s13, s13, 12288
         buffer_load_dwordx4 v11, s[48:51], s11 offen lds
         buffer_load_dwordx4 v12, s[48:51], s11 offen offset:1024 lds
         buffer_load_dwordx4 v13, s[48:51], s11 offen offset:2048 lds
         s_mov_b32 m0, s12
         s_add_u32 s11, s11, %d
         buffer_load_dwordx4 v10, s[44:47], s10 offen lds
         buffer_load_dwordx4 v10, s[44:47], s10 offen offset:1024 lds
         s_add_u32 s10, s10, 2048
         s_add_u32 s12, s12, 8192
         s_and_b32 s12, s12, 0xffff
         s_cmp_ge_u32 s13, %d
         s_cselect_b32 s15, 98304, 0
         s_sub_u32 s13, s13, s15
         s_add_u32 s14, s14, 1
         s_cmp_lt_u32 s14, 8
         s_cbranch_scc1 L_g2l_loop
         s_cmp_eq_u32 s14, 8
         s_cbranch_scc0 L_g2l_a
         s_waitcnt vmcnt(35)
         s_barrier
         L_g2l_a:
         s_waitcnt vmcnt(30)
         s_barrier
         s_cmp_lt_u32 s14, 27
         s_cbranch_scc1 L_g2l_loop''' % (64*1280, W2R + 98304))
    for n in range(6):
        e(f's_waitcnt vmcnt({25-5*n})\n s_barrier')
    stamp_flush(1, 1)
    e('s_endpgm')
    e('L_g2c:')
    ACC = 16
    FR = 36
    Y = 84
    UU = 104
    DS = 114
    e('''v_and_b32 v14, 15, v0
         v_lshrrev_b32 v15, 4, v0
         s_add_u32 s8, s6, s3
         s_lshl_b32 s8, s8, 4
         s_waitcnt lgkmcnt(0)''')
    srd(44, 42, 43, Y_BYTES, WS_Y)
    srd(48, 42, 43, G_BYTES, WS_G)
    srd(52, 16, 17, 2048*1280)
    srd(56, 28, 29, 1280)
    srd(60, 38, 39, 2048*1280)
    e('''v_lshlrev_b32 v2, 14, v15
         v_lshl_add_u32 v2, v14, 1, v2
         s_lshl_b32 s10, s7, 12
         s_lshl_b32 s11, s8, 1
         s_add_u32 s10, s10, s11''')
    for n in range(20):
        e(f'buffer_load_ushort v{Y+n}, v2, s[44:47], s10 offen')
        if n < 19: e(f's_add_u32 s10, s10, {4096 if n % 4 != 3 else 13*4096}')
    e('''v_mul_u32_u24 v3, 1280, v14
         v_lshl_add_u32 v3, v15, 3, v3
         s_mul_i32 s11, s8, 1280
         s_lshl_b32 s12, s7, 1
         s_add_u32 s11, s11, s12
         v_lshlrev_b32 v4, 3, v15
         v_lshlrev_b32 v5, 2, v14
         s_lshl_b32 s13, s8, 2''')
    for j in range(5): e(f'buffer_load_dwordx2 {vr(UU+2*j,2)}, v3, s[52:55], s11 offen offset:{32*j}')
    for j in range(5): e(f'buffer_load_dwordx2 {vr(DS+2*j,2)}, v4, s[56:59], s12 offen offset:{32*j}')
    e('buffer_load_dword v6, v5, s[48:51], s13 offen')
    e('''s_lshl_b32 s13, s3, 11
         v_lshlrev_b32 v8, 4, v0
         v_add_u32 v8, s13, v8
         v_lshrrev_b32 v9, 5, v0
         v_mul_u32_u24 v9, 3072, v9
         v_bfe_u32 v1, v0, 2, 3
         v_mul_u32_u24 v1, 160, v1
         v_add_u32 v9, v9, v1
         v_and_b32 v1, 3, v0
         v_lshl_add_u32 v9, v1, 3, v9
         v_add_u32 v9, %d, v9''' % W2R)
    for i in range(20): e(f'v_mov_b32 v{ACC+i}, 0')
    for i in range(24): e(f'v_mov_b32 v{FR+24+i}, 0')
    e('s_mov_b32 s13, 0xffff0000\n s_waitcnt vmcnt(0)')
    for p in range(10):
        y = Y + 2*p
        e(f'''v_lshlrev_b32 v124, 16, v{UU+p}
              v_and_b32 v125, s13, v{UU+p}
              v_lshlrev_b32 v126, 16, v{DS+p}
              v_and_b32 v127, s13, v{DS+p}
              v_mul_f32 v124, v124, v126
              v_mul_f32 v125, v125, v127
              v_cvt_pk_bf16_f32 v124, v124, v125
              v_lshlrev_b32 v{y}, 16, v{y}
              v_lshlrev_b32 v{y+1}, 16, v{y+1}
              v_lshlrev_b32 v126, 16, v124
              v_and_b32 v127, s13, v124
              v_add_f32 v126, v126, v{y}
              v_add_f32 v127, v127, v{y+1}
              v_cvt_pk_bf16_f32 v124, v126, v127
              v_lshlrev_b32 v126, 16, v124
              v_and_b32 v127, s13, v124
              v_mul_f32 v126, v126, v6
              v_mul_f32 v127, v127, v6
              v_cvt_pk_bf16_f32 v124, v126, v127
              v_lshlrev_b32 v{y}, 16, v124
              v_and_b32 v{y+1}, s13, v124''')
    e('''v_sub_f32 v6, 1.0, v6
         v_cvt_pk_bf16_f32 v6, v6, v6
         v_lshlrev_b32 v6, 16, v6
         s_mov_b32 s12, 0
         s_mov_b32 s15, 0
         s_mov_b32 s14, 0''')
    def reads(ks, st):
        b = FR + 24*st
        r = [f'ds_read_b128 {vr(b+20,4)}, v10 offset:{1024*ks}']
        for j in range(5):
            for half in range(2):
                r.append(f'ds_read_b64_tr_b16 {vr(b+4*j+2*half,2)}, v11 offset:{6144*ks+1280*half+32*j}')
        return r
    def mfmas(st):
        b = FR + 24*st
        return [f'v_mfma_f32_16x16x32_bf16 {vr(ACC+4*j,4)}, {vr(b+4*j,4)}, {vr(b+20,4)}, {vr(ACC+4*j,4)}' for j in range(5)]
    def step(rd, mm):
        rd = list(rd)
        for m in mm:
            for _ in range(3):
                if rd: e(rd.pop(0))
            e(m)
        assert not rd
        e('s_waitcnt lgkmcnt(0)')
    stamp(1, 1)
    e('L_g2c_loop:')
    e('v_add_u32 v10, s12, v8\n v_add_u32 v11, s15, v9\n s_barrier')
    step(reads(0, 0), mfmas(1))
    e('''s_add_u32 s12, s12, 8192
         s_and_b32 s12, s12, 0xffff
         s_add_u32 s15, s15, 12288
         s_cmp_ge_u32 s15, 98304
         s_cselect_b32 s15, 0, s15
         s_add_u32 s14, s14, 1
         s_cmp_lt_u32 s14, 27''')
    step(reads(1, 1), mfmas(0))
    e('s_cbranch_scc1 L_g2c_loop')
    for m in mfmas(1): e(m)
    stamp(1, 2)
    e('s_nop 7')
    for j in range(5):
        for p in range(2):
            a = ACC + 4*j + 2*p; y = Y + 4*j + 2*p
            e(f'''v_cvt_pk_bf16_f32 v124, v{a}, v{a+1}
                  v_lshlrev_b32 v126, 16, v124
                  v_and_b32 v127, s13, v124
                  v_mul_f32 v126, v126, v6
                  v_mul_f32 v127, v127, v6
                  v_cvt_pk_bf16_f32 v124, v126, v127
                  v_lshlrev_b32 v126, 16, v124
                  v_and_b32 v127, s13, v124
                  v_add_f32 v126, v126, v{y}
                  v_add_f32 v127, v127, v{y+1}
                  v_cvt_pk_bf16_f32 v{UU+2*j+p}, v126, v127''')
        e(f'buffer_store_dwordx2 {vr(UU+2*j,2)}, v3, s[60:63], s11 offen offset:{32*j}')
    stamp_flush(1, 3)
    e('L_end2:\n s_endpgm')

k1()
k2()

HEAD = open(f'cdna_kernels/{NAME}.s.ref').read().split('; Override launch')[0]
HEAD += '''; @launch kernel=k1_kernel grid=(256,1,1) block=(512,1,1) lds=163840
; @launch kernel=k2_kernel grid=(256,1,1) block=(512,1,1) lds=163840
.amdgcn_target "amdgcn-amd-amdhsa--gfx950"
.text
.globl k1_kernel
.globl k2_kernel
.type k1_kernel,@function
.type k2_kernel,@function
.p2align 8
'''
def desc(n, vg):
    return f'''.p2align 6
.amdhsa_kernel {n}
  .amdhsa_next_free_vgpr {vg}
  .amdhsa_next_free_sgpr 102
  .amdhsa_accum_offset {vg}
  .amdhsa_group_segment_fixed_size 0
  .amdhsa_kernarg_size 112
  .amdhsa_user_sgpr_count 2
  .amdhsa_user_sgpr_kernarg_segment_ptr 1
  .amdhsa_system_sgpr_workgroup_id_x 1
.end_amdhsa_kernel
'''
TAIL = '.section .rodata,"a"\n' + desc('k1_kernel', 256) + desc('k2_kernel', 128)
open(OUT, 'w').write(HEAD + '\n'.join(L) + '\n' + TAIL)
print('wrote', OUT, len(L), 'lines')
```

```python
import sys, struct

NAME = 'gated_mix__ssm_conv_s4d__dense_activation_relu__prompt'
OUT = sys.argv[1] if len(sys.argv) > 1 else f'cdna_kernels/{NAME}.s'
OPT = dict(a.split('=') for a in sys.argv[2:])
STAMP = int(OPT.get('stamp', 0))

L = []
def e(s=''):
    for ln in s.split('\n'):
        ln = ln.strip()
        if not ln: continue
        L.append(ln if ln.endswith(':') else '    ' + ln)
def f2u(x): return struct.unpack('<I', struct.pack('<f', x))[0]
def vr(a, n): return f'v[{a}:{a+n-1}]'

WS_H = 0
H_BYTES = 128*54*1024
WS_Y = 0x800000
Y_BYTES = 640*4096
WS_G = 0xB00000
G_BYTES = 8192
WS_ST = 0xC00000

def srd(d, lo, hi, nbytes, off=0):
    if off:
        e(f's_add_u32 s{d}, s{lo}, {hex(off)}')
        e(f's_addc_u32 s{d+1}, s{hi}, 0')
    else:
        e(f's_mov_b32 s{d}, s{lo}')
        e(f's_mov_b32 s{d+1}, s{hi}')
    e(f's_mov_b32 s{d+2}, {hex(nbytes)}')
    e(f's_mov_b32 s{d+3}, 0x00020000')

STV = {1: 255, 2: 135}
CUR = [1]
def stamp(k, slot):
    if STAMP:
        e('s_memrealtime s[80:81]\n s_waitcnt lgkmcnt(0)')
        if isinstance(slot, str):
            e(f's_add_u32 m0, {slot}, 16\n v_writelane_b32 v{STV[CUR[0]]}, s80, m0')
        else:
            e(f'v_writelane_b32 v{STV[CUR[0]]}, s80, {slot}')
def stamp_b():
    if STAMP: e('s_memrealtime s[82:83]')
def stamp_e(slot, base=16):
    if STAMP: e(f's_waitcnt lgkmcnt(0)\n s_add_u32 m0, {slot}, {base}\n v_writelane_b32 v{STV[CUR[0]]}, s82, m0')
def stamp_cyc(slot):
    if STAMP: e(f's_memtime s[80:81]\n s_waitcnt lgkmcnt(0)\n v_writelane_b32 v{STV[CUR[0]]}, s80, {slot}')
def stamp_flush(k, n):
    if not STAMP: return
    e('s_waitcnt lgkmcnt(0) vmcnt(0)')
    stamp(k, n)
    stamp_cyc(15)
    srd(72, 42, 43, 0x100000, WS_ST)
    e(f's_lshl_b32 s76, s2, 3\n s_add_u32 s76, s76, s3\n s_add_u32 s76, s76, {k*2048}\n s_lshl_b32 s76, s76, 8')
    e(f's_mov_b64 exec, -1\n v_lshlrev_b32 v1, 2, v0\n buffer_store_dword v{STV[CUR[0]]}, v1, s[72:75], s76 offen')

def prologue(k):
    CUR[0] = k
    if STAMP: e(f'v_mov_b32 v{STV[k]}, 0')
    stamp(k, 0)
    stamp_cyc(14)
    if STAMP: e('s_mov_b32 s82, 0')
    e('''s_cmp_ge_u32 s2, 256
         s_cbranch_scc1 L_end%d
         s_load_dwordx16 s[16:31], s[0:1], 0
         s_load_dwordx8 s[32:39], s[0:1], 64
         s_load_dwordx4 s[40:43], s[0:1], 96
         v_lshrrev_b32 v1, 6, v0
         v_and_b32 v0, 63, v0
         v_readfirstlane_b32 s3, v1
         s_and_b32 s4, s2, 7
         s_lshr_b32 s5, s2, 3''' % k)

def k1():
    e('k1_kernel:')
    prologue(1)
    e('s_cmp_lt_u32 s5, 14\n s_cbranch_scc1 L_ssm')
    gemm1()
    ssm()
    e('L_end1:\n s_endpgm')

XR = 0; WR = 65536
def gemm1():
    e('''s_sub_u32 s6, s5, 14
         s_and_b32 s7, s4, 1
         s_mul_i32 s7, s7, 18
         s_add_u32 s6, s6, s7
         s_and_b32 s7, s6, 3
         s_lshr_b32 s6, s6, 2
         s_lshr_b32 s8, s4, 1
         s_lshl_b32 s8, s8, 2
         s_add_u32 s7, s7, s8
         s_cmp_lt_u32 s3, 4
         s_cbranch_scc1 L_g1c''')
    e('s_sub_u32 s9, s3, 4')
    e('''v_lshrrev_b32 v2, 3, v0
         v_mul_u32_u24 v2, 1280, v2
         v_and_b32 v3, 7, v0
         v_lshrrev_b32 v4, 4, v0
         v_xor_b32 v3, v3, v4
         v_lshl_add_u32 v10, v3, 4, v2
         v_xor_b32 v3, 4, v3
         v_lshl_add_u32 v11, v3, 4, v2
         v_add_u32 v11, %d, v11
         v_add_u32 v12, %d, v10
         v_add_u32 v13, %d, v11''' % (9216, 2*9216, 2*9216))
    for b in range(3):
        e(f'''v_add_u32 v2, {64*b}, v0
              v_mul_u32_u24 v3, 2731, v2
              v_lshrrev_b32 v3, 16, v3
              v_mul_u32_u24 v4, 24, v3
              v_sub_u32 v4, v2, v4
              v_bfe_u32 v5, v3, 1, 1
              v_lshlrev_b32 v5, 2, v5
              v_xor_b32 v4, v4, v5
              v_mul_u32_u24 v3, 3456, v3
              v_lshl_add_u32 v{14+b}, v4, 4, v3''')
        if b: e(f'v_subrev_u32 v{14+b}, {1024*b}, v{14+b}')
    e('''s_and_b32 s14, s7, 3
         s_mul_i32 s14, s14, 5
         s_add_u32 s14, s14, 1
         s_lshr_b32 s14, s14, 1
         s_lshl_b32 s12, s6, 1
         s_add_u32 s14, s14, s12
         s_lshr_b32 s12, s4, 1
         s_add_u32 s14, s14, s12
         s_and_b32 s12, s4, 1
         s_add_u32 s14, s14, s12
         s_mul_i32 s12, s14, 6554
         s_lshr_b32 s12, s12, 16
         s_mul_i32 s12, s12, 10
         s_sub_u32 s14, s14, s12''')
    if not int(OPT.get('rot1', 1)): e('s_mov_b32 s14, 0')
    e('''s_lshl_b32 s10, s7, 2
         s_add_u32 s10, s10, s9
         s_mul_i32 s10, s10, %d
         s_lshl_b32 s12, s14, 7
         s_add_u32 s10, s10, s12
         s_mul_i32 s11, s9, %d
         s_mul_i32 s12, s6, 384
         s_add_u32 s11, s11, s12
         s_mul_i32 s12, s14, %d
         s_add_u32 s11, s11, s12
         s_lshl_b32 s12, s9, 12
         s_mul_i32 s13, s9, 6144
         s_add_u32 s13, s13, %d
         s_waitcnt lgkmcnt(0)''' % (32*1280, 16*3456, 64*3456, WR))
    srd(44, 16, 17, 2048*1280)
    srd(48, 32, 33, 640*3456)
    e('s_mov_b32 s8, 0')
    e('L_g1l_loop:')
    e('''s_mov_b32 m0, s12
         s_add_u32 s15, s11, %d
         buffer_load_dwordx4 v10, s[44:47], s10 offen lds
         buffer_load_dwordx4 v11, s[44:47], s10 offen offset:1024 lds
         buffer_load_dwordx4 v12, s[44:47], s10 offen offset:2048 lds
         buffer_load_dwordx4 v13, s[44:47], s10 offen offset:3072 lds
         s_mov_b32 m0, s13
         s_add_u32 s10, s10, 128
         buffer_load_dwordx4 v14, s[48:51], s11 offen lds
         buffer_load_dwordx4 v15, s[48:51], s11 offen offset:1024 lds
         buffer_load_dwordx4 v16, s[48:51], s11 offen offset:2048 lds
         s_add_u32 m0, s13, 3072
         s_add_u32 s11, s11, %d
         buffer_load_dwordx4 v14, s[48:51], s15 offen lds
         buffer_load_dwordx4 v15, s[48:51], s15 offen offset:1024 lds
         buffer_load_dwordx4 v16, s[48:51], s15 offen offset:2048 lds
         s_add_u32 s12, s12, 16384
         s_and_b32 s12, s12, 0xffff
         s_add_u32 s13, s13, 24576
         s_cmp_ge_u32 s13, %d
         s_cselect_b32 s15, 98304, 0
         s_sub_u32 s13, s13, s15
         s_add_u32 s14, s14, 1
         s_cmp_eq_u32 s14, 10
         s_cselect_b32 s15, 1280, 0
         s_sub_u32 s10, s10, s15
         s_cmp_eq_u32 s14, 10
         s_cselect_b32 s15, %d, 0
         s_sub_u32 s11, s11, s15
         s_add_u32 s8, s8, 1
         s_cmp_lt_u32 s8, 2
         s_cbranch_scc1 L_g1l_loop''' % (8*3456, 64*3456, WR + 98304, 640*3456))
    stamp_e('s8', 14)
    e('s_waitcnt vmcnt(10)\n s_barrier')
    stamp_b()
    e('s_cmp_lt_u32 s8, 10\n s_cbranch_scc1 L_g1l_loop')
    stamp_e(9)
    srd(52, 36, 37, 1280)
    srd(56, 34, 35, 1728*1280)
    srd(60, 42, 43, G_BYTES, WS_G)
    e('''s_lshl_b32 s10, s7, 3
         s_add_u32 s10, s10, s6
         s_lshl_b32 s10, s10, 2
         s_add_u32 s10, s10, s9
         s_lshl_b32 s10, s10, 2
         v_lshrrev_b32 v2, 4, v0
         v_and_b32 v3, 15, v0
         v_lshlrev_b32 v3, 4, v3
         v_mul_u32_u24 v4, 1280, v2
         v_add_u32 v4, v4, v3
         s_mul_i32 s11, s10, 1280''')
    for n in range(5):
        e(f'buffer_load_dwordx4 {vr(20+4*n,4)}, v4, s[44:47], s11 offen offset:{256*n}')
    for n in range(5):
        e(f'buffer_load_dwordx4 {vr(40+4*n,4)}, v3, s[52:55], 0 offen offset:{256*n}')
    e('''s_sub_u32 s12, s5, 14
         s_lshl_b32 s12, s12, 2
         s_add_u32 s12, s12, s9
         s_mul_i32 s12, s12, %d
         s_and_b32 s13, s4, 1
         s_mul_i32 s13, s13, 640
         s_add_u32 s12, s12, s13''' % (24*1280))
    for n in range(4):
        e(f'''v_add_u32 v5, {64*n}, v0
              v_min_u32 v5, 239, v5
              v_mul_u32_u24 v6, 6554, v5
              v_lshrrev_b32 v6, 16, v6
              v_mul_u32_u24 v7, 10, v6
              v_sub_u32 v7, v5, v7
              v_mul_u32_u24 v6, 1280, v6
              v_lshl_add_u32 v6, v7, 6, v6
              buffer_load_dword v{60+n}, v6, s[56:59], s12 offen''')
    e('''s_waitcnt vmcnt(14)
         s_barrier
         s_waitcnt vmcnt(4)''')
    e('v_mov_b32 v8, 0\n v_mov_b32 v9, 0\n s_mov_b32 s13, 0xffff0000')
    for n in range(20):
        e(f'''v_lshlrev_b32 v64, 16, v{20+n}
              v_and_b32 v65, s13, v{20+n}
              v_lshlrev_b32 v66, 16, v{40+n}
              v_and_b32 v67, s13, v{40+n}
              v_mul_f32 v64, v64, v66
              v_mul_f32 v65, v65, v67
              v_cvt_pk_bf16_f32 v64, v64, v65
              v_lshlrev_b32 v66, 16, v64
              v_and_b32 v67, s13, v64
              v_add_f32 v8, v8, v66
              v_add_f32 v9, v9, v67''')
    e('v_add_f32 v8, v8, v9\n s_nop 1')
    for sh in (8, 4, 2, 1):
        e(f'v_add_f32_dpp v8, v8, v8 row_ror:{sh} row_mask:0xf bank_mask:0xf\n s_nop 1')
    e('''v_cvt_pk_bf16_f32 v8, v8, v8
         v_lshlrev_b32 v8, 16, v8
         v_mul_f32 v8, 0xbfb8aa3b, v8
         v_exp_f32 v8, v8
         s_nop 0
         v_add_f32 v8, 1.0, v8
         v_rcp_f32 v8, v8
         s_nop 0
         v_cvt_pk_bf16_f32 v8, v8, v8
         v_lshlrev_b32 v8, 16, v8
         v_lshlrev_b32 v2, 2, v2
         s_lshl_b32 s10, s10, 2
         s_cmp_ge_u32 s6, 8
         s_cbranch_scc1 L_g1l_done
         buffer_store_dword v8, v2, s[60:63], s10 offen
         L_g1l_done:''')
    stamp_flush(0, 1)
    e('s_endpgm')

    e('L_g1c:')
    ACC = 0 + 16
    FR = 112
    XB = 2
    XA = 8
    e('''s_lshr_b32 s8, s3, 1
         s_and_b32 s9, s3, 1''')
    e('''v_and_b32 v14, 31, v0
         s_lshl_b32 s10, s8, 6
         v_add_u32 v15, s10, v14
         v_lshlrev_b32 v15, 7, v15
         v_bfe_u32 v14, v0, 1, 3
         v_lshrrev_b32 v1, 5, v0
         v_xor_b32 v14, v14, v1''')
    for ks in range(4):
        e(f'v_xor_b32 v1, {2*ks}, v14\n v_lshl_add_u32 v{XB+ks}, v1, 4, v15')
    e('''v_lshrrev_b32 v1, 5, v0
         v_lshlrev_b32 v1, 3, v1
         v_bfe_u32 v14, v0, 2, 2
         v_add_u32 v1, v1, v14
         v_mul_u32_u24 v1, 384, v1
         v_bfe_u32 v14, v0, 4, 1
         v_lshl_add_u32 v1, v14, 5, v1
         v_and_b32 v14, 3, v0
         v_lshl_add_u32 v1, v14, 3, v1
         s_mul_i32 s10, s9, 192
         s_add_u32 s10, s10, %d
         v_add_u32 v1, s10, v1
         v_bfe_u32 v14, v0, 3, 1
         v_lshlrev_b32 v14, 6, v14
         s_lshl_b32 s10, s9, 1
         s_sub_u32 s10, 1, s10
         v_mul_lo_u32 v14, v14, s10
         v_add_u32 v6, v1, v14
         v_sub_u32 v7, v1, v14''' % WR)
    for i in range(96): e(f'v_mov_b32 v{ACC+i}, 0')
    e('s_waitcnt lgkmcnt(0)')
    srd(52, 42, 43, H_BYTES, WS_H)
    e('s_mov_b32 s12, 0\n s_mov_b32 s13, 0\n s_mov_b32 s14, 0')
    def reads(ks, st):
        r = []
        base = FR + 20*st
        for ti in range(2):
            r.append(f'ds_read_b128 {vr(base+12+4*ti,4)}, v{XA+ks} offset:{4096*ti}')
        for fi in range(3):
            for half in range(2):
                r.append(f'ds_read_b64_tr_b16 {vr(base+4*fi+2*half,2)}, v{XA+4+(fi&1)} offset:{(16*ks+4*half)*384+64*fi}')
        return [r[0], r[2], r[3], r[1], r[4], r[5], r[6], r[7]]
    def mfmas(st):
        base = FR + 20*st
        m = []
        for fi in range(3):
            for ti in range(2):
                a = ACC + 16*(2*fi+ti)
                m.append(f'v_mfma_f32_32x32x16_bf16 {vr(a,16)}, {vr(base+4*fi,4)}, {vr(base+12+4*ti,4)}, {vr(a,16)}')
        return m
    def step(rd, mm):
        rd = list(rd)
        e('s_waitcnt lgkmcnt(8)')
        for i, m in enumerate(mm):
            e(m)
            for _ in range(2):
                if rd: e(rd.pop(0))
    for i in range(4): e(f'v_mov_b32 v{XA+i}, v{XB+i}')
    for i in range(2): e(f'v_mov_b32 v{XA+4+i}, v{XB+4+i}')
    e('s_barrier')
    for r in reads(0, 0) + reads(1, 1): e(r)
    e('s_branch L_g1c_mid')
    e('L_g1c_loop:')
    for i in range(4): e(f'v_add_u32 v{XA+i}, s12, v{XB+i}')
    for i in range(2): e(f'v_add_u32 v{XA+4+i}, s13, v{XB+4+i}')
    e('s_barrier')
    step(reads(0, 0), mfmas(2))
    step(reads(1, 1), mfmas(3))
    e('L_g1c_mid:')
    step(reads(2, 2), mfmas(0))
    e('''s_add_u32 s12, s12, 16384
         s_and_b32 s12, s12, 0xffff
         s_add_u32 s13, s13, 24576
         s_cmp_ge_u32 s13, 98304
         s_cselect_b32 s13, 0, s13
         s_add_u32 s14, s14, 1
         s_cmp_lt_u32 s14, 10''')
    step(reads(3, 3), mfmas(1))
    e('s_cbranch_scc1 L_g1c_loop')
    step([], mfmas(2))
    e('s_waitcnt lgkmcnt(0)')
    for m in mfmas(3): e(m)
    stamp(0, 1)
    e('''v_bfe_u32 v1, v0, 4, 1
         v_mul_u32_u24 v1, %d, v1
         v_lshrrev_b32 v14, 5, v0
         v_lshl_add_u32 v1, v14, 8, v1
         v_and_b32 v14, 15, v0
         v_lshl_add_u32 v1, v14, 4, v1
         s_lshl_b32 s10, s7, 1
         s_add_u32 s10, s10, s8
         s_mul_i32 s10, s10, %d
         s_mul_i32 s11, s6, 6
         s_mul_i32 s12, s9, 3
         s_add_u32 s11, s11, s12
         s_add_u32 s10, s10, s11
         s_lshl_b32 s10, s10, 10
         s_add_u32 s11, s10, %d
         s_nop 4''' % (54*1024, 4*54, 2*54*1024))
    k = 0
    for fi in range(3):
        for ti in range(2):
            a = ACC + 16*(2*fi+ti)
            for piece in range(2):
                d = FR + 4*(k % 8); k += 1
                for q in range(4):
                    e(f'v_cvt_pk_bf16_f32 v{d+q}, v{a+8*piece+2*q}, v{a+8*piece+2*q+1}')
                for q in range(4):
                    e(f'v_pk_max_i16 v{d+q}, v{d+q}, 0')
                e(f'buffer_store_dwordx4 {vr(d,4)}, v1, s[52:55], s{10+ti} offen offset:{1024*fi+512*piece}')
    stamp_flush(0, 2)
    e('s_endpgm')

CHS = 12880; UO = 4164; RB = 8304; STG = 77312; STGS = 8704
def ssm():
    e('L_ssm:')
    e('''s_mul_i32 s6, s5, 6
         s_min_u32 s6, s6, 74
         s_mul_i32 s7, s4, 80
         s_add_u32 s6, s6, s7
         s_cmp_ge_u32 s3, 6
         s_cbranch_scc1 L_ssm_u
         s_add_u32 s7, s6, s3
         v_lshlrev_b32 v4, 2, v0
         v_mov_b32 v5, 0
         s_lshl_b32 s10, s7, 8
         s_lshl_b32 s11, s7, 1
         s_waitcnt lgkmcnt(0)''')
    srd(48, 18, 19, 163840); srd(64, 26, 27, 1280)
    e('''buffer_load_dword v6, v4, s[48:51], s10 offen
         buffer_load_ushort v10, v5, s[64:67], s11 offen''')
    srd(52, 20, 21, 163840); srd(56, 22, 23, 163840); srd(60, 24, 25, 163840); srd(44, 28, 29, 1280)
    e('''buffer_load_dword v7, v4, s[52:55], s10 offen
         buffer_load_dword v8, v4, s[56:59], s10 offen
         buffer_load_dword v9, v4, s[60:63], s10 offen
         buffer_load_ushort v11, v5, s[44:47], s11 offen''')
    kgen()
    stamp(0, 1)
    e('s_branch L_ssm_conv')
    e('L_ssm_u:')
    U = 32
    e('''s_sub_u32 s8, s3, 6
         s_mul_i32 s9, s4, 160
         s_and_b32 s9, s9, 0xffffff80
         s_lshl_b32 s10, s8, 7
         s_add_u32 s9, s9, s10
         s_mul_i32 s10, s5, 147
         s_mul_i32 s11, s10, 1280
         s_add_u32 s9, s9, s11
         v_mul_u32_u24 v2, 1280, v0
         v_mul_u32_u24 v3, 5120, v0
         s_lshr_b32 s10, s10, 8
         s_add_u32 s10, s10, s8
         s_waitcnt lgkmcnt(0)''')
    srd(44, 16, 17, 2048*1280)
    if int(OPT.get('upf', 1)):
        e('s_mov_b32 exec_hi, 0x1ffff')
        for n in range(3):
            e(f'buffer_load_dword v{4+n}, v2, s[44:47], s9 offen')
            if n < 2: e(f's_add_u32 s9, s9, {49*1280}')
        e('s_mov_b32 exec_hi, -1')
    e('s_lshl_b32 s9, s6, 1')
    for n in range(4):
        g = U + 20*n
        e(f'''s_add_u32 s11, s10, {2*n}
              s_and_b32 s11, s11, 7
              s_lshl_b32 s{48+n}, s11, 9
              s_mul_i32 s11, s11, {256*1280}
              s_add_u32 s11, s11, s9''')
        for r in range(4):
            e(f'buffer_load_dwordx3 {vr(g+4*r,3)}, v3, s[44:47], s11 offen offset:{1280*r}')
        e(f'''s_sub_u32 s11, s11, 1280
              v_mov_b32 v{8+n}, s11
              s_mov_b64 exec, 1
              buffer_load_dwordx3 {vr(g+16,3)}, v{8+n}, s[44:47], 0 offen
              s_mov_b64 exec, -1''')
    e(f'''v_lshlrev_b32 v14, 3, v0
          s_mov_b32 s12, 0x05040100
          s_mov_b32 s13, 0x07060302''')
    for n in range(4):
        g = U + 20*n
        e(f'''v_add_u32 v12, s{48+n}, v14
              v_add_u32 v13, {3*CHS}, v12
              s_waitcnt vmcnt({15-5*n})''')
        for c in range(3):
            e(f'v_mov_b32_dpp v{g+16+c}, v{g+12+c} wave_shr:1 row_mask:0xf bank_mask:0xf')
        for ch in range(6):
            c = ch >> 1; sel = 12 + (ch & 1); t = 16 + 4*(ch & 1)
            e(f'''v_perm_b32 v{t}, v{g+4+c}, v{g+c}, s{sel}
                  v_perm_b32 v{t+1}, v{g+12+c}, v{g+8+c}, s{sel}
                  v_perm_b32 v{t+2}, v{g+c}, v{g+16+c}, s{sel}
                  v_perm_b32 v{t+3}, v{g+8+c}, v{g+4+c}, s{sel}
                  ds_write_b64 v{12 + ch//3}, {vr(t,2)} offset:{(ch%3)*CHS+32}
                  ds_write_b64 v{12 + ch//3}, {vr(t+2,2)} offset:{(ch%3)*CHS+UO+28}''')
    stamp(0, 1)
    e('L_ssm_conv:')
    e(f'''s_and_b32 s8, s3, 3
          s_lshr_b32 s9, s3, 2
          s_mul_i32 s10, s9, {3*CHS}
          s_mov_b32 s11, 0
          s_mov_b32 s14, 0
          s_cmp_eq_u32 s8, 1
          s_cselect_b32 s11, {6*64}, s11
          s_cselect_b32 s14, {CHS - 8*64}, s14
          s_cmp_eq_u32 s8, 2
          s_cselect_b32 s11, {2*CHS}, s11
          s_cselect_b32 s14, {(-CHS + 2*64) & 0xffffffff}, s14
          s_cmp_eq_u32 s8, 3
          s_cselect_b32 s11, {2*CHS + 2*64}, s11
          s_add_u32 s10, s10, s11''')
    e(f'''v_and_b32 v4, 15, v0
          v_lshrrev_b32 v5, 4, v0
          v_add_u32 v6, 1, v4
          v_and_b32 v7, 1, v6
          v_mul_u32_u24 v7, {UO}, v7
          v_lshrrev_b32 v6, 1, v6
          v_lshl_add_u32 v7, v6, 2, v7
          v_lshlrev_b32 v6, 4, v5
          v_sub_u32 v7, v7, v6
          v_add_u32 v7, 48, v7
          v_add_u32 v8, s10, v7
          v_add_u32 v9, 1024, v8
          v_add_u32 v10, 2048, v8
          v_add_u32 v11, 3072, v8
          v_lshlrev_b32 v7, 5, v4
          v_add_u32 v7, v7, v6
          v_sub_u32 v7, {RB+528}, v7
          v_add_u32 v12, s10, v7''')
    ACC = 32; F = 64
    for i in range(32): e(f'v_mov_b32 v{ACC+i}, 0')
    e('s_waitcnt lgkmcnt(0)\n s_barrier')
    stamp(0, 2)
    def reads(st):
        b = F + 64*st
        r = []
        for m in range(8):
            r.append(f'ds_read_b128 {vr(b+32+4*m,4)}, v12 offset:{(7-m)*512}')
            o = 128*(m & 1)
            r.append(f'ds_read2_b32 {vr(b+4*m,2)}, v{8+m//2} offset0:{o} offset1:{o+1}')
            r.append(f'ds_read2_b32 {vr(b+4*m+2,2)}, v{8+m//2} offset0:{o+2} offset1:{o+3}')
        return r
    def adv(src):
        return [f'v_add_u32 v{8+i}, {src}, v{8+i}' for i in range(5)]
    def mfmas(st):
        b = F + 64*st
        mm = []
        for m in range(8):
            for h in range(m, 8):
                mm.append(f'v_mfma_f32_16x16x32_bf16 {vr(ACC+4*h,4)}, {vr(b+4*m,4)}, {vr(b+32+4*(h-m),4)}, {vr(ACC+4*h,4)}')
        return mm
    def unit(st, other):
        other = list(other)
        for i, m in enumerate(mfmas(st)):
            e(m)
            if other: e(other.pop(0))
        assert not other
        e('s_waitcnt lgkmcnt(0)')
    for r in reads(0): e(r)
    e('s_mov_b32 s15, 0\n s_add_u32 s14, s14, 64\n s_waitcnt lgkmcnt(0)')
    e('L_conv_loop:')
    unit(0, adv(64) + reads(1))
    unit(1, adv('s14') + reads(0))
    stamp(0, 's15')
    e('''s_mov_b32 s14, 64
         s_add_u32 s15, s15, 1
         s_cmp_eq_u32 s15, 1
         s_cbranch_scc0 L_conv_nf
         s_sub_u32 s11, s8, 1
         s_cmp_lt_u32 s11, 2
         s_cbranch_scc0 L_conv_loop''')
    e(f'''s_mul_i32 s12, s9, 3
          s_lshl_b32 s11, s11, 1
          s_add_u32 s12, s12, s11
          s_mul_i32 s12, s12, {STGS}
          s_add_u32 s12, s12, {STG}
          v_lshlrev_b32 v13, 4, v0
          v_add_u32 v13, s12, v13
          s_nop 2''')
    for h in range(8): e(f'ds_write_b128 v13, {vr(ACC+4*h,4)} offset:{1024*h}')
    for i in range(32): e(f'v_mov_b32 v{ACC+i}, 0')
    e('''s_nop 1
         s_branch L_conv_loop
         L_conv_nf:
         s_cmp_lt_u32 s15, 3
         s_cbranch_scc1 L_conv_loop''')
    stamp(0, 3)
    e(f'''s_add_u32 s11, s8, 1
          s_lshr_b32 s11, s11, 1
          s_mul_i32 s12, s9, 3
          s_add_u32 s11, s11, s12
          s_mul_i32 s12, s11, {STGS}
          s_add_u32 s12, s12, {STG}
          v_lshlrev_b32 v13, 4, v0
          v_add_u32 v13, s12, v13
          s_cmp_eq_u32 s5, 13
          s_cselect_b32 s13, 4, 0
          s_cmp_lt_u32 s11, s13
          s_cselect_b32 s13, 0x40000, 0
          s_add_u32 s11, s11, s13
          s_add_u32 s11, s11, s6
          s_lshl_b32 s11, s11, 12
          v_lshlrev_b32 v14, 5, v4
          v_lshl_add_u32 v14, v5, 3, v14''')
    srd(48, 42, 43, Y_BYTES, WS_Y)
    e('s_cmp_eq_u32 s8, 1\n s_cbranch_scc0 L_fin_a')
    for h in range(4, 8): e(f'ds_write_b128 v13, {vr(ACC+4*h,4)} offset:{1024*h}')
    e('L_fin_a:\n s_cmp_eq_u32 s8, 2\n s_cbranch_scc0 L_fin_b')
    for h in range(0, 4): e(f'ds_write_b128 v13, {vr(ACC+4*h,4)} offset:{1024*h}')
    e('L_fin_b:\n s_waitcnt lgkmcnt(0)\n s_barrier')
    def fin(hs):
        for h in hs: e(f'ds_read_b128 {vr(F+4*h,4)}, v13 offset:{1024*h}')
        for n, h in enumerate(hs):
            e(f's_waitcnt lgkmcnt({len(hs)-1-n})')
            for r in range(4): e(f'v_add_f32 v{F+4*h+r}, v{F+4*h+r}, v{ACC+4*h+r}')
            e(f'v_cvt_pk_bf16_f32 v{F+4*h}, v{F+4*h}, v{F+4*h+1}')
            e(f'v_cvt_pk_bf16_f32 v{F+4*h+1}, v{F+4*h+2}, v{F+4*h+3}')
            e(f'buffer_store_dwordx2 {vr(F+4*h,2)}, v14, s[48:51], s11 offen offset:{512*h}')
    e('s_cmp_eq_u32 s8, 2\n s_cbranch_scc1 L_fin_c')
    fin(range(0, 4))
    e('L_fin_c:\n s_cmp_eq_u32 s8, 1\n s_cbranch_scc1 L_fin_d')
    fin(range(4, 8))
    e('L_fin_d:')
    stamp_flush(0, 4)

def kgen():
    L2E = 1.4426950408889634
    l2e_hi = struct.unpack('<f', struct.pack('<f', L2E))[0]
    l2e_lo = L2E - l2e_hi
    e(f'''s_mul_i32 s12, s3, {CHS}
          v_add_u32 v12, s12, v4
          v_mov_b32 v14, 0
          v_mov_b32 v15, 0
          v_lshl_add_u32 v13, v0, 2, v12
          s_mov_b64 exec, 0xff
          ds_write_b32 v12, v14
          ds_write_b32 v12, v14 offset:{UO-4}
          s_mov_b32 exec_lo, -1
          s_mov_b32 exec_hi, 0x0fffffff
          ds_write_b64 v13, v[14:15] offset:{RB+4096}
          s_mov_b64 exec, -1''')
    e(f'''s_mul_i32 s13, s3, {STGS}
          s_add_u32 s13, s13, {STG}
          v_lshlrev_b32 v16, 3, v0
          v_add_u32 v16, s13, v16
          v_and_b32 v18, 15, v0
          v_lshrrev_b32 v19, 4, v0
          v_mul_u32_u24 v17, 544, v18
          v_lshl_add_u32 v17, v19, 4, v17
          v_add_u32 v17, s13, v17
          s_mov_b32 s68, {hex(f2u(l2e_hi))}
          s_mov_b32 s69, {hex(f2u(l2e_lo))}
          s_mov_b32 s70, {hex(f2u(0.6931471805599453))}
          s_mov_b32 s71, 0xffff0000
          s_waitcnt vmcnt(4)''')
    stamp(0, 5)
    def exp_acc(x, t, lo):
        e(f'''v_mul_f32 v{t}, s68, v{x}
              v_fma_f32 v{lo}, v{x}, s68, -v{t}
              v_fma_f32 v{lo}, v{x}, s69, v{lo}
              v_exp_f32 v{t}, v{t}
              v_mul_f32 v{lo}, s70, v{lo}
              v_fma_f32 v{x}, v{t}, v{lo}, v{t}''')
    e('v_lshlrev_b32 v10, 16, v10\n v_lshlrev_b32 v20, 16, v6\n v_and_b32 v21, s71, v6')
    exp_acc(10, 22, 23); exp_acc(20, 24, 25); exp_acc(21, 26, 27)
    e('''v_cvt_pk_bf16_f32 v10, v10, v10
         v_cvt_pk_bf16_f32 v20, v20, v21
         v_lshlrev_b32 v10, 16, v10
         v_and_b32 v21, s71, v20
         v_lshlrev_b32 v20, 16, v20
         v_mul_f32 v20, v20, v10
         v_mul_f32 v21, v21, v10
         v_mul_f32 v20, 0xbfb8aa3b, v20
         v_mul_f32 v21, 0xbfb8aa3b, v21
         s_waitcnt vmcnt(0)
         v_lshlrev_b32 v22, 16, v7
         v_and_b32 v23, s71, v7
         v_mul_f32 v22, v22, v10
         v_mul_f32 v23, v23, v10
         v_mul_f32 v22, 0.15915494, v22
         v_mul_f32 v23, 0.15915494, v23''')
    M1, M8, M128, M256, M512, M1024, M2048 = 28, 32, 36, 40, 44, 48, 52
    X = 56
    XK = 88
    XL = 104
    XM = 120
    T = 136
    CV = 144
    BF = 152
    AF = 184
    D = 216
    def cexp(dst, scale):
        for m in range(2):
            a, p = 20+m, 22+m
            t = T + 4*m
            if scale != 1:
                e(f'v_mul_f32 v{t}, {hex(f2u(scale))}, v{a}\n v_mul_f32 v{t+1}, {hex(f2u(scale))}, v{p}')
                a, p = t, t+1
            e(f'''v_rndne_f32 v{t+2}, v{p}
                  v_exp_f32 v{t+3}, v{a}
                  v_sub_f32 v{t+2}, v{p}, v{t+2}
                  v_cos_f32 v{dst+2*m}, v{t+2}
                  v_sin_f32 v{dst+2*m+1}, v{t+2}
                  s_nop 0
                  v_mul_f32 v{dst+2*m}, v{dst+2*m}, v{t+3}
                  v_mul_f32 v{dst+2*m+1}, v{dst+2*m+1}, v{t+3}''')
    def cmul(dst, x, m):
        assert dst != x and dst != m
        for k in range(2):
            e(f'v_pk_mul_f32 {vr(dst+2*k,2)}, {vr(x+2*k,2)}, {vr(m+2*k,2)} op_sel:[0,0] op_sel_hi:[1,0]')
        for k in range(2):
            e(f'v_pk_fma_f32 {vr(dst+2*k,2)}, {vr(x+2*k,2)}, {vr(m+2*k,2)}, {vr(dst+2*k,2)} op_sel:[1,1,0] op_sel_hi:[0,1,1] neg_lo:[0,1,0]')
    cvn = [0]
    def row(r, x, conj):
        c = CV + 2*(cvn[0] % 4); cvn[0] += 1
        n = '-' if conj else ''
        e(f'v_cvt_pk_bf16_f32 v{c}, v{x}, {n}v{x+1}')
        e(f'v_cvt_pk_bf16_f32 v{c+1}, v{x+2}, {n}v{x+3}')
        e(f'ds_write_b64 v16, {vr(c,2)} offset:{544*r}')
    def rdfr(dst):
        for s in range(8): e(f'ds_read_b128 {vr(dst+4*s,4)}, v17 offset:{64*s}')
    def mm(d):
        for s in range(8):
            c = '0' if s == 0 else vr(d,4)
            e(f'v_mfma_f32_16x16x32_bf16 {vr(d,4)}, {vr(AF+4*s,4)}, {vr(BF+4*s,4)}, {c}')
    cexp(M1, 1); cexp(M128, 128.0)
    cmul(XK, M1, M1); cmul(M256, M128, M128)
    cmul(XK+4, XK, XK); cmul(M512, M256, M256)
    cmul(M8, XK+4, XK+4); cmul(M1024, M512, M512)
    cmul(M2048, M1024, M1024)
    e(f'''v_add_f32 v10, v10, v10
          v_lshlrev_b32 v{X}, 16, v8
          v_lshlrev_b32 v{X+1}, 16, v9
          v_and_b32 v{X+2}, s71, v8
          v_and_b32 v{X+3}, s71, v9''')
    for i in range(4): e(f'v_mul_f32 v{X+i}, v{X+i}, v10')
    stamp(0, 6)
    e(f'v_mov_b32 v{CV+6}, 0x3f80\n v_mov_b32 v{CV+7}, 0x3f80\n ds_write_b64 v16, {vr(CV+6,2)}')
    row(1, M8, False)
    prev = M8
    for j in range(2, 16):
        cur = T + 4*(j & 1)
        cmul(cur, prev, M8)
        if j - 1 <= 7: cmul(X+4*(j-1), X+4*(j-2), M1)
        row(j, cur, False)
        prev = cur
    rdfr(BF)
    for a in range(8): row(a, X+4*a, True)
    for a in range(8):
        dst = XK + 2*a if a % 2 == 0 else T + 4*((a >> 1) & 1)
        cmul(dst, X+4*a, M128)
        row(8+a, dst, True)
    rdfr(AF)
    pend = True
    for n in range(8):
        src = (X + 8*n) if n < 4 else (XK + 4*(n-4))
        dst = XL + 2*n if n % 2 == 0 else T + 4*((n >> 1) & 1)
        cmul(dst, src, M256)
        row(n, dst, True)
        if n == 3:
            e('s_waitcnt lgkmcnt(4)')
            mm(D)
    cmul(T, X, M2048); row(8, T, True)
    rdfr(AF)
    s2 = [X, X+16, XK, XK+8, XL, XL+4, XL+8, XL+12]
    for g in range(4):
        cmul(XM+4*g, s2[2*g], M512); row(4*g, XM+4*g, True)
        cmul(T, s2[2*g+1], M512); row(4*g+1, T, True)
        if g == 1:
            e('s_waitcnt lgkmcnt(4)')
            mm(D+4)
    s3 = [X, XK, XL, XL+8, XM, XM+4, XM+8, XM+12]
    for i in range(8):
        t = T + 4*(i & 1)
        cmul(t, s3[i], M1024); row(4*(i >> 1) + 2 + (i & 1), t, True)
    rdfr(AF)
    e(f'''s_add_u32 s12, s12, {RB}
          v_lshlrev_b32 v12, 4, v18
          v_sub_u32 v12, s12, v12
          v_lshlrev_b32 v13, 9, v19
          v_sub_u32 v20, v12, v13
          v_add_u32 v20, {2040-256}, v20
          v_lshlrev_b32 v13, 8, v19
          v_sub_u32 v21, v12, v13
          v_add_u32 v21, 3060, v21
          v_lshrrev_b32 v13, 1, v19
          v_lshlrev_b32 v13, 8, v13
          v_sub_u32 v22, v12, v13
          v_and_b32 v13, 1, v19
          v_lshlrev_b32 v13, 3, v13
          v_sub_u32 v22, v22, v13
          s_waitcnt lgkmcnt(0)''')
    mm(D+8)
    B1 = D+4
    e(f'''v_lshlrev_b32 v11, 16, v11
          s_mov_b64 exec, 1
          v_add_f32 v{D}, v{D}, v11
          s_mov_b64 exec, -1
          v_cvt_pk_bf16_f32 v28, v{B1+3}, v{B1+3}
          v_cvt_pk_bf16_f32 v29, v{B1+2}, v{B1+2}
          v_cvt_pk_bf16_f32 v30, v{B1+2}, v{B1+1}
          v_cvt_pk_bf16_f32 v31, v{B1}, v{B1}
          v_cvt_pk_bf16_f32 v32, v{D+3}, v{D+2}
          v_cvt_pk_bf16_f32 v33, v{D+1}, v{D}
          s_nop 1''')
    A = D+8
    e(f'''v_mov_b32_dpp v34, v{A+2} quad_perm:[0,0,2,2] row_mask:0xf bank_mask:0xf
          v_mov_b32_dpp v35, v{A+3} quad_perm:[0,0,2,2] row_mask:0xf bank_mask:0xf
          v_cvt_pk_bf16_f32 v36, v{A+2}, v{A+2}
          v_cvt_pk_bf16_f32 v37, v{A+2}, v34
          v_cvt_pk_bf16_f32 v38, v{A+3}, v{A+3}
          v_cvt_pk_bf16_f32 v39, v{A+3}, v35
          ds_write2_b32 v20, v36, v36 offset0:64 offset1:65
          ds_write2_b32 v20, v36, v37 offset0:66 offset1:67
          ds_write2_b32 v20, v38, v38 offset0:0 offset1:1
          ds_write2_b32 v20, v38, v39 offset0:2 offset1:3
          v_cvt_pk_bf16_f32 v40, v{A+1}, v{A+1}
          v_cvt_pk_bf16_f32 v41, v{A+1}, v{A}
          v_cvt_pk_bf16_f32 v42, v{A}, v{A}
          ds_write2_b32 v21, v40, v41 offset0:0 offset1:1
          ds_write2_b32 v21, v42, v42 offset0:2 offset1:3
          s_mov_b32 exec_lo, 0
          s_mov_b32 exec_hi, 1
          ds_write2_b32 v12, v31, v31 offset0:0 offset1:1
          s_mov_b32 exec_lo, -1
          s_mov_b32 exec_hi, 0
          ds_write_b16 v21, v28 offset:510
          ds_write2_b32 v21, v29, v30 offset0:128 offset1:129
          ds_write_b32 v21, v31 offset:520
          ds_write_b16 v21, v31 offset:524
          s_mov_b64 exec, -1
          ds_write_b64 v22, v[32:33] offset:4088''')

HR = 0; W2R = 32768; NS2 = 4
def k2():
    L.append('.p2align 8')
    e('k2_kernel:')
    prologue(2)
    e('''s_lshr_b32 s6, s4, 1
         s_lshl_b32 s6, s6, 5
         s_and_b32 s8, s5, 0xfc
         s_add_u32 s6, s6, s8
         s_and_b32 s7, s4, 1
         s_lshl_b32 s7, s7, 2
         s_and_b32 s8, s5, 3
         s_add_u32 s7, s7, s8
         s_mul_i32 s7, s7, 80
         s_cmp_lt_u32 s3, 4
         s_cbranch_scc1 L_g2c''')
    e('s_sub_u32 s9, s3, 4\n v_lshlrev_b32 v10, 4, v0')
    for b in range(3):
        e(f'''v_add_u32 v2, {64*b}, v0
              v_mul_u32_u24 v3, 6554, v2
              v_lshrrev_b32 v3, 16, v3
              v_mul_u32_u24 v4, 10, v3
              v_sub_u32 v4, v2, v4
              v_mul_u32_u24 v3, 1280, v3
              v_lshl_add_u32 v{11+b}, v4, 4, v3''')
        if b: e(f'v_subrev_u32 v{11+b}, {1024*b}, v{11+b}')
    e('''v_mov_b32 v2, 0x7fff0000
         v_cmp_gt_u32 vcc, 32, v0
         s_and_b32 s8, s4, 1
         s_mul_i32 s8, s8, %d
         s_add_u32 s10, s6, s9
         s_mul_i32 s10, s10, %d
         v_cndmask_b32 v13, v2, v13, vcc
         s_lshl_b32 s12, s8, 11
         s_add_u32 s10, s10, s12
         s_mul_i32 s11, s9, %d
         s_lshl_b32 s12, s7, 1
         s_add_u32 s11, s11, s12
         s_mul_i32 s12, s8, %d
         s_add_u32 s11, s11, s12
         s_lshl_b32 s12, s9, 11
         s_mul_i32 s13, s9, 3072
         s_add_u32 s13, s13, %d
         s_waitcnt lgkmcnt(0)''' % (int(OPT.get('rot2', 14)), 54*1024, 16*1280, 64*1280, W2R))
    srd(44, 42, 43, H_BYTES, WS_H)
    srd(48, 34, 35, 1728*1280)
    e('s_mov_b32 s14, 0')
    e('L_g2l_loop:')
    e('''s_mov_b32 m0, s13
         s_add_u32 s13, s13, 12288
         buffer_load_dwordx4 v11, s[48:51], s11 offen lds
         buffer_load_dwordx4 v12, s[48:51], s11 offen offset:1024 lds
         buffer_load_dwordx4 v13, s[48:51], s11 offen offset:2048 lds
         s_mov_b32 m0, s12
         s_add_u32 s11, s11, %d
         buffer_load_dwordx4 v10, s[44:47], s10 offen lds
         buffer_load_dwordx4 v10, s[44:47], s10 offen offset:1024 lds
         s_add_u32 s10, s10, 2048
         s_add_u32 s12, s12, 8192
         s_and_b32 s12, s12, %d
         s_cmp_ge_u32 s13, %d
         s_cselect_b32 s15, %d, 0
         s_sub_u32 s13, s13, s15
         s_add_u32 s8, s8, 1
         s_cmp_eq_u32 s8, 27
         s_cselect_b32 s15, %d, 0
         s_sub_u32 s10, s10, s15
         s_cmp_eq_u32 s8, 27
         s_cselect_b32 s15, %d, 0
         s_sub_u32 s11, s11, s15
         s_add_u32 s14, s14, 1
         s_cmp_lt_u32 s14, 3
         s_cbranch_scc1 L_g2l_loop''' % (64*1280, NS2*8192-1, W2R + NS2*12288, NS2*12288, 54*1024, 1728*1280))
    stamp_e('s14', 13)
    e('s_waitcnt vmcnt(10)\n s_barrier')
    stamp_b()
    e('''s_cmp_lt_u32 s14, 27
         s_cbranch_scc1 L_g2l_loop
         s_waitcnt vmcnt(5)
         s_barrier
         s_waitcnt vmcnt(0)
         s_barrier''')
    stamp_flush(1, 1)
    e('s_endpgm')
    e('L_g2c:')
    ACC = 16
    FR = 56
    Y = 112
    e('''v_and_b32 v14, 15, v0
         v_lshrrev_b32 v15, 4, v0
         s_add_u32 s8, s6, s3
         s_lshl_b32 s8, s8, 4
         s_and_b32 s9, s3, 1''')
    for n in range(20): e(f'v_mov_b32 v{Y+n}, 0')
    e('s_waitcnt lgkmcnt(0)')
    srd(44, 42, 43, Y_BYTES, WS_Y)
    srd(48, 42, 43, G_BYTES, WS_G)
    srd(60, 38, 39, 2048*1280)
    e('''v_lshlrev_b32 v2, 14, v15
         v_lshl_add_u32 v2, v14, 1, v2
         s_lshl_b32 s10, s7, 12
         s_lshl_b32 s11, s8, 1
         s_add_u32 s10, s10, s11
         v_lshlrev_b32 v5, 2, v14
         s_lshl_b32 s13, s8, 2
         buffer_load_dword v6, v5, s[48:51], s13 offen''')
    for n in range(20):
        e(f'buffer_load_short_d16_hi v{Y+n}, v2, s[44:47], s10 offen')
        if n < 19: e(f's_add_u32 s10, s10, {4096 if n % 4 != 3 else 13*4096}')
    e('''v_mul_u32_u24 v3, 1280, v14
         v_lshl_add_u32 v3, v15, 3, v3
         s_mul_i32 s11, s8, 1280
         s_lshl_b32 s12, s7, 1
         s_add_u32 s11, s11, s12''')
    e('''s_lshr_b32 s13, s3, 1
         s_lshl_b32 s13, s13, 12
         s_lshl_b32 s12, s9, 10
         s_add_u32 s13, s13, s12
         v_lshlrev_b32 v7, 4, v0
         v_add_u32 v8, s13, v7
         v_lshrrev_b32 v9, 5, v0
         v_mul_u32_u24 v9, 3072, v9
         v_bfe_u32 v1, v0, 2, 3
         v_mul_u32_u24 v1, 160, v1
         v_add_u32 v9, v9, v1
         v_and_b32 v1, 3, v0
         v_lshl_add_u32 v9, v1, 3, v9
         s_mul_i32 s12, s9, 6144
         s_add_u32 s12, s12, %d
         v_add_u32 v9, s12, v9''' % W2R)
    for i in range(40): e(f'v_mov_b32 v{ACC+i}, 0')
    def reads(slot, st):
        b = FR + 28*st
        r = [f'ds_read_b128 {vr(b+20,4)}, v8 offset:{8192*slot}']
        for j in range(5):
            for half in range(2):
                r.append(f'ds_read_b64_tr_b16 {vr(b+4*j+2*half,2)}, v9 offset:{12288*slot+1280*half+32*j}')
            if j == 0: r.append(f'ds_read_b128 {vr(b+24,4)}, v8 offset:{8192*slot+2048}')
        return r
    def mfmas(st):
        b = FR + 28*st
        return [f'v_mfma_f32_16x16x32_bf16 {vr(ACC+20*ti+4*j,4)}, {vr(b+4*j,4)}, {vr(b+20+4*ti,4)}, {vr(ACC+20*ti+4*j,4)}' for j in range(5) for ti in range(2)]
    def step(rd, mm):
        rd = list(rd)
        e('s_barrier')
        for m in mm:
            for _ in range(2):
                if rd: e(rd.pop(0))
            e(m)
        for r in rd: e(r)
        e('s_waitcnt lgkmcnt(0)')
    stamp(1, 1)
    e('s_mov_b32 s15, 0\n s_mov_b32 s14, 0')
    step(reads(0, 0), [])
    e('L_g2c_loop:')
    step(reads(1, 1), mfmas(0))
    step(reads(2, 0), mfmas(1))
    e('s_add_u32 s15, s15, 1\n s_cmp_eq_u32 s15, 7\n s_cbranch_scc1 L_g2c_done')
    step(reads(3, 1), mfmas(0))
    step(reads(0, 0), mfmas(1))
    e('s_branch L_g2c_loop')
    e('L_g2c_done:')
    for m in mfmas(0): e(m)
    stamp(1, 2)
    e(f'''s_mul_i32 s12, s3, 5120
          s_add_u32 s12, s12, {W2R}
          v_add_u32 v8, s12, v7
          s_xor_b32 s12, s3, 1
          s_mul_i32 s12, s12, 5120
          s_add_u32 s12, s12, {W2R}
          v_add_u32 v9, s12, v7
          s_mov_b32 s13, 0xffff0000
          s_cmp_eq_u32 s9, 0
          s_cbranch_scc1 L_g2c_k0''')
    for j in range(5): e(f'ds_write_b128 v8, {vr(ACC+4*j,4)} offset:{1024*j}')
    for i in range(20): e(f'v_mov_b32 v{ACC+i}, v{ACC+20+i}')
    e('s_branch L_g2c_x\n L_g2c_k0:')
    for j in range(5): e(f'ds_write_b128 v8, {vr(ACC+20+4*j,4)} offset:{1024*j}')
    e('L_g2c_x:')
    e('s_waitcnt vmcnt(0)')
    for p in range(10):
        y = Y + 2*p
        e(f'''v_mul_f32 v{y}, v{y}, v6
              v_mul_f32 v{y+1}, v{y+1}, v6
              v_cvt_pk_bf16_f32 v{y}, v{y}, v{y+1}
              v_and_b32 v{y+1}, s13, v{y}
              v_lshlrev_b32 v{y}, 16, v{y}''')
        if p == 3:
            e('s_waitcnt lgkmcnt(0)\n s_barrier')
            for j in range(5): e(f'ds_read_b128 {vr(FR+4*j,4)}, v9 offset:{1024*j}')
    e('''v_sub_f32 v6, 1.0, v6
         v_cvt_pk_bf16_f32 v6, v6, v6
         v_lshlrev_b32 v6, 16, v6''')
    for j in range(5):
        e(f's_waitcnt lgkmcnt({4-j})')
        for p in range(2):
            a = ACC + 4*j + 2*p; y = Y + 4*j + 2*p; x = FR + 4*j + 2*p; t = FR + 20 + 2*p
            e(f'''v_add_f32 v{a}, v{a}, v{x}
                  v_add_f32 v{a+1}, v{a+1}, v{x+1}
                  v_cvt_pk_bf16_f32 v{t}, v{a}, v{a+1}
                  v_and_b32 v{t+1}, s13, v{t}
                  v_lshlrev_b32 v{t}, 16, v{t}
                  v_mul_f32 v{t}, v{t}, v6
                  v_mul_f32 v{t+1}, v{t+1}, v6
                  v_cvt_pk_bf16_f32 v{t}, v{t}, v{t+1}
                  v_and_b32 v{t+1}, s13, v{t}
                  v_lshlrev_b32 v{t}, 16, v{t}
                  v_add_f32 v{t}, v{t}, v{y}
                  v_add_f32 v{t+1}, v{t+1}, v{y+1}
                  v_cvt_pk_bf16_f32 v{FR+28+2*j+p}, v{t}, v{t+1}''')
        e(f'buffer_store_dwordx2 {vr(FR+28+2*j,2)}, v3, s[60:63], s11 offen offset:{32*j}')
    stamp_flush(1, 3)
    e('L_end2:\n s_endpgm')

k1()
k2()

HEAD = open(f'cdna_kernels/{NAME}.s.ref').read().split('; Override launch')[0]
HEAD += '''; @launch kernel=k1_kernel grid=(256,1,1) block=(512,1,1) lds=163840
; @launch kernel=k2_kernel grid=(256,1,1) block=(512,1,1) lds=98304
.amdgcn_target "amdgcn-amd-amdhsa--gfx950"
.text
.globl k1_kernel
.globl k2_kernel
.type k1_kernel,@function
.type k2_kernel,@function
.p2align 8
'''
def desc(n, vg):
    return f'''.p2align 6
.amdhsa_kernel {n}
  .amdhsa_next_free_vgpr {vg}
  .amdhsa_next_free_sgpr 102
  .amdhsa_accum_offset {vg}
  .amdhsa_group_segment_fixed_size 0
  .amdhsa_kernarg_size 112
  .amdhsa_user_sgpr_count 2
  .amdhsa_user_sgpr_kernarg_segment_ptr 1
  .amdhsa_system_sgpr_workgroup_id_x 1
.end_amdhsa_kernel
'''
TAIL = '.section .rodata,"a"\n' + desc('k1_kernel', 256) + desc('k2_kernel', 136)
open(OUT, 'w').write(HEAD + '\n'.join(L) + '\n' + TAIL)
print('wrote', OUT, len(L), 'lines')
```

```python
import sys, struct

NAME = 'gated_mix__ssm_conv_s4d__dense_activation_relu__prompt'
OUT = sys.argv[1] if len(sys.argv) > 1 else f'cdna_kernels/{NAME}.s'
OPT = dict(a.split('=') for a in sys.argv[2:])
STAMP = int(OPT.get('stamp', 0))

L = []
def e(s=''):
    for ln in s.split('\n'):
        ln = ln.strip()
        if not ln: continue
        L.append(ln if ln.endswith(':') else '    ' + ln)
def f2u(x): return struct.unpack('<I', struct.pack('<f', x))[0]
def vr(a, n): return f'v[{a}:{a+n-1}]'

WS_H = 0
H_BYTES = 128*54*1024
WS_Y = 0x800000
Y_BYTES = 640*4096
WS_G = 0xB00000
G_BYTES = 8192
WS_ST = 0xC00000
WS_W = 0x1000000
W_BYTES = 8*1728*160

def srd(d, lo, hi, nbytes, off=0):
    if off:
        e(f's_add_u32 s{d}, s{lo}, {hex(off)}')
        e(f's_addc_u32 s{d+1}, s{hi}, 0')
    else:
        e(f's_mov_b32 s{d}, s{lo}')
        e(f's_mov_b32 s{d+1}, s{hi}')
    e(f's_mov_b32 s{d+2}, {hex(nbytes)}')
    e(f's_mov_b32 s{d+3}, 0x00020000')

STV = {1: 255, 2: 135}
CUR = [1]
def stamp(k, slot):
    if STAMP:
        e('s_memrealtime s[80:81]\n s_waitcnt lgkmcnt(0)')
        if isinstance(slot, str):
            e(f's_add_u32 m0, {slot}, 16\n v_writelane_b32 v{STV[CUR[0]]}, s80, m0')
        else:
            e(f'v_writelane_b32 v{STV[CUR[0]]}, s80, {slot}')
def stamp_b():
    if STAMP: e('s_memrealtime s[82:83]')
def stamp_e(slot, base=16):
    if STAMP: e(f's_waitcnt lgkmcnt(0)\n s_add_u32 m0, {slot}, {base}\n v_writelane_b32 v{STV[CUR[0]]}, s82, m0')
def stamp_cyc(slot):
    if STAMP: e(f's_memtime s[80:81]\n s_waitcnt lgkmcnt(0)\n v_writelane_b32 v{STV[CUR[0]]}, s80, {slot}')
def stamp_flush(k, n):
    if not STAMP: return
    e('s_waitcnt lgkmcnt(0) vmcnt(0)')
    stamp(k, n)
    stamp_cyc(15)
    srd(72, 42, 43, 0x100000, WS_ST)
    e(f's_lshl_b32 s76, s2, 3\n s_add_u32 s76, s76, s3\n s_add_u32 s76, s76, {k*2048}\n s_lshl_b32 s76, s76, 8')
    e(f's_mov_b64 exec, -1\n v_lshlrev_b32 v1, 2, v0\n buffer_store_dword v{STV[CUR[0]]}, v1, s[72:75], s76 offen')

def prologue(k):
    CUR[0] = k
    if STAMP: e(f'v_mov_b32 v{STV[k]}, 0')
    stamp(k, 0)
    stamp_cyc(14)
    if STAMP: e('s_mov_b32 s82, 0')
    e('''s_cmp_ge_u32 s2, 256
         s_cbranch_scc1 L_end%d
         s_load_dwordx16 s[16:31], s[0:1], 0
         s_load_dwordx8 s[32:39], s[0:1], 64
         s_load_dwordx4 s[40:43], s[0:1], 96
         v_lshrrev_b32 v1, 6, v0''' % k)
    if k == 1 and int(OPT.get('cpf', 1)):
        e('''s_getpc_b64 s[6:7]
             L_pc:
             v_min_u32 v2, (L_code_end-L_pc)/128, v0
             v_lshlrev_b32 v2, 7, v2
             global_load_dword v254, v2, s[6:7]''')
    e('''v_and_b32 v0, 63, v0
         v_readfirstlane_b32 s3, v1
         s_and_b32 s4, s2, 7
         s_lshr_b32 s5, s2, 3''')

def k1():
    e('k1_kernel:')
    prologue(1)
    e('s_cmp_lt_u32 s5, 14\n s_cbranch_scc1 L_ssm')
    gemm1()
    ssm()
    e('L_end1:\n s_endpgm')

XR = 0; WR = 65536
def gemm1():
    e('''s_sub_u32 s6, s5, 14
         s_and_b32 s7, s4, 1
         s_mul_i32 s7, s7, 18
         s_add_u32 s6, s6, s7
         s_and_b32 s7, s6, 3
         s_lshr_b32 s6, s6, 2
         s_lshr_b32 s8, s4, 1
         s_lshl_b32 s8, s8, 2
         s_add_u32 s7, s7, s8
         s_cmp_lt_u32 s3, 4
         s_cbranch_scc1 L_g1c''')
    e('s_sub_u32 s9, s3, 4')
    e('''v_lshrrev_b32 v2, 3, v0
         v_mul_u32_u24 v2, 1280, v2
         v_and_b32 v3, 7, v0
         v_lshrrev_b32 v4, 4, v0
         v_xor_b32 v3, v3, v4
         v_lshl_add_u32 v10, v3, 4, v2
         v_xor_b32 v3, 4, v3
         v_lshl_add_u32 v11, v3, 4, v2
         v_add_u32 v11, %d, v11
         v_add_u32 v12, %d, v10
         v_add_u32 v13, %d, v11''' % (9216, 2*9216, 2*9216))
    for b in range(3):
        e(f'''v_add_u32 v2, {64*b}, v0
              v_mul_u32_u24 v3, 2731, v2
              v_lshrrev_b32 v3, 16, v3
              v_mul_u32_u24 v4, 24, v3
              v_sub_u32 v4, v2, v4
              v_bfe_u32 v5, v3, 1, 1
              v_lshlrev_b32 v5, 2, v5
              v_xor_b32 v4, v4, v5
              v_mul_u32_u24 v3, 3456, v3
              v_lshl_add_u32 v{14+b}, v4, 4, v3''')
        if b: e(f'v_subrev_u32 v{14+b}, {1024*b}, v{14+b}')
    e('''s_and_b32 s14, s7, 3
         s_mul_i32 s14, s14, 5
         s_add_u32 s14, s14, 1
         s_lshr_b32 s14, s14, 1
         s_lshl_b32 s12, s6, 1
         s_add_u32 s14, s14, s12
         s_lshr_b32 s12, s4, 1
         s_add_u32 s14, s14, s12
         s_and_b32 s12, s4, 1
         s_add_u32 s14, s14, s12
         s_mul_i32 s12, s14, 6554
         s_lshr_b32 s12, s12, 16
         s_mul_i32 s12, s12, 10
         s_sub_u32 s14, s14, s12''')
    if not int(OPT.get('rot1', 1)): e('s_mov_b32 s14, 0')
    e('''s_lshl_b32 s10, s7, 2
         s_add_u32 s10, s10, s9
         s_mul_i32 s10, s10, %d
         s_lshl_b32 s12, s14, 7
         s_add_u32 s10, s10, s12
         s_mul_i32 s11, s9, %d
         s_mul_i32 s12, s6, 384
         s_add_u32 s11, s11, s12
         s_mul_i32 s12, s14, %d
         s_add_u32 s11, s11, s12
         s_lshl_b32 s12, s9, 12
         s_mul_i32 s13, s9, 6144
         s_add_u32 s13, s13, %d
         s_waitcnt lgkmcnt(0)''' % (32*1280, 16*3456, 64*3456, WR))
    srd(44, 16, 17, 2048*1280)
    srd(48, 32, 33, 640*3456)
    e('s_mov_b32 s8, 0')
    e('L_g1l_loop:')
    e('''s_mov_b32 m0, s12
         s_add_u32 s15, s11, %d
         buffer_load_dwordx4 v10, s[44:47], s10 offen lds
         buffer_load_dwordx4 v11, s[44:47], s10 offen offset:1024 lds
         buffer_load_dwordx4 v12, s[44:47], s10 offen offset:2048 lds
         buffer_load_dwordx4 v13, s[44:47], s10 offen offset:3072 lds
         s_mov_b32 m0, s13
         s_add_u32 s10, s10, 128
         buffer_load_dwordx4 v14, s[48:51], s11 offen lds
         buffer_load_dwordx4 v15, s[48:51], s11 offen offset:1024 lds
         buffer_load_dwordx4 v16, s[48:51], s11 offen offset:2048 lds
         s_add_u32 m0, s13, 3072
         s_add_u32 s11, s11, %d
         buffer_load_dwordx4 v14, s[48:51], s15 offen lds
         buffer_load_dwordx4 v15, s[48:51], s15 offen offset:1024 lds
         buffer_load_dwordx4 v16, s[48:51], s15 offen offset:2048 lds
         s_add_u32 s12, s12, 16384
         s_and_b32 s12, s12, 0xffff
         s_add_u32 s13, s13, 24576
         s_cmp_ge_u32 s13, %d
         s_cselect_b32 s15, 98304, 0
         s_sub_u32 s13, s13, s15
         s_add_u32 s14, s14, 1
         s_cmp_eq_u32 s14, 10
         s_cselect_b32 s15, 1280, 0
         s_sub_u32 s10, s10, s15
         s_cmp_eq_u32 s14, 10
         s_cselect_b32 s15, %d, 0
         s_sub_u32 s11, s11, s15
         s_add_u32 s8, s8, 1
         s_cmp_lt_u32 s8, 2
         s_cbranch_scc1 L_g1l_loop''' % (8*3456, 64*3456, WR + 98304, 640*3456))
    stamp_e('s8', 14)
    e('s_waitcnt vmcnt(10)\n s_barrier')
    stamp_b()
    e('s_cmp_lt_u32 s8, 10\n s_cbranch_scc1 L_g1l_loop')
    stamp_e(9)
    srd(52, 36, 37, 1280)
    srd(56, 34, 35, 1728*1280)
    srd(60, 42, 43, G_BYTES, WS_G)
    e('''s_lshl_b32 s10, s7, 3
         s_add_u32 s10, s10, s6
         s_lshl_b32 s10, s10, 2
         s_add_u32 s10, s10, s9
         s_lshl_b32 s10, s10, 2
         v_lshrrev_b32 v2, 4, v0
         v_and_b32 v3, 15, v0
         v_lshlrev_b32 v3, 4, v3
         v_mul_u32_u24 v4, 1280, v2
         v_add_u32 v4, v4, v3
         s_mul_i32 s11, s10, 1280''')
    for n in range(5):
        e(f'buffer_load_dwordx4 {vr(20+4*n,4)}, v4, s[44:47], s11 offen offset:{256*n}')
    for n in range(5):
        e(f'buffer_load_dwordx4 {vr(40+4*n,4)}, v3, s[52:55], 0 offen offset:{256*n}')
    srd(64, 42, 43, W_BYTES, WS_W)
    e('''s_sub_u32 s12, s5, 14
         s_lshl_b32 s12, s12, 2
         s_add_u32 s12, s12, s9
         s_lshl_b32 s12, s12, 8
         s_and_b32 s13, s4, 1
         s_lshl_b32 s13, s13, 2
         s_lshr_b32 s14, s4, 1
         s_add_u32 s13, s13, s14
         s_mul_i32 s14, s13, 160
         s_mul_i32 s15, s13, %d
         s_mov_b32 s8, 52429
         v_add_u32 v17, s12, v0''' % (1728*160))
    for n in range(4):
        e(f'''v_add_u32 v5, {64*n}, v17
              v_mul_lo_u32 v6, v5, s8
              v_lshrrev_b32 v6, 19, v6
              v_mul_u32_u24 v7, 10, v6
              v_sub_u32 v7, v5, v7
              v_mul_u32_u24 v6, 1280, v6
              v_lshl_add_u32 v6, v7, 4, v6
              buffer_load_dwordx4 {vr(68+4*n,4)}, v6, s[56:59], s14 offen''')
    e('''v_lshlrev_b32 v17, 4, v17
         s_waitcnt vmcnt(14)
         s_barrier
         s_waitcnt vmcnt(0)''')
    for n in range(4):
        e(f'''s_cmp_lt_u32 s12, {17280 - 64*n}
              s_cselect_b32 s14, s15, 0x40000000
              buffer_store_dwordx4 {vr(68+4*n,4)}, v17, s[64:67], s14 offen offset:{1024*n} {OPT.get("wst", "").replace("+", " ")}''')
    e('v_mov_b32 v8, 0\n v_mov_b32 v9, 0\n s_mov_b32 s13, 0xffff0000')
    for n in range(20):
        e(f'''v_lshlrev_b32 v64, 16, v{20+n}
              v_and_b32 v65, s13, v{20+n}
              v_lshlrev_b32 v66, 16, v{40+n}
              v_and_b32 v67, s13, v{40+n}
              v_mul_f32 v64, v64, v66
              v_mul_f32 v65, v65, v67
              v_cvt_pk_bf16_f32 v64, v64, v65
              v_lshlrev_b32 v66, 16, v64
              v_and_b32 v67, s13, v64
              v_add_f32 v8, v8, v66
              v_add_f32 v9, v9, v67''')
    e('v_add_f32 v8, v8, v9\n s_nop 1')
    for sh in (8, 4, 2, 1):
        e(f'v_add_f32_dpp v8, v8, v8 row_ror:{sh} row_mask:0xf bank_mask:0xf\n s_nop 1')
    e('''v_cvt_pk_bf16_f32 v8, v8, v8
         v_lshlrev_b32 v8, 16, v8
         v_mul_f32 v8, 0xbfb8aa3b, v8
         v_exp_f32 v8, v8
         s_nop 0
         v_add_f32 v8, 1.0, v8
         v_rcp_f32 v8, v8
         s_nop 0
         v_cvt_pk_bf16_f32 v8, v8, v8
         v_lshlrev_b32 v8, 16, v8
         v_lshlrev_b32 v2, 2, v2
         s_lshl_b32 s10, s10, 2
         s_cmp_ge_u32 s6, 8
         s_cbranch_scc1 L_g1l_done
         buffer_store_dword v8, v2, s[60:63], s10 offen
         L_g1l_done:''')
    stamp_flush(0, 1)
    e('s_endpgm')

    e('L_g1c:')
    ACC = 0 + 16
    FR = 112
    XB = 2
    XA = 8
    e('''s_lshr_b32 s8, s3, 1
         s_and_b32 s9, s3, 1''')
    e('''v_and_b32 v14, 31, v0
         s_lshl_b32 s10, s8, 6
         v_add_u32 v15, s10, v14
         v_lshlrev_b32 v15, 7, v15
         v_bfe_u32 v14, v0, 1, 3
         v_lshrrev_b32 v1, 5, v0
         v_xor_b32 v14, v14, v1''')
    for ks in range(4):
        e(f'v_xor_b32 v1, {2*ks}, v14\n v_lshl_add_u32 v{XB+ks}, v1, 4, v15')
    e('''v_lshrrev_b32 v1, 5, v0
         v_lshlrev_b32 v1, 3, v1
         v_bfe_u32 v14, v0, 2, 2
         v_add_u32 v1, v1, v14
         v_mul_u32_u24 v1, 384, v1
         v_bfe_u32 v14, v0, 4, 1
         v_lshl_add_u32 v1, v14, 5, v1
         v_and_b32 v14, 3, v0
         v_lshl_add_u32 v1, v14, 3, v1
         s_mul_i32 s10, s9, 192
         s_add_u32 s10, s10, %d
         v_add_u32 v1, s10, v1
         v_bfe_u32 v14, v0, 3, 1
         v_lshlrev_b32 v14, 6, v14
         s_lshl_b32 s10, s9, 1
         s_sub_u32 s10, 1, s10
         v_mul_lo_u32 v14, v14, s10
         v_add_u32 v6, v1, v14
         v_sub_u32 v7, v1, v14''' % WR)
    for i in range(96): e(f'v_mov_b32 v{ACC+i}, 0')
    e('s_waitcnt lgkmcnt(0)')
    srd(52, 42, 43, H_BYTES, WS_H)
    e('s_mov_b32 s12, 0\n s_mov_b32 s13, 0\n s_mov_b32 s14, 0')
    def reads(ks, st):
        r = []
        base = FR + 20*st
        for ti in range(2):
            r.append(f'ds_read_b128 {vr(base+12+4*ti,4)}, v{XA+ks} offset:{4096*ti}')
        for fi in range(3):
            for half in range(2):
                r.append(f'ds_read_b64_tr_b16 {vr(base+4*fi+2*half,2)}, v{XA+4+(fi&1)} offset:{(16*ks+4*half)*384+64*fi}')
        return [r[0], r[2], r[3], r[1], r[4], r[5], r[6], r[7]]
    def mfmas(st):
        base = FR + 20*st
        m = []
        for fi in range(3):
            for ti in range(2):
                a = ACC + 16*(2*fi+ti)
                m.append(f'v_mfma_f32_32x32x16_bf16 {vr(a,16)}, {vr(base+4*fi,4)}, {vr(base+12+4*ti,4)}, {vr(a,16)}')
        return m
    def step(rd, mm):
        rd = list(rd)
        e('s_waitcnt lgkmcnt(8)')
        for i, m in enumerate(mm):
            e(m)
            for _ in range(2):
                if rd: e(rd.pop(0))
    for i in range(4): e(f'v_mov_b32 v{XA+i}, v{XB+i}')
    for i in range(2): e(f'v_mov_b32 v{XA+4+i}, v{XB+4+i}')
    e('s_barrier')
    for r in reads(0, 0) + reads(1, 1): e(r)
    e('s_branch L_g1c_mid')
    e('L_g1c_loop:')
    for i in range(4): e(f'v_add_u32 v{XA+i}, s12, v{XB+i}')
    for i in range(2): e(f'v_add_u32 v{XA+4+i}, s13, v{XB+4+i}')
    e('s_barrier')
    step(reads(0, 0), mfmas(2))
    step(reads(1, 1), mfmas(3))
    e('L_g1c_mid:')
    step(reads(2, 2), mfmas(0))
    e('''s_add_u32 s12, s12, 16384
         s_and_b32 s12, s12, 0xffff
         s_add_u32 s13, s13, 24576
         s_cmp_ge_u32 s13, 98304
         s_cselect_b32 s13, 0, s13
         s_add_u32 s14, s14, 1
         s_cmp_lt_u32 s14, 10''')
    step(reads(3, 3), mfmas(1))
    e('s_cbranch_scc1 L_g1c_loop')
    step([], mfmas(2))
    e('s_waitcnt lgkmcnt(0)')
    for m in mfmas(3): e(m)
    stamp(0, 1)
    e('''v_bfe_u32 v1, v0, 4, 1
         v_mul_u32_u24 v1, %d, v1
         v_lshrrev_b32 v14, 5, v0
         v_lshl_add_u32 v1, v14, 8, v1
         v_and_b32 v14, 15, v0
         v_lshl_add_u32 v1, v14, 4, v1
         s_lshl_b32 s10, s7, 1
         s_add_u32 s10, s10, s8
         s_mul_i32 s10, s10, %d
         s_mul_i32 s11, s6, 6
         s_mul_i32 s12, s9, 3
         s_add_u32 s11, s11, s12
         s_add_u32 s10, s10, s11
         s_lshl_b32 s10, s10, 10
         s_add_u32 s11, s10, %d
         s_nop 4''' % (54*1024, 4*54, 2*54*1024))
    k = 0
    for fi in range(3):
        for ti in range(2):
            a = ACC + 16*(2*fi+ti)
            for piece in range(2):
                d = FR + 4*(k % 8); k += 1
                for q in range(4):
                    e(f'v_cvt_pk_bf16_f32 v{d+q}, v{a+8*piece+2*q}, v{a+8*piece+2*q+1}')
                for q in range(4):
                    e(f'v_pk_max_i16 v{d+q}, v{d+q}, 0')
                e(f'buffer_store_dwordx4 {vr(d,4)}, v1, s[52:55], s{10+ti} offen offset:{1024*fi+512*piece} {OPT.get("hst", "").replace("+", " ")}')
    if int(OPT.get('wb', 0)): e('s_waitcnt vmcnt(0)\n buffer_wbl2 sc1')
    stamp_flush(0, 2)
    e('s_endpgm')

CHS = 12880; UO = 4164; RB = 8304; STG = 0; STGS = 8704; CB = 52224
def ssm():
    e('L_ssm:')
    e('''s_lshr_b32 s78, s4, 2
         s_add_u32 s78, s78, 8
         s_and_b32 s7, s4, 3
         s_mul_i32 s7, s7, 3
         s_add_u32 s7, s7, s5
         s_sub_u32 s7, s7, 11
         s_cmp_lt_u32 s5, 11
         s_cselect_b32 s77, s5, s7
         s_cselect_b32 s7, s4, s78
         s_mul_i32 s6, s77, 6
         s_min_u32 s6, s6, 58
         s_lshl_b32 s7, s7, 6
         s_add_u32 s6, s6, s7
         s_cmp_ge_u32 s3, 6
         s_cbranch_scc1 L_ssm_u
         s_cmp_eq_u32 s77, 11
         s_cbranch_scc1 L_end1
         s_add_u32 s7, s6, s3
         v_lshlrev_b32 v4, 2, v0
         v_mov_b32 v5, 0
         s_lshl_b32 s10, s7, 8
         s_lshl_b32 s11, s7, 1
         s_waitcnt lgkmcnt(0)''')
    srd(48, 18, 19, 163840); srd(64, 26, 27, 1280)
    e('''buffer_load_dword v6, v4, s[48:51], s10 offen
         buffer_load_ushort v10, v5, s[64:67], s11 offen''')
    srd(52, 20, 21, 163840); srd(56, 22, 23, 163840); srd(60, 24, 25, 163840); srd(44, 28, 29, 1280)
    e('''buffer_load_dword v7, v4, s[52:55], s10 offen
         buffer_load_dword v8, v4, s[56:59], s10 offen
         buffer_load_dword v9, v4, s[60:63], s10 offen
         buffer_load_ushort v11, v5, s[44:47], s11 offen
         s_barrier''')
    kgen()
    stamp(0, 1)
    e('s_branch L_ssm_conv')
    e('L_ssm_u:')
    U = 32
    e('''s_sub_u32 s8, s3, 6
         s_cmp_eq_u32 s8, 0
         s_cselect_b32 s9, s4, s78
         s_lshl_b32 s9, s9, 7
         s_mul_i32 s10, s5, 147
         s_mul_i32 s11, s10, 1280
         s_add_u32 s9, s9, s11
         v_mul_u32_u24 v2, 1280, v0
         v_mul_u32_u24 v3, 5120, v0
         s_lshr_b32 s10, s10, 8
         s_add_u32 s10, s10, s8
         s_waitcnt lgkmcnt(0)''')
    srd(44, 16, 17, 2048*1280)
    e('s_barrier')
    if int(OPT.get('upf', 1)):
        e('s_mov_b32 exec_hi, 0x1ffff')
        for n in range(3):
            e(f'buffer_load_dword v{4+n}, v2, s[44:47], s9 offen')
            if n < 2: e(f's_add_u32 s9, s9, {49*1280}')
        e('s_mov_b32 exec_hi, -1')
    e('s_cmp_eq_u32 s77, 11\n s_cbranch_scc1 L_end1')
    e('s_lshl_b32 s9, s6, 1')
    for n in range(4):
        g = U + 20*n
        e(f'''s_add_u32 s11, s10, {2*n}
              s_and_b32 s11, s11, 7
              s_lshl_b32 s{48+n}, s11, 9
              s_mul_i32 s11, s11, {256*1280}
              s_add_u32 s11, s11, s9''')
        for r in range(4):
            e(f'buffer_load_dwordx3 {vr(g+4*r,3)}, v3, s[44:47], s11 offen offset:{1280*r}')
        e(f'''s_sub_u32 s11, s11, 1280
              v_mov_b32 v{8+n}, s11
              s_mov_b64 exec, 1
              buffer_load_dwordx3 {vr(g+16,3)}, v{8+n}, s[44:47], 0 offen
              s_mov_b64 exec, -1''')
    e(f'''v_lshlrev_b32 v14, 3, v0
          v_add_u32 v14, {CB}, v14
          s_mov_b32 s12, 0x05040100
          s_mov_b32 s13, 0x07060302''')
    for n in range(4):
        g = U + 20*n
        e(f'''v_add_u32 v12, s{48+n}, v14
              v_add_u32 v13, {3*CHS}, v12
              s_waitcnt vmcnt({15-5*n})''')
        for c in range(3):
            e(f'v_mov_b32_dpp v{g+16+c}, v{g+12+c} wave_shr:1 row_mask:0xf bank_mask:0xf')
        for ch in range(6):
            c = ch >> 1; sel = 12 + (ch & 1); t = 16 + 4*(ch & 1)
            e(f'''v_perm_b32 v{t}, v{g+4+c}, v{g+c}, s{sel}
                  v_perm_b32 v{t+1}, v{g+12+c}, v{g+8+c}, s{sel}
                  v_perm_b32 v{t+2}, v{g+c}, v{g+16+c}, s{sel}
                  v_perm_b32 v{t+3}, v{g+8+c}, v{g+4+c}, s{sel}
                  ds_write_b64 v{12 + ch//3}, {vr(t,2)} offset:{(ch%3)*CHS+32}
                  ds_write_b64 v{12 + ch//3}, {vr(t+2,2)} offset:{(ch%3)*CHS+UO+28}''')
    stamp(0, 1)
    e('L_ssm_conv:')
    e(f'''s_and_b32 s8, s3, 3
          s_lshr_b32 s9, s3, 2
          s_mul_i32 s10, s9, {3*CHS}
          s_mov_b32 s11, 0
          s_mov_b32 s14, 0
          s_cmp_eq_u32 s8, 1
          s_cselect_b32 s11, {6*64}, s11
          s_cselect_b32 s14, {CHS - 8*64}, s14
          s_cmp_eq_u32 s8, 2
          s_cselect_b32 s11, {2*CHS}, s11
          s_cselect_b32 s14, {(-CHS + 2*64) & 0xffffffff}, s14
          s_cmp_eq_u32 s8, 3
          s_cselect_b32 s11, {2*CHS + 2*64}, s11
          s_add_u32 s10, s10, s11
          s_add_u32 s10, s10, {CB}''')
    e(f'''v_and_b32 v4, 15, v0
          v_lshrrev_b32 v5, 4, v0
          v_add_u32 v6, 1, v4
          v_and_b32 v7, 1, v6
          v_mul_u32_u24 v7, {UO}, v7
          v_lshrrev_b32 v6, 1, v6
          v_lshl_add_u32 v7, v6, 2, v7
          v_lshlrev_b32 v6, 4, v5
          v_sub_u32 v7, v7, v6
          v_add_u32 v7, 48, v7
          v_add_u32 v8, s10, v7
          v_add_u32 v9, 1024, v8
          v_add_u32 v10, 2048, v8
          v_add_u32 v11, 3072, v8
          v_lshlrev_b32 v7, 5, v4
          v_add_u32 v7, v7, v6
          v_sub_u32 v7, {RB+528}, v7
          v_add_u32 v12, s10, v7''')
    ACC = 32; F = 64
    for i in range(32): e(f'v_mov_b32 v{ACC+i}, 0')
    e('s_waitcnt lgkmcnt(0)\n s_barrier')
    stamp(0, 2)
    def reads(st):
        b = F + 64*st
        r = []
        for m in range(8):
            r.append(f'ds_read_b128 {vr(b+32+4*m,4)}, v12 offset:{(7-m)*512}')
            o = 128*(m & 1)
            r.append(f'ds_read2_b32 {vr(b+4*m,2)}, v{8+m//2} offset0:{o} offset1:{o+1}')
            r.append(f'ds_read2_b32 {vr(b+4*m+2,2)}, v{8+m//2} offset0:{o+2} offset1:{o+3}')
        return r
    def adv(src):
        return [f'v_add_u32 v{8+i}, {src}, v{8+i}' for i in range(5)]
    def mfmas(st):
        b = F + 64*st
        mm = []
        for m in range(8):
            for h in range(m, 8):
                mm.append(f'v_mfma_f32_16x16x32_bf16 {vr(ACC+4*h,4)}, {vr(b+4*m,4)}, {vr(b+32+4*(h-m),4)}, {vr(ACC+4*h,4)}')
        return mm
    def unit(st, other):
        other = list(other)
        for i, m in enumerate(mfmas(st)):
            e(m)
            if other: e(other.pop(0))
        assert not other
        e('s_waitcnt lgkmcnt(0)')
    for r in reads(0): e(r)
    e('s_mov_b32 s15, 0\n s_add_u32 s14, s14, 64\n s_waitcnt lgkmcnt(0)')
    e('L_conv_loop:')
    unit(0, adv(64) + reads(1))
    unit(1, adv('s14') + reads(0))
    stamp(0, 's15')
    e('''s_mov_b32 s14, 64
         s_add_u32 s15, s15, 1
         s_cmp_eq_u32 s15, 1
         s_cbranch_scc0 L_conv_nf
         s_sub_u32 s11, s8, 1
         s_cmp_lt_u32 s11, 2
         s_cbranch_scc0 L_conv_loop''')
    e(f'''s_mul_i32 s12, s9, 3
          s_lshl_b32 s11, s11, 1
          s_add_u32 s12, s12, s11
          s_mul_i32 s12, s12, {STGS}
          s_add_u32 s12, s12, {STG}
          v_lshlrev_b32 v13, 4, v0
          v_add_u32 v13, s12, v13
          s_nop 2''')
    for h in range(8): e(f'ds_write_b128 v13, {vr(ACC+4*h,4)} offset:{1024*h}')
    for i in range(32): e(f'v_mov_b32 v{ACC+i}, 0')
    e('''s_nop 1
         s_branch L_conv_loop
         L_conv_nf:
         s_cmp_lt_u32 s15, 3
         s_cbranch_scc1 L_conv_loop''')
    stamp(0, 3)
    e(f'''s_add_u32 s11, s8, 1
          s_lshr_b32 s11, s11, 1
          s_mul_i32 s12, s9, 3
          s_add_u32 s11, s11, s12
          s_mul_i32 s12, s11, {STGS}
          s_add_u32 s12, s12, {STG}
          v_lshlrev_b32 v13, 4, v0
          v_add_u32 v13, s12, v13
          s_cmp_eq_u32 s77, 10
          s_cselect_b32 s13, 2, 0
          s_cmp_lt_u32 s11, s13
          s_cselect_b32 s13, 0x40000, 0
          s_add_u32 s11, s11, s13
          s_add_u32 s11, s11, s6
          s_lshl_b32 s11, s11, 12
          v_lshlrev_b32 v14, 5, v4
          v_lshl_add_u32 v14, v5, 3, v14''')
    srd(48, 42, 43, Y_BYTES, WS_Y)
    e('s_cmp_eq_u32 s8, 1\n s_cbranch_scc0 L_fin_a')
    for h in range(4, 8): e(f'ds_write_b128 v13, {vr(ACC+4*h,4)} offset:{1024*h}')
    e('L_fin_a:\n s_cmp_eq_u32 s8, 2\n s_cbranch_scc0 L_fin_b')
    for h in range(0, 4): e(f'ds_write_b128 v13, {vr(ACC+4*h,4)} offset:{1024*h}')
    e('L_fin_b:\n s_waitcnt lgkmcnt(0)\n s_barrier')
    def fin(hs):
        for h in hs: e(f'ds_read_b128 {vr(F+4*h,4)}, v13 offset:{1024*h}')
        for n, h in enumerate(hs):
            e(f's_waitcnt lgkmcnt({len(hs)-1-n})')
            for r in range(4): e(f'v_add_f32 v{F+4*h+r}, v{F+4*h+r}, v{ACC+4*h+r}')
            e(f'v_cvt_pk_bf16_f32 v{F+4*h}, v{F+4*h}, v{F+4*h+1}')
            e(f'v_cvt_pk_bf16_f32 v{F+4*h+1}, v{F+4*h+2}, v{F+4*h+3}')
            e(f'buffer_store_dwordx2 {vr(F+4*h,2)}, v14, s[48:51], s11 offen offset:{512*h} {OPT.get("yst", "").replace("+", " ")}')
    e('s_cmp_eq_u32 s8, 2\n s_cbranch_scc1 L_fin_c')
    fin(range(0, 4))
    e('L_fin_c:\n s_cmp_eq_u32 s8, 1\n s_cbranch_scc1 L_fin_d')
    fin(range(4, 8))
    e('L_fin_d:')
    stamp_flush(0, 4)

def kgen():
    L2E = 1.4426950408889634
    l2e_hi = struct.unpack('<f', struct.pack('<f', L2E))[0]
    l2e_lo = L2E - l2e_hi
    e(f'''s_mul_i32 s12, s3, {CHS}
          s_add_u32 s12, s12, {CB}
          v_add_u32 v12, s12, v4
          v_mov_b32 v14, 0
          v_mov_b32 v15, 0
          v_lshl_add_u32 v13, v0, 2, v12
          s_mov_b64 exec, 0xff
          ds_write_b32 v12, v14
          ds_write_b32 v12, v14 offset:{UO-4}
          s_mov_b32 exec_lo, -1
          s_mov_b32 exec_hi, 0x0fffffff
          ds_write_b64 v13, v[14:15] offset:{RB+4096}
          s_mov_b64 exec, -1''')
    e(f'''s_mul_i32 s13, s3, {STGS}
          s_mov_b32 m0, s13
          v_and_b32 v18, 15, v0
          v_lshrrev_b32 v19, 4, v0
          v_mul_u32_u24 v17, 544, v18
          v_lshl_add_u32 v17, v19, 4, v17
          v_add_u32 v17, s13, v17
          v_mov_b32 v16, 0x3c00
          ds_write_addtid_b32 v16
          ds_write_addtid_b32 v16 offset:256''')
    e(f'''s_add_u32 s12, s12, {RB}
          v_lshlrev_b32 v12, 4, v18
          v_sub_u32 v12, s12, v12
          v_lshlrev_b32 v13, 9, v19
          v_sub_u32 v24, v12, v13
          v_add_u32 v24, {2040-256}, v24
          v_lshlrev_b32 v13, 8, v19
          v_sub_u32 v25, v12, v13
          v_add_u32 v25, 3060, v25
          v_lshrrev_b32 v13, 1, v19
          v_lshlrev_b32 v13, 8, v13
          v_sub_u32 v26, v12, v13
          v_and_b32 v13, 1, v19
          v_lshlrev_b32 v13, 3, v13
          v_sub_u32 v26, v26, v13
          s_mov_b32 s68, {hex(f2u(l2e_hi))}
          s_mov_b32 s69, {hex(f2u(l2e_lo))}
          s_mov_b32 s70, {hex(f2u(0.6931471805599453))}
          s_mov_b32 s71, 0xffff0000
          s_waitcnt vmcnt(4)''')
    stamp(0, 5)
    if STAMP: e('s_mov_b32 m0, s13')
    T = 28
    e('v_lshlrev_b32 v10, 16, v10\n v_lshlrev_b32 v20, 16, v6\n v_and_b32 v21, s71, v6')
    xs = [(10, T, T+1), (20, T+2, T+3), (21, T+4, T+5)]
    for fmt in ('v_mul_f32 v{t}, s68, v{x}', 'v_fma_f32 v{lo}, v{x}, s68, -v{t}', 'v_fma_f32 v{lo}, v{x}, s69, v{lo}',
                'v_exp_f32 v{t}, v{t}', 'v_mul_f32 v{lo}, s70, v{lo}', 'v_fma_f32 v{x}, v{t}, v{lo}, v{t}'):
        for x, t, lo in xs: e(fmt.format(x=x, t=t, lo=lo))
    e('''v_cvt_pk_bf16_f32 v10, v10, v10
         v_cvt_pk_bf16_f32 v20, v20, v21
         v_lshlrev_b32 v10, 16, v10
         v_and_b32 v21, s71, v20
         v_lshlrev_b32 v20, 16, v20
         v_mul_f32 v20, v20, v10
         v_mul_f32 v21, v21, v10
         v_mul_f32 v20, 0xbfb8aa3b, v20
         v_mul_f32 v21, 0xbfb8aa3b, v21
         s_waitcnt vmcnt(0)
         v_lshlrev_b32 v22, 16, v7
         v_and_b32 v23, s71, v7
         v_mul_f32 v22, v22, v10
         v_mul_f32 v23, v23, v10
         v_mul_f32 v22, 0.15915494, v22
         v_mul_f32 v23, 0.15915494, v23''')
    PA, PB, QA, QB = 44, 48, 52, 56
    MH = 60
    X = 84
    XK = 100
    XL = 116
    XM = 132
    YY = 100
    TT = 148
    BF = 152; AF = 184; D = 216
    ce = [(PA, 20, 22, 1, T), (PA+2, 21, 23, 1, T+4), (QA, 20, 22, 128.0, T+8), (QA+2, 21, 23, 128.0, T+12)]
    ce2 = []
    for dst, a, p, sc, t in ce:
        if sc != 1:
            e(f'v_mul_f32 v{t}, {hex(f2u(sc))}, v{a}\n v_mul_f32 v{t+1}, {hex(f2u(sc))}, v{p}')
            a, p = t, t+1
        ce2.append((dst, a, p, t))
    for fmt in ('v_rndne_f32 v{t2}, v{p}', 'v_exp_f32 v{t3}, v{a}', 'v_sub_f32 v{t2}, v{p}, v{t2}', 'v_cos_f32 v{d0}, v{t2}',
                'v_sin_f32 v{d1}, v{t2}', 'v_mul_f32 v{d0}, v{d0}, v{t3}', 'v_mul_f32 v{d1}, v{d1}, v{t3}'):
        for dst, a, p, t in ce2: e(fmt.format(t2=t+2, t3=t+3, p=p, a=a, d0=dst, d1=dst+1))
    norm = f'''v_and_b32 v28, 0x7fff7fff, v8
          v_and_b32 v29, 0x7fff7fff, v9
          v_pk_max_u16 v28, v28, v29
          v_lshlrev_b32 v29, 16, v28
          v_max_u32 v28, v28, v29
          NOP
          v_max_u32_dpp v28, v28, v28 row_ror:8 row_mask:0xf bank_mask:0xf
          NOP
          v_max_u32_dpp v28, v28, v28 row_ror:4 row_mask:0xf bank_mask:0xf
          NOP
          v_max_u32_dpp v28, v28, v28 row_ror:2 row_mask:0xf bank_mask:0xf
          NOP
          v_max_u32_dpp v28, v28, v28 row_ror:1 row_mask:0xf bank_mask:0xf
          NOP
          v_readlane_b32 s64, v28, 0
          v_readlane_b32 s65, v28, 16
          v_readlane_b32 s66, v28, 32
          v_readlane_b32 s67, v28, 48
          NOP
          s_max_u32 s64, s64, s65
          s_max_u32 s66, s66, s67
          s_max_u32 s64, s64, s66
          s_lshr_b32 s64, s64, 23
          s_max_u32 s64, s64, 1
          s_min_u32 s64, s64, 252
          s_sub_u32 s65, 254, s64
          s_lshl_b32 s65, s65, 23
          s_add_u32 s64, s64, 1
          s_lshl_b32 s64, s64, 23
          v_lshlrev_b32 v28, 16, v8
          v_lshlrev_b32 v29, 16, v9
          v_and_b32 v30, s71, v8
          v_and_b32 v31, s71, v9
          v_mul_f32 v28, s65, v28
          v_mul_f32 v29, s65, v29
          v_mul_f32 v30, s65, v30
          v_mul_f32 v31, s65, v31
          v_mul_f32 v10, s64, v10
          v_cvt_pk_f16_f32 v{X}, v28, -v29
          v_cvt_pk_f16_f32 v{X+1}, v30, -v31'''.split('NOP')
    def sq(dst, x):
        for k in range(2):
            e(f'v_pk_mul_f32 {vr(dst+2*k,2)}, {vr(x+2*k,2)}, {vr(x+2*k,2)} op_sel:[0,0] op_sel_hi:[1,0]')
        for k in range(2):
            e(f'v_pk_fma_f32 {vr(dst+2*k,2)}, {vr(x+2*k,2)}, {vr(x+2*k,2)}, {vr(dst+2*k,2)} op_sel:[1,1,0] op_sel_hi:[0,1,1] neg_lo:[0,1,0]')
    def cv(lg, x):
        e(f'v_cvt_pk_f16_f32 v{MH+2*lg}, v{x}, v{x+1}\n v_cvt_pk_f16_f32 v{MH+2*lg+1}, v{x+2}, v{x+3}')
    def M(k): return MH + 2*(k.bit_length()-1)
    def row(r, x):
        e(f'ds_write_addtid_b32 v{x} offset:{544*r}\n ds_write_addtid_b32 v{x+1} offset:{544*r+256}')
    p, pn, q, qn = PA, PB, QA, QB
    for i in range(7):
        e(norm[i])
        cv(i, p)
        if i >= 3: row(1 << (i-3), MH+2*i)
        if i < 5: cv(7+i, q)
        if i < 6: sq(pn, p); p, pn = pn, p
        if i < 4: sq(qn, q); q, qn = qn, q
    stamp(0, 6)
    if STAMP: e('s_mov_b32 m0, s13')
    def mulrows(items, conj):
        ng = 'neg_hi:[0,1,0]' if conj else 'neg_lo:[0,1,0]'
        for i in range(0, len(items), 2):
            grp = items[i:i+2]
            for r, dst, x, m in grp:
                for k in range(2): e(f'v_pk_mul_f16 v{dst+k}, v{x+k}, v{m+k} op_sel:[0,0] op_sel_hi:[1,0]')
            for r, dst, x, m in grp:
                for k in range(2): e(f'v_pk_fma_f16 v{dst+k}, v{x+k}, v{m+k}, v{dst+k} op_sel:[1,1,0] op_sel_hi:[0,1,1] {ng}')
            for r, dst, x, m in grp:
                if r is not None: row(r, dst)
    def rdfr(dst):
        for s_ in range(8): e(f'ds_read_b128 {vr(dst+4*s_,4)}, v17 offset:{64*s_}')
    def mm(d):
        for s_ in range(8):
            c = '0' if s_ == 0 else vr(d,4)
            e(f'v_mfma_f32_16x16x32_f16 {vr(d,4)}, {vr(AF+4*s_,4)}, {vr(BF+4*s_,4)}, {c}')
    Y = {1: M(8), 2: M(16), 4: M(32), 3: YY, 5: YY+2, 6: YY+4, 7: YY+6}
    mulrows([(3, Y[3], Y[1], M(16)), (5, Y[5], Y[1], M(32)), (6, Y[6], Y[2], M(32)), (7, Y[7], Y[3], M(32))], False)
    mulrows([(8+j, TT+2*(j&1), Y[j], M(64)) for j in range(1, 8)], False)
    rdfr(BF)
    row(0, X)
    mulrows([(1, X+2, X, M(1)), (2, X+4, X, M(2)), (3, X+6, X+2, M(2)), (4, X+8, X, M(4)),
             (5, X+10, X+2, M(4)), (6, X+12, X+4, M(4)), (7, X+14, X+6, M(4)), (8, XK, X, M(128))], True)
    mulrows([(8+a, XK+2*a, X+2*a, M(128)) for a in range(1, 8)], True)
    rdfr(AF)
    src = [X, X+4, X+8, X+12, XK, XK+4, XK+8, XK+12]
    it = [(n, XL+2*n, src[n], M(256)) for n in range(8)] + [(8, TT, X, M(2048))]
    mulrows(it[:4], True)
    e('s_waitcnt lgkmcnt(8)')
    mm(D)
    mulrows(it[4:], True)
    rdfr(AF)
    s2 = [X, X+8, XK, XK+8, XL, XL+4, XL+8, XL+12]
    it = [(4*(n >> 1) + (n & 1), XM+2*n, s2[n], M(512)) for n in range(8)]
    mulrows(it[:4], True)
    e('s_waitcnt lgkmcnt(8)')
    mm(D+4)
    mulrows(it[4:], True)
    s3 = [X, XK, XL, XL+8, XM, XM+4, XM+8, XM+12]
    mulrows([(4*(i >> 1) + 2 + (i & 1), TT+2*(i & 1), s3[i], M(1024)) for i in range(8)], True)
    rdfr(AF)
    B1 = D+4
    for i in range(8): e(f'v_mul_f32 v{D+i}, v{D+i}, v10')
    e(f'''v_lshlrev_b32 v11, 16, v11
          s_mov_b64 exec, 1
          v_add_f32 v{D}, v{D}, v11
          s_mov_b64 exec, -1
          s_waitcnt lgkmcnt(0)''')
    mm(D+8)
    e(f'''v_cvt_pk_bf16_f32 v28, v{B1+3}, v{B1+3}
          v_cvt_pk_bf16_f32 v29, v{B1+2}, v{B1+2}
          v_cvt_pk_bf16_f32 v30, v{B1+2}, v{B1+1}
          v_cvt_pk_bf16_f32 v31, v{B1}, v{B1}
          v_cvt_pk_bf16_f32 v32, v{D+3}, v{D+2}
          v_cvt_pk_bf16_f32 v33, v{D+1}, v{D}
          s_nop 1''')
    A = D+8
    e(f'''v_mul_f32 v{A+2}, v{A+2}, v10
          v_mul_f32 v{A+3}, v{A+3}, v10
          v_mul_f32 v{A}, v{A}, v10
          v_mul_f32 v{A+1}, v{A+1}, v10
          v_mov_b32_dpp v34, v{A+2} quad_perm:[0,0,2,2] row_mask:0xf bank_mask:0xf
          v_mov_b32_dpp v35, v{A+3} quad_perm:[0,0,2,2] row_mask:0xf bank_mask:0xf
          v_cvt_pk_bf16_f32 v36, v{A+2}, v{A+2}
          v_cvt_pk_bf16_f32 v37, v{A+2}, v34
          v_cvt_pk_bf16_f32 v38, v{A+3}, v{A+3}
          v_cvt_pk_bf16_f32 v39, v{A+3}, v35
          ds_write2_b32 v24, v36, v36 offset0:64 offset1:65
          ds_write2_b32 v24, v36, v37 offset0:66 offset1:67
          ds_write2_b32 v24, v38, v38 offset0:0 offset1:1
          ds_write2_b32 v24, v38, v39 offset0:2 offset1:3
          v_cvt_pk_bf16_f32 v40, v{A+1}, v{A+1}
          v_cvt_pk_bf16_f32 v41, v{A+1}, v{A}
          v_cvt_pk_bf16_f32 v42, v{A}, v{A}
          ds_write2_b32 v25, v40, v41 offset0:0 offset1:1
          ds_write2_b32 v25, v42, v42 offset0:2 offset1:3
          s_mov_b32 exec_lo, 0
          s_mov_b32 exec_hi, 1
          ds_write2_b32 v12, v31, v31 offset0:0 offset1:1
          s_mov_b32 exec_lo, -1
          s_mov_b32 exec_hi, 0
          ds_write_b16 v25, v28 offset:510
          ds_write2_b32 v25, v29, v30 offset0:128 offset1:129
          ds_write_b32 v25, v31 offset:520
          ds_write_b16 v25, v31 offset:524
          s_mov_b64 exec, -1
          ds_write_b64 v26, v[32:33] offset:4088''')

HR = 0; W2R = 32768; NS2 = 4
def k2():
    L.append('.p2align 8')
    e('k2_kernel:')
    prologue(2)
    e('''s_lshr_b32 s6, s4, 1
         s_lshl_b32 s6, s6, 5
         s_and_b32 s8, s5, 0xfc
         s_add_u32 s6, s6, s8
         s_and_b32 s7, s4, 1
         s_lshl_b32 s7, s7, 2
         s_and_b32 s8, s5, 3
         s_add_u32 s7, s7, s8
         s_mul_i32 s7, s7, 80
         s_cmp_lt_u32 s3, 4
         s_cbranch_scc1 L_g2c''')
    e('''s_sub_u32 s9, s3, 4
         v_lshlrev_b32 v10, 4, v0
         s_and_b32 s8, s4, 1
         s_mul_i32 s8, s8, %d
         s_add_u32 s10, s6, s9
         s_mul_i32 s10, s10, %d
         s_lshl_b32 s12, s8, 11
         s_add_u32 s10, s10, s12
         s_mul_i32 s13, s9, 3
         s_min_u32 s13, s13, 8
         s_lshl_b32 s13, s13, 10
         s_mul_i32 s11, s7, %d
         s_add_u32 s11, s11, s13
         s_mul_i32 s12, s8, 10240
         s_add_u32 s11, s11, s12
         s_add_u32 s11, s11, %d
         s_lshl_b32 s12, s9, 11
         s_add_u32 s13, s13, %d
         s_cmp_lt_u32 s9, 2
         s_cselect_b32 s15, 0, 0x40000000
         v_add_u32 v11, s15, v10
         s_mov_b32 s64, %d
         s_cselect_b32 s64, 2048, s64
         s_cselect_b32 s65, -1, 0
         s_waitcnt lgkmcnt(0)''' % (int(OPT.get('rot2', 14)), 54*1024, 2*1728, WS_W, W2R, W2R + NS2*10240))
    srd(44, 42, 43, WS_W + W_BYTES)
    e('s_mov_b32 s14, 0')
    e('L_g2l_loop:')
    e('''s_mov_b32 m0, s13
         s_and_b32 s15, s13, s65
         buffer_load_dwordx4 v10, s[44:47], s11 offen lds
         buffer_load_dwordx4 v10, s[44:47], s11 offen offset:1024 lds
         s_add_u32 m0, s15, s64
         s_add_u32 s15, s11, 2048
         buffer_load_dwordx4 v11, s[44:47], s15 offen lds
         s_mov_b32 m0, s12
         s_add_u32 s11, s11, 10240
         buffer_load_dwordx4 v10, s[44:47], s10 offen lds
         buffer_load_dwordx4 v10, s[44:47], s10 offen offset:1024 lds
         s_add_u32 s10, s10, 2048
         s_add_u32 s12, s12, 8192
         s_and_b32 s12, s12, %d
         s_add_u32 s13, s13, 10240
         s_cmp_ge_u32 s13, %d
         s_cselect_b32 s15, %d, 0
         s_sub_u32 s13, s13, s15
         s_add_u32 s8, s8, 1
         s_cmp_eq_u32 s8, 27
         s_cselect_b32 s15, %d, 0
         s_sub_u32 s10, s10, s15
         s_cmp_eq_u32 s8, 27
         s_cselect_b32 s15, %d, 0
         s_sub_u32 s11, s11, s15
         s_add_u32 s14, s14, 1
         s_cmp_lt_u32 s14, 3
         s_cbranch_scc1 L_g2l_loop''' % (NS2*8192-1, W2R + NS2*10240, NS2*10240, 54*1024, 1728*160))
    stamp_e('s14', 13)
    e('s_waitcnt vmcnt(10)\n s_barrier')
    stamp_b()
    e('''s_cmp_lt_u32 s14, 27
         s_cbranch_scc1 L_g2l_loop
         s_waitcnt vmcnt(5)
         s_barrier
         s_waitcnt vmcnt(0)
         s_barrier''')
    stamp_flush(1, 1)
    e('s_endpgm')
    e('L_g2c:')
    ACC = 16
    FR = 56
    Y = 112
    e('''v_and_b32 v14, 15, v0
         v_lshrrev_b32 v15, 4, v0
         s_add_u32 s8, s6, s3
         s_lshl_b32 s8, s8, 4
         s_and_b32 s9, s3, 1''')
    for n in range(20): e(f'v_mov_b32 v{Y+n}, 0')
    e('s_waitcnt lgkmcnt(0)')
    srd(44, 42, 43, Y_BYTES, WS_Y)
    srd(48, 42, 43, G_BYTES, WS_G)
    srd(60, 38, 39, 2048*1280)
    e('''v_lshlrev_b32 v2, 14, v15
         v_lshl_add_u32 v2, v14, 1, v2
         s_lshl_b32 s10, s7, 12
         s_lshl_b32 s11, s8, 1
         s_add_u32 s10, s10, s11
         v_lshlrev_b32 v5, 2, v14
         s_lshl_b32 s13, s8, 2
         buffer_load_dword v6, v5, s[48:51], s13 offen''')
    for n in range(20):
        e(f'buffer_load_short_d16_hi v{Y+n}, v2, s[44:47], s10 offen')
        if n < 19: e(f's_add_u32 s10, s10, {4096 if n % 4 != 3 else 13*4096}')
    e('''v_mul_u32_u24 v3, 1280, v14
         v_lshl_add_u32 v3, v15, 3, v3
         s_mul_i32 s11, s8, 1280
         s_lshl_b32 s12, s7, 1
         s_add_u32 s11, s11, s12''')
    e('''s_lshr_b32 s13, s3, 1
         s_lshl_b32 s13, s13, 12
         s_lshl_b32 s12, s9, 10
         s_add_u32 s13, s13, s12
         v_lshlrev_b32 v7, 4, v0
         v_add_u32 v8, s13, v7
         v_lshrrev_b32 v9, 5, v0
         v_mul_u32_u24 v9, 2560, v9
         v_bfe_u32 v1, v0, 2, 3
         v_mul_u32_u24 v1, 160, v1
         v_add_u32 v9, v9, v1
         v_and_b32 v1, 3, v0
         v_lshl_add_u32 v9, v1, 3, v9
         s_mul_i32 s12, s9, 5120
         s_add_u32 s12, s12, %d
         v_add_u32 v9, s12, v9''' % W2R)
    for i in range(40): e(f'v_mov_b32 v{ACC+i}, 0')
    def reads(slot, st):
        b = FR + 28*st
        r = [f'ds_read_b128 {vr(b+20,4)}, v8 offset:{8192*slot}']
        for j in range(5):
            for half in range(2):
                r.append(f'ds_read_b64_tr_b16 {vr(b+4*j+2*half,2)}, v9 offset:{10240*slot+1280*half+32*j}')
            if j == 0: r.append(f'ds_read_b128 {vr(b+24,4)}, v8 offset:{8192*slot+2048}')
        return r
    def mfmas(st):
        b = FR + 28*st
        return [f'v_mfma_f32_16x16x32_bf16 {vr(ACC+20*ti+4*j,4)}, {vr(b+4*j,4)}, {vr(b+20+4*ti,4)}, {vr(ACC+20*ti+4*j,4)}' for j in range(5) for ti in range(2)]
    def step(rd, mm):
        rd = list(rd)
        if int(OPT.get('k2nc', 0)): rd = []; mm = []
        e('s_barrier')
        for m in mm:
            for _ in range(2):
                if rd: e(rd.pop(0))
            e(m)
        for r in rd: e(r)
        e('s_waitcnt lgkmcnt(0)')
    stamp(1, 1)
    e('s_mov_b32 s15, 0\n s_mov_b32 s14, 0')
    step(reads(0, 0), [])
    e('L_g2c_loop:')
    step(reads(1, 1), mfmas(0))
    step(reads(2, 0), mfmas(1))
    e('s_add_u32 s15, s15, 1\n s_cmp_eq_u32 s15, 7\n s_cbranch_scc1 L_g2c_done')
    step(reads(3, 1), mfmas(0))
    step(reads(0, 0), mfmas(1))
    e('s_branch L_g2c_loop')
    e('L_g2c_done:')
    for m in mfmas(0): e(m)
    stamp(1, 2)
    e(f'''s_mul_i32 s12, s3, 5120
          s_add_u32 s12, s12, {W2R}
          v_add_u32 v8, s12, v7
          s_xor_b32 s12, s3, 1
          s_mul_i32 s12, s12, 5120
          s_add_u32 s12, s12, {W2R}
          v_add_u32 v9, s12, v7
          s_mov_b32 s13, 0xffff0000
          s_cmp_eq_u32 s9, 0
          s_cbranch_scc1 L_g2c_k0''')
    for j in range(5): e(f'ds_write_b128 v8, {vr(ACC+4*j,4)} offset:{1024*j}')
    for i in range(20): e(f'v_mov_b32 v{ACC+i}, v{ACC+20+i}')
    e('s_branch L_g2c_x\n L_g2c_k0:')
    for j in range(5): e(f'ds_write_b128 v8, {vr(ACC+20+4*j,4)} offset:{1024*j}')
    e('L_g2c_x:')
    e('s_waitcnt vmcnt(0)')
    for p in range(10):
        y = Y + 2*p
        e(f'''v_mul_f32 v{y}, v{y}, v6
              v_mul_f32 v{y+1}, v{y+1}, v6
              v_cvt_pk_bf16_f32 v{y}, v{y}, v{y+1}
              v_and_b32 v{y+1}, s13, v{y}
              v_lshlrev_b32 v{y}, 16, v{y}''')
        if p == 3:
            e('s_waitcnt lgkmcnt(0)\n s_barrier')
            for j in range(5): e(f'ds_read_b128 {vr(FR+4*j,4)}, v9 offset:{1024*j}')
    e('''v_sub_f32 v6, 1.0, v6
         v_cvt_pk_bf16_f32 v6, v6, v6
         v_lshlrev_b32 v6, 16, v6''')
    for j in range(5):
        e(f's_waitcnt lgkmcnt({4-j})')
        for p in range(2):
            a = ACC + 4*j + 2*p; y = Y + 4*j + 2*p; x = FR + 4*j + 2*p; t = FR + 20 + 2*p
            e(f'''v_add_f32 v{a}, v{a}, v{x}
                  v_add_f32 v{a+1}, v{a+1}, v{x+1}
                  v_cvt_pk_bf16_f32 v{t}, v{a}, v{a+1}
                  v_and_b32 v{t+1}, s13, v{t}
                  v_lshlrev_b32 v{t}, 16, v{t}
                  v_mul_f32 v{t}, v{t}, v6
                  v_mul_f32 v{t+1}, v{t+1}, v6
                  v_cvt_pk_bf16_f32 v{t}, v{t}, v{t+1}
                  v_and_b32 v{t+1}, s13, v{t}
                  v_lshlrev_b32 v{t}, 16, v{t}
                  v_add_f32 v{t}, v{t}, v{y}
                  v_add_f32 v{t+1}, v{t+1}, v{y+1}
                  v_cvt_pk_bf16_f32 v{FR+28+2*j+p}, v{t}, v{t+1}''')
        e(f'buffer_store_dwordx2 {vr(FR+28+2*j,2)}, v3, s[60:63], s11 offen offset:{32*j} {OPT.get("ost", "").replace("+", " ")}')
    stamp_flush(1, 3)
    e('L_end2:\n L_code_end:\n s_endpgm')

k1()
k2()

HEAD = open(f'cdna_kernels/{NAME}.s.ref').read().split('; Override launch')[0]
HEAD += '''; @launch kernel=k1_kernel grid=(256,1,1) block=(512,1,1) lds=163840
; @launch kernel=k2_kernel grid=(256,1,1) block=(512,1,1) lds=98304
.amdgcn_target "amdgcn-amd-amdhsa--gfx950"
.text
.globl k1_kernel
.globl k2_kernel
.type k1_kernel,@function
.type k2_kernel,@function
.p2align 8
'''
def desc(n, vg):
    return f'''.p2align 6
.amdhsa_kernel {n}
  .amdhsa_next_free_vgpr {vg}
  .amdhsa_next_free_sgpr 102
  .amdhsa_accum_offset {vg}
  .amdhsa_group_segment_fixed_size 0
  .amdhsa_kernarg_size 112
  .amdhsa_user_sgpr_count 2
  .amdhsa_user_sgpr_kernarg_segment_ptr 1
  .amdhsa_system_sgpr_workgroup_id_x 1
.end_amdhsa_kernel
'''
TAIL = '.section .rodata,"a"\n' + desc('k1_kernel', 256) + desc('k2_kernel', 136)
open(OUT, 'w').write(HEAD + '\n'.join(L) + '\n' + TAIL)
print('wrote', OUT, len(L), 'lines')
```

```python
import sys, struct

NAME = 'gated_mix__ssm_conv_s4d__dense_activation_relu__prompt'
OUT = sys.argv[1] if len(sys.argv) > 1 else f'cdna_kernels/{NAME}.s'
OPT = dict(a.split('=') for a in sys.argv[2:])
STAMP = int(OPT.get('stamp', 0))

L = []
def e(s=''):
    for ln in s.split('\n'):
        ln = ln.strip()
        if not ln: continue
        L.append(ln if ln.endswith(':') else '    ' + ln)
def f2u(x): return struct.unpack('<I', struct.pack('<f', x))[0]
def vr(a, n): return f'v[{a}:{a+n-1}]'

WS_H = 0
H_BYTES = 128*54*1024
WS_Y = 0x800000
Y_BYTES = 640*4096
WS_G = 0xB00000
G_BYTES = 8192
WS_ST = 0xC00000
WS_W = 0x1000000
W_BYTES = 8*1728*160

def srd(d, lo, hi, nbytes, off=0):
    if off:
        e(f's_add_u32 s{d}, s{lo}, {hex(off)}')
        e(f's_addc_u32 s{d+1}, s{hi}, 0')
    else:
        e(f's_mov_b32 s{d}, s{lo}')
        e(f's_mov_b32 s{d+1}, s{hi}')
    e(f's_mov_b32 s{d+2}, {hex(nbytes)}')
    e(f's_mov_b32 s{d+3}, 0x00020000')

STV = {1: 255, 2: 135}
CUR = [1]
def stamp(k, slot):
    if STAMP:
        e('s_memrealtime s[80:81]\n s_waitcnt lgkmcnt(0)')
        if isinstance(slot, str):
            e(f's_add_u32 m0, {slot}, 16\n v_writelane_b32 v{STV[CUR[0]]}, s80, m0')
        else:
            e(f'v_writelane_b32 v{STV[CUR[0]]}, s80, {slot}')
def stamp_b():
    if STAMP: e('s_memrealtime s[82:83]')
def stamp_e(slot, base=16):
    if STAMP: e(f's_waitcnt lgkmcnt(0)\n s_add_u32 m0, {slot}, {base}\n v_writelane_b32 v{STV[CUR[0]]}, s82, m0')
def stamp_cyc(slot):
    if STAMP: e(f's_memtime s[80:81]\n s_waitcnt lgkmcnt(0)\n v_writelane_b32 v{STV[CUR[0]]}, s80, {slot}')
def stamp_flush(k, n):
    if not STAMP: return
    e('s_waitcnt lgkmcnt(0) vmcnt(0)')
    stamp(k, n)
    stamp_cyc(15)
    srd(72, 42, 43, 0x100000, WS_ST)
    e(f's_lshl_b32 s76, s2, 3\n s_add_u32 s76, s76, s3\n s_add_u32 s76, s76, {k*2048}\n s_lshl_b32 s76, s76, 8')
    e(f's_mov_b64 exec, -1\n v_lshlrev_b32 v1, 2, v0\n buffer_store_dword v{STV[CUR[0]]}, v1, s[72:75], s76 offen')

def prologue(k):
    CUR[0] = k
    if STAMP: e(f'v_mov_b32 v{STV[k]}, 0')
    stamp(k, 0)
    stamp_cyc(14)
    if STAMP: e('s_mov_b32 s82, 0')
    e('''s_cmp_ge_u32 s2, 256
         s_cbranch_scc1 L_end%d
         s_load_dwordx16 s[16:31], s[0:1], 0
         s_load_dwordx8 s[32:39], s[0:1], 64
         s_load_dwordx4 s[40:43], s[0:1], 96
         v_lshrrev_b32 v1, 6, v0''' % k)
    if k == 1 and int(OPT.get('cpf', 1)):
        e('''s_getpc_b64 s[6:7]
             L_pc:
             v_min_u32 v2, (L_code_end-L_pc)/128, v0
             v_lshlrev_b32 v2, 7, v2
             global_load_dword v254, v2, s[6:7]''')
    e('''v_and_b32 v0, 63, v0
         v_readfirstlane_b32 s3, v1
         s_and_b32 s4, s2, 7
         s_lshr_b32 s5, s2, 3''')

def k1():
    e('k1_kernel:')
    prologue(1)
    e('s_cmp_lt_u32 s5, 14\n s_cbranch_scc1 L_ssm')
    gemm1()
    ssm()
    e('L_end1:\n s_endpgm')

def tlb_warm():
    g = int(OPT.get('tlb', 0))
    if not g: return
    srd(56, 42, 43, WS_W + W_BYTES)
    srd(60, 38, 39, 2048*1280)
    srd(64, 34, 35, 1728*1280)
    srd(68, 36, 37, 1280)
    if g >= 20:
        e(f'v_lshlrev_b32 v253, {g}, v0')
    else:
        n = int(OPT.get('tlbn', 8))
        e(f'''s_sub_u32 s10, s5, 14
              s_lshl_b32 s10, s10, 2
              s_add_u32 s10, s10, s3
              s_mul_i32 s10, s10, {n}
              v_min_u32 v253, {n-1}, v0
              v_add_u32 v253, s10, v253
              v_lshlrev_b32 v253, {g}, v253''')
    for r in (56, 60, 64, 68):
        e(f'buffer_load_dword v254, v253, s[{r}:{r+3}], 0 offen')

XR = 0; WR = 65536
def gemm1():
    e('''s_sub_u32 s6, s5, 14
         s_and_b32 s7, s4, 1
         s_mul_i32 s7, s7, 18
         s_add_u32 s6, s6, s7
         s_and_b32 s7, s6, 3
         s_lshr_b32 s6, s6, 2
         s_lshr_b32 s8, s4, 1
         s_lshl_b32 s8, s8, 2
         s_add_u32 s7, s7, s8
         s_cmp_lt_u32 s3, 4
         s_cbranch_scc1 L_g1c''')
    e('s_sub_u32 s9, s3, 4')
    e('''v_lshrrev_b32 v2, 3, v0
         v_mul_u32_u24 v2, 1280, v2
         v_and_b32 v3, 7, v0
         v_lshrrev_b32 v4, 4, v0
         v_xor_b32 v3, v3, v4
         v_lshl_add_u32 v10, v3, 4, v2
         v_xor_b32 v3, 4, v3
         v_lshl_add_u32 v11, v3, 4, v2
         v_add_u32 v11, %d, v11
         v_add_u32 v12, %d, v10
         v_add_u32 v13, %d, v11''' % (9216, 2*9216, 2*9216))
    for b in range(3):
        e(f'''v_add_u32 v2, {64*b}, v0
              v_mul_u32_u24 v3, 2731, v2
              v_lshrrev_b32 v3, 16, v3
              v_mul_u32_u24 v4, 24, v3
              v_sub_u32 v4, v2, v4
              v_bfe_u32 v5, v3, 1, 1
              v_lshlrev_b32 v5, 2, v5
              v_xor_b32 v4, v4, v5
              v_mul_u32_u24 v3, 3456, v3
              v_lshl_add_u32 v{14+b}, v4, 4, v3''')
        if b: e(f'v_subrev_u32 v{14+b}, {1024*b}, v{14+b}')
    e('''s_and_b32 s14, s7, 3
         s_mul_i32 s14, s14, 5
         s_add_u32 s14, s14, 1
         s_lshr_b32 s14, s14, 1
         s_lshl_b32 s12, s6, 1
         s_add_u32 s14, s14, s12
         s_lshr_b32 s12, s4, 1
         s_add_u32 s14, s14, s12
         s_and_b32 s12, s4, 1
         s_add_u32 s14, s14, s12
         s_mul_i32 s12, s14, 6554
         s_lshr_b32 s12, s12, 16
         s_mul_i32 s12, s12, 10
         s_sub_u32 s14, s14, s12''')
    if not int(OPT.get('rot1', 1)): e('s_mov_b32 s14, 0')
    e('''s_lshl_b32 s10, s7, 2
         s_add_u32 s10, s10, s9
         s_mul_i32 s10, s10, %d
         s_lshl_b32 s12, s14, 7
         s_add_u32 s10, s10, s12
         s_mul_i32 s11, s9, %d
         s_mul_i32 s12, s6, 384
         s_add_u32 s11, s11, s12
         s_mul_i32 s12, s14, %d
         s_add_u32 s11, s11, s12
         s_lshl_b32 s12, s9, 12
         s_mul_i32 s13, s9, 6144
         s_add_u32 s13, s13, %d
         s_waitcnt lgkmcnt(0)''' % (32*1280, 16*3456, 64*3456, WR))
    srd(44, 16, 17, 2048*1280)
    srd(48, 32, 33, 640*3456)
    e('s_mov_b32 s8, 0')
    e('L_g1l_loop:')
    e('''s_mov_b32 m0, s12
         s_add_u32 s15, s11, %d
         buffer_load_dwordx4 v10, s[44:47], s10 offen lds
         buffer_load_dwordx4 v11, s[44:47], s10 offen offset:1024 lds
         buffer_load_dwordx4 v12, s[44:47], s10 offen offset:2048 lds
         buffer_load_dwordx4 v13, s[44:47], s10 offen offset:3072 lds
         s_mov_b32 m0, s13
         s_add_u32 s10, s10, 128
         buffer_load_dwordx4 v14, s[48:51], s11 offen lds
         buffer_load_dwordx4 v15, s[48:51], s11 offen offset:1024 lds
         buffer_load_dwordx4 v16, s[48:51], s11 offen offset:2048 lds
         s_add_u32 m0, s13, 3072
         s_add_u32 s11, s11, %d
         buffer_load_dwordx4 v14, s[48:51], s15 offen lds
         buffer_load_dwordx4 v15, s[48:51], s15 offen offset:1024 lds
         buffer_load_dwordx4 v16, s[48:51], s15 offen offset:2048 lds
         s_add_u32 s12, s12, 16384
         s_and_b32 s12, s12, 0xffff
         s_add_u32 s13, s13, 24576
         s_cmp_ge_u32 s13, %d
         s_cselect_b32 s15, 98304, 0
         s_sub_u32 s13, s13, s15
         s_add_u32 s14, s14, 1
         s_cmp_eq_u32 s14, 10
         s_cselect_b32 s15, 1280, 0
         s_sub_u32 s10, s10, s15
         s_cmp_eq_u32 s14, 10
         s_cselect_b32 s15, %d, 0
         s_sub_u32 s11, s11, s15
         s_add_u32 s8, s8, 1
         s_cmp_lt_u32 s8, 2
         s_cbranch_scc1 L_g1l_loop''' % (8*3456, 64*3456, WR + 98304, 640*3456))
    stamp_e('s8', 14)
    e('s_waitcnt vmcnt(10)\n s_barrier')
    stamp_b()
    e('s_cmp_lt_u32 s8, 10\n s_cbranch_scc1 L_g1l_loop')
    stamp_e(9)
    srd(52, 36, 37, 1280)
    srd(56, 34, 35, 1728*1280)
    srd(60, 42, 43, G_BYTES, WS_G)
    e('''s_lshl_b32 s10, s7, 3
         s_add_u32 s10, s10, s6
         s_lshl_b32 s10, s10, 2
         s_add_u32 s10, s10, s9
         s_lshl_b32 s10, s10, 2
         v_lshrrev_b32 v2, 4, v0
         v_and_b32 v3, 15, v0
         v_lshlrev_b32 v3, 4, v3
         v_mul_u32_u24 v4, 1280, v2
         v_add_u32 v4, v4, v3
         s_mul_i32 s11, s10, 1280''')
    for n in range(5):
        e(f'buffer_load_dwordx4 {vr(20+4*n,4)}, v4, s[44:47], s11 offen offset:{256*n}')
    for n in range(5):
        e(f'buffer_load_dwordx4 {vr(40+4*n,4)}, v3, s[52:55], 0 offen offset:{256*n}')
    srd(64, 42, 43, W_BYTES, WS_W)
    e('''s_sub_u32 s12, s5, 14
         s_lshl_b32 s12, s12, 2
         s_add_u32 s12, s12, s9
         s_lshl_b32 s12, s12, 8
         s_and_b32 s13, s4, 1
         s_lshl_b32 s13, s13, 2
         s_lshr_b32 s14, s4, 1
         s_add_u32 s13, s13, s14
         s_mul_i32 s14, s13, 160
         s_mul_i32 s15, s13, %d
         s_mov_b32 s8, 52429
         v_add_u32 v17, s12, v0''' % (1728*160))
    for n in range(4):
        e(f'''v_add_u32 v5, {64*n}, v17
              v_mul_lo_u32 v6, v5, s8
              v_lshrrev_b32 v6, 19, v6
              v_mul_u32_u24 v7, 10, v6
              v_sub_u32 v7, v5, v7
              v_mul_u32_u24 v6, 1280, v6
              v_lshl_add_u32 v6, v7, 4, v6
              buffer_load_dwordx4 {vr(68+4*n,4)}, v6, s[56:59], s14 offen''')
    e('''v_lshlrev_b32 v17, 4, v17
         s_waitcnt vmcnt(14)
         s_barrier
         s_waitcnt vmcnt(0)''')
    for n in range(4):
        e(f'''s_cmp_lt_u32 s12, {17280 - 64*n}
              s_cselect_b32 s14, s15, 0x40000000
              buffer_store_dwordx4 {vr(68+4*n,4)}, v17, s[64:67], s14 offen offset:{1024*n} {OPT.get("wst", "").replace("+", " ")}''')
    e('v_mov_b32 v8, 0\n v_mov_b32 v9, 0\n s_mov_b32 s13, 0xffff0000')
    for n in range(20):
        e(f'''v_lshlrev_b32 v64, 16, v{20+n}
              v_and_b32 v65, s13, v{20+n}
              v_lshlrev_b32 v66, 16, v{40+n}
              v_and_b32 v67, s13, v{40+n}
              v_mul_f32 v64, v64, v66
              v_mul_f32 v65, v65, v67
              v_cvt_pk_bf16_f32 v64, v64, v65
              v_lshlrev_b32 v66, 16, v64
              v_and_b32 v67, s13, v64
              v_add_f32 v8, v8, v66
              v_add_f32 v9, v9, v67''')
    e('v_add_f32 v8, v8, v9\n s_nop 1')
    for sh in (8, 4, 2, 1):
        e(f'v_add_f32_dpp v8, v8, v8 row_ror:{sh} row_mask:0xf bank_mask:0xf\n s_nop 1')
    e('''v_cvt_pk_bf16_f32 v8, v8, v8
         v_lshlrev_b32 v8, 16, v8
         v_mul_f32 v8, 0xbfb8aa3b, v8
         v_exp_f32 v8, v8
         s_nop 0
         v_add_f32 v8, 1.0, v8
         v_rcp_f32 v8, v8
         s_nop 0
         v_cvt_pk_bf16_f32 v8, v8, v8
         v_lshlrev_b32 v8, 16, v8
         v_lshlrev_b32 v2, 2, v2
         s_lshl_b32 s10, s10, 2
         s_cmp_ge_u32 s6, 8
         s_cbranch_scc1 L_g1l_done
         buffer_store_dword v8, v2, s[60:63], s10 offen
         L_g1l_done:''')
    stamp_flush(0, 1)
    e('s_endpgm')

    e('L_g1c:')
    ACC = 0 + 16
    FR = 112
    XB = 2
    XA = 8
    e('''s_lshr_b32 s8, s3, 1
         s_and_b32 s9, s3, 1''')
    e('''v_and_b32 v14, 31, v0
         s_lshl_b32 s10, s8, 6
         v_add_u32 v15, s10, v14
         v_lshlrev_b32 v15, 7, v15
         v_bfe_u32 v14, v0, 1, 3
         v_lshrrev_b32 v1, 5, v0
         v_xor_b32 v14, v14, v1''')
    for ks in range(4):
        e(f'v_xor_b32 v1, {2*ks}, v14\n v_lshl_add_u32 v{XB+ks}, v1, 4, v15')
    e('''v_lshrrev_b32 v1, 5, v0
         v_lshlrev_b32 v1, 3, v1
         v_bfe_u32 v14, v0, 2, 2
         v_add_u32 v1, v1, v14
         v_mul_u32_u24 v1, 384, v1
         v_bfe_u32 v14, v0, 4, 1
         v_lshl_add_u32 v1, v14, 5, v1
         v_and_b32 v14, 3, v0
         v_lshl_add_u32 v1, v14, 3, v1
         s_mul_i32 s10, s9, 192
         s_add_u32 s10, s10, %d
         v_add_u32 v1, s10, v1
         v_bfe_u32 v14, v0, 3, 1
         v_lshlrev_b32 v14, 6, v14
         s_lshl_b32 s10, s9, 1
         s_sub_u32 s10, 1, s10
         v_mul_lo_u32 v14, v14, s10
         v_add_u32 v6, v1, v14
         v_sub_u32 v7, v1, v14''' % WR)
    for i in range(96): e(f'v_mov_b32 v{ACC+i}, 0')
    e('s_waitcnt lgkmcnt(0)')
    srd(52, 42, 43, H_BYTES, WS_H)
    tlb_warm()
    e('s_mov_b32 s12, 0\n s_mov_b32 s13, 0\n s_mov_b32 s14, 0')
    def reads(ks, st):
        r = []
        base = FR + 20*st
        for ti in range(2):
            r.append(f'ds_read_b128 {vr(base+12+4*ti,4)}, v{XA+ks} offset:{4096*ti}')
        for fi in range(3):
            for half in range(2):
                r.append(f'ds_read_b64_tr_b16 {vr(base+4*fi+2*half,2)}, v{XA+4+(fi&1)} offset:{(16*ks+4*half)*384+64*fi}')
        return [r[0], r[2], r[3], r[1], r[4], r[5], r[6], r[7]]
    def mfmas(st):
        base = FR + 20*st
        m = []
        for fi in range(3):
            for ti in range(2):
                a = ACC + 16*(2*fi+ti)
                m.append(f'v_mfma_f32_32x32x16_bf16 {vr(a,16)}, {vr(base+4*fi,4)}, {vr(base+12+4*ti,4)}, {vr(a,16)}')
        return m
    def step(rd, mm):
        rd = list(rd)
        e('s_waitcnt lgkmcnt(8)')
        for i, m in enumerate(mm):
            e(m)
            for _ in range(2):
                if rd: e(rd.pop(0))
    for i in range(4): e(f'v_mov_b32 v{XA+i}, v{XB+i}')
    for i in range(2): e(f'v_mov_b32 v{XA+4+i}, v{XB+4+i}')
    e('s_barrier')
    for r in reads(0, 0) + reads(1, 1): e(r)
    e('s_branch L_g1c_mid')
    e('L_g1c_loop:')
    for i in range(4): e(f'v_add_u32 v{XA+i}, s12, v{XB+i}')
    for i in range(2): e(f'v_add_u32 v{XA+4+i}, s13, v{XB+4+i}')
    e('s_barrier')
    step(reads(0, 0), mfmas(2))
    step(reads(1, 1), mfmas(3))
    e('L_g1c_mid:')
    step(reads(2, 2), mfmas(0))
    e('''s_add_u32 s12, s12, 16384
         s_and_b32 s12, s12, 0xffff
         s_add_u32 s13, s13, 24576
         s_cmp_ge_u32 s13, 98304
         s_cselect_b32 s13, 0, s13
         s_add_u32 s14, s14, 1
         s_cmp_lt_u32 s14, 10''')
    step(reads(3, 3), mfmas(1))
    e('s_cbranch_scc1 L_g1c_loop')
    step([], mfmas(2))
    e('s_waitcnt lgkmcnt(0)')
    for m in mfmas(3): e(m)
    stamp(0, 1)
    e('''v_bfe_u32 v1, v0, 4, 1
         v_mul_u32_u24 v1, %d, v1
         v_lshrrev_b32 v14, 5, v0
         v_lshl_add_u32 v1, v14, 8, v1
         v_and_b32 v14, 15, v0
         v_lshl_add_u32 v1, v14, 4, v1
         s_lshl_b32 s10, s7, 1
         s_add_u32 s10, s10, s8
         s_mul_i32 s10, s10, %d
         s_mul_i32 s11, s6, 6
         s_mul_i32 s12, s9, 3
         s_add_u32 s11, s11, s12
         s_add_u32 s10, s10, s11
         s_lshl_b32 s10, s10, 10
         s_add_u32 s11, s10, %d
         s_nop 4''' % (54*1024, 4*54, 2*54*1024))
    k = 0
    for fi in range(3):
        for ti in range(2):
            a = ACC + 16*(2*fi+ti)
            for piece in range(2):
                d = FR + 4*(k % 8); k += 1
                for q in range(4):
                    e(f'v_cvt_pk_bf16_f32 v{d+q}, v{a+8*piece+2*q}, v{a+8*piece+2*q+1}')
                for q in range(4):
                    e(f'v_pk_max_i16 v{d+q}, v{d+q}, 0')
                e(f'buffer_store_dwordx4 {vr(d,4)}, v1, s[52:55], s{10+ti} offen offset:{1024*fi+512*piece} {OPT.get("hst", "").replace("+", " ")}')
    if int(OPT.get('wb', 0)): e('s_waitcnt vmcnt(0)\n buffer_wbl2 sc1')
    stamp_flush(0, 2)
    e('s_endpgm')

CHS = 12880; UO = 4164; RB = 8304; STG = 0; STGS = 8704; CB = 52224
def ssm():
    e('L_ssm:')
    e('''s_lshr_b32 s78, s4, 2
         s_add_u32 s78, s78, 8
         s_and_b32 s7, s4, 3
         s_mul_i32 s7, s7, 3
         s_add_u32 s7, s7, s5
         s_sub_u32 s7, s7, 11
         s_cmp_lt_u32 s5, 11
         s_cselect_b32 s77, s5, s7
         s_cselect_b32 s7, s4, s78
         s_mul_i32 s6, s77, 6
         s_min_u32 s6, s6, 58
         s_lshl_b32 s7, s7, 6
         s_add_u32 s6, s6, s7
         s_cmp_ge_u32 s3, 6
         s_cbranch_scc1 L_ssm_u
         s_cmp_eq_u32 s77, 11
         s_cbranch_scc1 L_end1
         s_add_u32 s7, s6, s3
         v_lshlrev_b32 v4, 2, v0
         v_mov_b32 v5, 0
         s_lshl_b32 s10, s7, 8
         s_lshl_b32 s11, s7, 1
         s_waitcnt lgkmcnt(0)''')
    srd(48, 18, 19, 163840); srd(64, 26, 27, 1280)
    e('''buffer_load_dword v6, v4, s[48:51], s10 offen
         buffer_load_ushort v10, v5, s[64:67], s11 offen''')
    srd(52, 20, 21, 163840); srd(56, 22, 23, 163840); srd(60, 24, 25, 163840); srd(44, 28, 29, 1280)
    e('''buffer_load_dword v7, v4, s[52:55], s10 offen
         buffer_load_dword v8, v4, s[56:59], s10 offen
         buffer_load_dword v9, v4, s[60:63], s10 offen
         buffer_load_ushort v11, v5, s[44:47], s11 offen
         s_barrier''')
    kgen()
    stamp(0, 1)
    e('s_branch L_ssm_conv')
    e('L_ssm_u:')
    U = 32
    e('''s_sub_u32 s8, s3, 6
         s_cmp_eq_u32 s8, 0
         s_cselect_b32 s9, s4, s78
         s_lshl_b32 s9, s9, 7
         s_mul_i32 s10, s5, 147
         s_mul_i32 s11, s10, 1280
         s_add_u32 s9, s9, s11
         v_mul_u32_u24 v2, 1280, v0
         v_mul_u32_u24 v3, 5120, v0
         s_lshr_b32 s10, s10, 8
         s_add_u32 s10, s10, s8
         s_waitcnt lgkmcnt(0)''')
    srd(44, 16, 17, 2048*1280)
    e('s_barrier')
    if int(OPT.get('upf', 1)):
        e('s_mov_b32 exec_hi, 0x1ffff')
        for n in range(3):
            e(f'buffer_load_dword v{4+n}, v2, s[44:47], s9 offen')
            if n < 2: e(f's_add_u32 s9, s9, {49*1280}')
        e('s_mov_b32 exec_hi, -1')
    e('s_cmp_eq_u32 s77, 11\n s_cbranch_scc1 L_end1')
    e('s_lshl_b32 s9, s6, 1')
    for n in range(4):
        g = U + 20*n
        e(f'''s_add_u32 s11, s10, {2*n}
              s_and_b32 s11, s11, 7
              s_lshl_b32 s{48+n}, s11, 9
              s_mul_i32 s11, s11, {256*1280}
              s_add_u32 s11, s11, s9''')
        for r in range(4):
            e(f'buffer_load_dwordx3 {vr(g+4*r,3)}, v3, s[44:47], s11 offen offset:{1280*r}')
        e(f'''s_sub_u32 s11, s11, 1280
              v_mov_b32 v{8+n}, s11
              s_mov_b64 exec, 1
              buffer_load_dwordx3 {vr(g+16,3)}, v{8+n}, s[44:47], 0 offen
              s_mov_b64 exec, -1''')
    e(f'''v_lshlrev_b32 v14, 3, v0
          v_add_u32 v14, {CB}, v14
          s_mov_b32 s12, 0x05040100
          s_mov_b32 s13, 0x07060302''')
    for n in range(4):
        g = U + 20*n
        e(f'''v_add_u32 v12, s{48+n}, v14
              v_add_u32 v13, {3*CHS}, v12
              s_waitcnt vmcnt({15-5*n})''')
        for c in range(3):
            e(f'v_mov_b32_dpp v{g+16+c}, v{g+12+c} wave_shr:1 row_mask:0xf bank_mask:0xf')
        for ch in range(6):
            c = ch >> 1; sel = 12 + (ch & 1); t = 16 + 4*(ch & 1)
            e(f'''v_perm_b32 v{t}, v{g+4+c}, v{g+c}, s{sel}
                  v_perm_b32 v{t+1}, v{g+12+c}, v{g+8+c}, s{sel}
                  v_perm_b32 v{t+2}, v{g+c}, v{g+16+c}, s{sel}
                  v_perm_b32 v{t+3}, v{g+8+c}, v{g+4+c}, s{sel}
                  ds_write_b64 v{12 + ch//3}, {vr(t,2)} offset:{(ch%3)*CHS+32}
                  ds_write_b64 v{12 + ch//3}, {vr(t+2,2)} offset:{(ch%3)*CHS+UO+28}''')
    stamp(0, 1)
    e('L_ssm_conv:')
    e(f'''s_and_b32 s8, s3, 3
          s_lshr_b32 s9, s3, 2
          s_mul_i32 s10, s9, {3*CHS}
          s_mov_b32 s11, 0
          s_mov_b32 s14, 0
          s_cmp_eq_u32 s8, 1
          s_cselect_b32 s11, {6*64}, s11
          s_cselect_b32 s14, {CHS - 8*64}, s14
          s_cmp_eq_u32 s8, 2
          s_cselect_b32 s11, {2*CHS}, s11
          s_cselect_b32 s14, {(-CHS + 2*64) & 0xffffffff}, s14
          s_cmp_eq_u32 s8, 3
          s_cselect_b32 s11, {2*CHS + 2*64}, s11
          s_add_u32 s10, s10, s11
          s_add_u32 s10, s10, {CB}''')
    e(f'''v_and_b32 v4, 15, v0
          v_lshrrev_b32 v5, 4, v0
          v_add_u32 v6, 1, v4
          v_and_b32 v7, 1, v6
          v_mul_u32_u24 v7, {UO}, v7
          v_lshrrev_b32 v6, 1, v6
          v_lshl_add_u32 v7, v6, 2, v7
          v_lshlrev_b32 v6, 4, v5
          v_sub_u32 v7, v7, v6
          v_add_u32 v7, 48, v7
          v_add_u32 v8, s10, v7
          v_add_u32 v9, 1024, v8
          v_add_u32 v10, 2048, v8
          v_add_u32 v11, 3072, v8
          v_lshlrev_b32 v7, 5, v4
          v_add_u32 v7, v7, v6
          v_sub_u32 v7, {RB+528}, v7
          v_add_u32 v12, s10, v7''')
    ACC = 32; F = 64
    for i in range(32): e(f'v_mov_b32 v{ACC+i}, 0')
    e('s_waitcnt lgkmcnt(0)\n s_barrier')
    stamp(0, 2)
    def reads(st):
        b = F + 64*st
        r = []
        for m in range(8):
            r.append(f'ds_read_b128 {vr(b+32+4*m,4)}, v12 offset:{(7-m)*512}')
            o = 128*(m & 1)
            r.append(f'ds_read2_b32 {vr(b+4*m,2)}, v{8+m//2} offset0:{o} offset1:{o+1}')
            r.append(f'ds_read2_b32 {vr(b+4*m+2,2)}, v{8+m//2} offset0:{o+2} offset1:{o+3}')
        return r
    def adv(src):
        return [f'v_add_u32 v{8+i}, {src}, v{8+i}' for i in range(5)]
    def mfmas(st):
        b = F + 64*st
        mm = []
        for m in range(8):
            for h in range(m, 8):
                mm.append(f'v_mfma_f32_16x16x32_bf16 {vr(ACC+4*h,4)}, {vr(b+4*m,4)}, {vr(b+32+4*(h-m),4)}, {vr(ACC+4*h,4)}')
        return mm
    def unit(st, other):
        other = list(other)
        for i, m in enumerate(mfmas(st)):
            e(m)
            if other: e(other.pop(0))
        assert not other
        e('s_waitcnt lgkmcnt(0)')
    for r in reads(0): e(r)
    e('s_mov_b32 s15, 0\n s_add_u32 s14, s14, 64\n s_waitcnt lgkmcnt(0)')
    e('L_conv_loop:')
    unit(0, adv(64) + reads(1))
    unit(1, adv('s14') + reads(0))
    stamp(0, 's15')
    e('''s_mov_b32 s14, 64
         s_add_u32 s15, s15, 1
         s_cmp_eq_u32 s15, 1
         s_cbranch_scc0 L_conv_nf
         s_sub_u32 s11, s8, 1
         s_cmp_lt_u32 s11, 2
         s_cbranch_scc0 L_conv_loop''')
    e(f'''s_mul_i32 s12, s9, 3
          s_lshl_b32 s11, s11, 1
          s_add_u32 s12, s12, s11
          s_mul_i32 s12, s12, {STGS}
          s_add_u32 s12, s12, {STG}
          v_lshlrev_b32 v13, 4, v0
          v_add_u32 v13, s12, v13
          s_nop 2''')
    for h in range(8): e(f'ds_write_b128 v13, {vr(ACC+4*h,4)} offset:{1024*h}')
    for i in range(32): e(f'v_mov_b32 v{ACC+i}, 0')
    e('''s_nop 1
         s_branch L_conv_loop
         L_conv_nf:
         s_cmp_lt_u32 s15, 3
         s_cbranch_scc1 L_conv_loop''')
    stamp(0, 3)
    e(f'''s_add_u32 s11, s8, 1
          s_lshr_b32 s11, s11, 1
          s_mul_i32 s12, s9, 3
          s_add_u32 s11, s11, s12
          s_mul_i32 s12, s11, {STGS}
          s_add_u32 s12, s12, {STG}
          v_lshlrev_b32 v13, 4, v0
          v_add_u32 v13, s12, v13
          s_cmp_eq_u32 s77, 10
          s_cselect_b32 s13, 2, 0
          s_cmp_lt_u32 s11, s13
          s_cselect_b32 s13, 0x40000, 0
          s_add_u32 s11, s11, s13
          s_add_u32 s11, s11, s6
          s_lshl_b32 s11, s11, 12
          v_lshlrev_b32 v14, 5, v4
          v_lshl_add_u32 v14, v5, 3, v14''')
    srd(48, 42, 43, Y_BYTES, WS_Y)
    e('s_cmp_eq_u32 s8, 1\n s_cbranch_scc0 L_fin_a')
    for h in range(4, 8): e(f'ds_write_b128 v13, {vr(ACC+4*h,4)} offset:{1024*h}')
    e('L_fin_a:\n s_cmp_eq_u32 s8, 2\n s_cbranch_scc0 L_fin_b')
    for h in range(0, 4): e(f'ds_write_b128 v13, {vr(ACC+4*h,4)} offset:{1024*h}')
    e('L_fin_b:\n s_waitcnt lgkmcnt(0)\n s_barrier')
    def fin(hs):
        for h in hs: e(f'ds_read_b128 {vr(F+4*h,4)}, v13 offset:{1024*h}')
        for n, h in enumerate(hs):
            e(f's_waitcnt lgkmcnt({len(hs)-1-n})')
            for r in range(4): e(f'v_add_f32 v{F+4*h+r}, v{F+4*h+r}, v{ACC+4*h+r}')
            e(f'v_cvt_pk_bf16_f32 v{F+4*h}, v{F+4*h}, v{F+4*h+1}')
            e(f'v_cvt_pk_bf16_f32 v{F+4*h+1}, v{F+4*h+2}, v{F+4*h+3}')
            e(f'buffer_store_dwordx2 {vr(F+4*h,2)}, v14, s[48:51], s11 offen offset:{512*h} {OPT.get("yst", "").replace("+", " ")}')
    e('s_cmp_eq_u32 s8, 2\n s_cbranch_scc1 L_fin_c')
    fin(range(0, 4))
    e('L_fin_c:\n s_cmp_eq_u32 s8, 1\n s_cbranch_scc1 L_fin_d')
    fin(range(4, 8))
    e('L_fin_d:')
    stamp_flush(0, 4)

def kgen():
    L2E = 1.4426950408889634
    l2e_hi = struct.unpack('<f', struct.pack('<f', L2E))[0]
    l2e_lo = L2E - l2e_hi
    e(f'''s_mul_i32 s12, s3, {CHS}
          s_add_u32 s12, s12, {CB}
          v_add_u32 v12, s12, v4
          v_mov_b32 v14, 0
          v_mov_b32 v15, 0
          v_lshl_add_u32 v13, v0, 2, v12
          s_mov_b64 exec, 0xff
          ds_write_b32 v12, v14
          ds_write_b32 v12, v14 offset:{UO-4}
          s_mov_b32 exec_lo, -1
          s_mov_b32 exec_hi, 0x0fffffff
          ds_write_b64 v13, v[14:15] offset:{RB+4096}
          s_mov_b64 exec, -1''')
    e(f'''s_mul_i32 s13, s3, {STGS}
          s_mov_b32 m0, s13
          v_and_b32 v18, 15, v0
          v_lshrrev_b32 v19, 4, v0
          v_mul_u32_u24 v17, 544, v18
          v_lshl_add_u32 v17, v19, 4, v17
          v_add_u32 v17, s13, v17
          v_mov_b32 v16, 0x3c00
          ds_write_addtid_b32 v16
          ds_write_addtid_b32 v16 offset:256''')
    e(f'''s_add_u32 s12, s12, {RB}
          v_lshlrev_b32 v12, 4, v18
          v_sub_u32 v12, s12, v12
          v_lshlrev_b32 v13, 9, v19
          v_sub_u32 v24, v12, v13
          v_add_u32 v24, {2040-256}, v24
          v_lshlrev_b32 v13, 8, v19
          v_sub_u32 v25, v12, v13
          v_add_u32 v25, 3060, v25
          v_lshrrev_b32 v13, 1, v19
          v_lshlrev_b32 v13, 8, v13
          v_sub_u32 v26, v12, v13
          v_and_b32 v13, 1, v19
          v_lshlrev_b32 v13, 3, v13
          v_sub_u32 v26, v26, v13
          s_mov_b32 s68, {hex(f2u(l2e_hi))}
          s_mov_b32 s69, {hex(f2u(l2e_lo))}
          s_mov_b32 s70, {hex(f2u(0.6931471805599453))}
          s_mov_b32 s71, 0xffff0000
          s_waitcnt vmcnt(4)''')
    stamp(0, 5)
    if STAMP: e('s_mov_b32 m0, s13')
    T = 28
    e('v_lshlrev_b32 v10, 16, v10\n v_lshlrev_b32 v20, 16, v6\n v_and_b32 v21, s71, v6')
    xs = [(10, T, T+1), (20, T+2, T+3), (21, T+4, T+5)]
    for fmt in ('v_mul_f32 v{t}, s68, v{x}', 'v_fma_f32 v{lo}, v{x}, s68, -v{t}', 'v_fma_f32 v{lo}, v{x}, s69, v{lo}',
                'v_exp_f32 v{t}, v{t}', 'v_mul_f32 v{lo}, s70, v{lo}', 'v_fma_f32 v{x}, v{t}, v{lo}, v{t}'):
        for x, t, lo in xs: e(fmt.format(x=x, t=t, lo=lo))
    e('''v_cvt_pk_bf16_f32 v10, v10, v10
         v_cvt_pk_bf16_f32 v20, v20, v21
         v_lshlrev_b32 v10, 16, v10
         v_and_b32 v21, s71, v20
         v_lshlrev_b32 v20, 16, v20
         v_mul_f32 v20, v20, v10
         v_mul_f32 v21, v21, v10
         v_mul_f32 v20, 0xbfb8aa3b, v20
         v_mul_f32 v21, 0xbfb8aa3b, v21
         s_waitcnt vmcnt(0)
         v_lshlrev_b32 v22, 16, v7
         v_and_b32 v23, s71, v7
         v_mul_f32 v22, v22, v10
         v_mul_f32 v23, v23, v10
         v_mul_f32 v22, 0.15915494, v22
         v_mul_f32 v23, 0.15915494, v23''')
    PA, PB, QA, QB = 44, 48, 52, 56
    MH = 60
    X = 84
    XK = 100
    XL = 116
    XM = 132
    YY = 100
    TT = 148
    BF = 152; AF = 184; D = 216
    ce = [(PA, 20, 22, 1, T), (PA+2, 21, 23, 1, T+4), (QA, 20, 22, 128.0, T+8), (QA+2, 21, 23, 128.0, T+12)]
    ce2 = []
    for dst, a, p, sc, t in ce:
        if sc != 1:
            e(f'v_mul_f32 v{t}, {hex(f2u(sc))}, v{a}\n v_mul_f32 v{t+1}, {hex(f2u(sc))}, v{p}')
            a, p = t, t+1
        ce2.append((dst, a, p, t))
    for fmt in ('v_rndne_f32 v{t2}, v{p}', 'v_exp_f32 v{t3}, v{a}', 'v_sub_f32 v{t2}, v{p}, v{t2}', 'v_cos_f32 v{d0}, v{t2}',
                'v_sin_f32 v{d1}, v{t2}', 'v_mul_f32 v{d0}, v{d0}, v{t3}', 'v_mul_f32 v{d1}, v{d1}, v{t3}'):
        for dst, a, p, t in ce2: e(fmt.format(t2=t+2, t3=t+3, p=p, a=a, d0=dst, d1=dst+1))
    norm = f'''v_and_b32 v28, 0x7fff7fff, v8
          v_and_b32 v29, 0x7fff7fff, v9
          v_pk_max_u16 v28, v28, v29
          v_lshlrev_b32 v29, 16, v28
          v_max_u32 v28, v28, v29
          NOP
          v_max_u32_dpp v28, v28, v28 row_ror:8 row_mask:0xf bank_mask:0xf
          NOP
          v_max_u32_dpp v28, v28, v28 row_ror:4 row_mask:0xf bank_mask:0xf
          NOP
          v_max_u32_dpp v28, v28, v28 row_ror:2 row_mask:0xf bank_mask:0xf
          NOP
          v_max_u32_dpp v28, v28, v28 row_ror:1 row_mask:0xf bank_mask:0xf
          NOP
          v_readlane_b32 s64, v28, 0
          v_readlane_b32 s65, v28, 16
          v_readlane_b32 s66, v28, 32
          v_readlane_b32 s67, v28, 48
          NOP
          s_max_u32 s64, s64, s65
          s_max_u32 s66, s66, s67
          s_max_u32 s64, s64, s66
          s_lshr_b32 s64, s64, 23
          s_max_u32 s64, s64, 1
          s_min_u32 s64, s64, 252
          s_sub_u32 s65, 254, s64
          s_lshl_b32 s65, s65, 23
          s_add_u32 s64, s64, 1
          s_lshl_b32 s64, s64, 23
          v_lshlrev_b32 v28, 16, v8
          v_lshlrev_b32 v29, 16, v9
          v_and_b32 v30, s71, v8
          v_and_b32 v31, s71, v9
          v_mul_f32 v28, s65, v28
          v_mul_f32 v29, s65, v29
          v_mul_f32 v30, s65, v30
          v_mul_f32 v31, s65, v31
          v_mul_f32 v10, s64, v10
          v_cvt_pk_f16_f32 v{X}, v28, -v29
          v_cvt_pk_f16_f32 v{X+1}, v30, -v31'''.split('NOP')
    def sq(dst, x):
        for k in range(2):
            e(f'v_pk_mul_f32 {vr(dst+2*k,2)}, {vr(x+2*k,2)}, {vr(x+2*k,2)} op_sel:[0,0] op_sel_hi:[1,0]')
        for k in range(2):
            e(f'v_pk_fma_f32 {vr(dst+2*k,2)}, {vr(x+2*k,2)}, {vr(x+2*k,2)}, {vr(dst+2*k,2)} op_sel:[1,1,0] op_sel_hi:[0,1,1] neg_lo:[0,1,0]')
    def cv(lg, x):
        e(f'v_cvt_pk_f16_f32 v{MH+2*lg}, v{x}, v{x+1}\n v_cvt_pk_f16_f32 v{MH+2*lg+1}, v{x+2}, v{x+3}')
    def M(k): return MH + 2*(k.bit_length()-1)
    def row(r, x):
        e(f'ds_write_addtid_b32 v{x} offset:{544*r}\n ds_write_addtid_b32 v{x+1} offset:{544*r+256}')
    p, pn, q, qn = PA, PB, QA, QB
    for i in range(7):
        e(norm[i])
        cv(i, p)
        if i >= 3: row(1 << (i-3), MH+2*i)
        if i < 5: cv(7+i, q)
        if i < 6: sq(pn, p); p, pn = pn, p
        if i < 4: sq(qn, q); q, qn = qn, q
    stamp(0, 6)
    if STAMP: e('s_mov_b32 m0, s13')
    def mulrows(items, conj):
        ng = 'neg_hi:[0,1,0]' if conj else 'neg_lo:[0,1,0]'
        for i in range(0, len(items), 2):
            grp = items[i:i+2]
            for r, dst, x, m in grp:
                for k in range(2): e(f'v_pk_mul_f16 v{dst+k}, v{x+k}, v{m+k} op_sel:[0,0] op_sel_hi:[1,0]')
            for r, dst, x, m in grp:
                for k in range(2): e(f'v_pk_fma_f16 v{dst+k}, v{x+k}, v{m+k}, v{dst+k} op_sel:[1,1,0] op_sel_hi:[0,1,1] {ng}')
            for r, dst, x, m in grp:
                if r is not None: row(r, dst)
    def rdfr(dst):
        for s_ in range(8): e(f'ds_read_b128 {vr(dst+4*s_,4)}, v17 offset:{64*s_}')
    def mm(d):
        for s_ in range(8):
            c = '0' if s_ == 0 else vr(d,4)
            e(f'v_mfma_f32_16x16x32_f16 {vr(d,4)}, {vr(AF+4*s_,4)}, {vr(BF+4*s_,4)}, {c}')
    Y = {1: M(8), 2: M(16), 4: M(32), 3: YY, 5: YY+2, 6: YY+4, 7: YY+6}
    mulrows([(3, Y[3], Y[1], M(16)), (5, Y[5], Y[1], M(32)), (6, Y[6], Y[2], M(32)), (7, Y[7], Y[3], M(32))], False)
    mulrows([(8+j, TT+2*(j&1), Y[j], M(64)) for j in range(1, 8)], False)
    rdfr(BF)
    row(0, X)
    mulrows([(1, X+2, X, M(1)), (2, X+4, X, M(2)), (3, X+6, X+2, M(2)), (4, X+8, X, M(4)),
             (5, X+10, X+2, M(4)), (6, X+12, X+4, M(4)), (7, X+14, X+6, M(4)), (8, XK, X, M(128))], True)
    mulrows([(8+a, XK+2*a, X+2*a, M(128)) for a in range(1, 8)], True)
    rdfr(AF)
    src = [X, X+4, X+8, X+12, XK, XK+4, XK+8, XK+12]
    it = [(n, XL+2*n, src[n], M(256)) for n in range(8)] + [(8, TT, X, M(2048))]
    mulrows(it[:4], True)
    e('s_waitcnt lgkmcnt(8)')
    mm(D)
    mulrows(it[4:], True)
    rdfr(AF)
    s2 = [X, X+8, XK, XK+8, XL, XL+4, XL+8, XL+12]
    it = [(4*(n >> 1) + (n & 1), XM+2*n, s2[n], M(512)) for n in range(8)]
    mulrows(it[:4], True)
    e('s_waitcnt lgkmcnt(8)')
    mm(D+4)
    mulrows(it[4:], True)
    s3 = [X, XK, XL, XL+8, XM, XM+4, XM+8, XM+12]
    mulrows([(4*(i >> 1) + 2 + (i & 1), TT+2*(i & 1), s3[i], M(1024)) for i in range(8)], True)
    rdfr(AF)
    B1 = D+4
    for i in range(8): e(f'v_mul_f32 v{D+i}, v{D+i}, v10')
    e(f'''v_lshlrev_b32 v11, 16, v11
          s_mov_b64 exec, 1
          v_add_f32 v{D}, v{D}, v11
          s_mov_b64 exec, -1
          s_waitcnt lgkmcnt(0)''')
    mm(D+8)
    e(f'''v_cvt_pk_bf16_f32 v28, v{B1+3}, v{B1+3}
          v_cvt_pk_bf16_f32 v29, v{B1+2}, v{B1+2}
          v_cvt_pk_bf16_f32 v30, v{B1+2}, v{B1+1}
          v_cvt_pk_bf16_f32 v31, v{B1}, v{B1}
          v_cvt_pk_bf16_f32 v32, v{D+3}, v{D+2}
          v_cvt_pk_bf16_f32 v33, v{D+1}, v{D}
          s_nop 1''')
    A = D+8
    e(f'''v_mul_f32 v{A+2}, v{A+2}, v10
          v_mul_f32 v{A+3}, v{A+3}, v10
          v_mul_f32 v{A}, v{A}, v10
          v_mul_f32 v{A+1}, v{A+1}, v10
          v_mov_b32_dpp v34, v{A+2} quad_perm:[0,0,2,2] row_mask:0xf bank_mask:0xf
          v_mov_b32_dpp v35, v{A+3} quad_perm:[0,0,2,2] row_mask:0xf bank_mask:0xf
          v_cvt_pk_bf16_f32 v36, v{A+2}, v{A+2}
          v_cvt_pk_bf16_f32 v37, v{A+2}, v34
          v_cvt_pk_bf16_f32 v38, v{A+3}, v{A+3}
          v_cvt_pk_bf16_f32 v39, v{A+3}, v35
          ds_write2_b32 v24, v36, v36 offset0:64 offset1:65
          ds_write2_b32 v24, v36, v37 offset0:66 offset1:67
          ds_write2_b32 v24, v38, v38 offset0:0 offset1:1
          ds_write2_b32 v24, v38, v39 offset0:2 offset1:3
          v_cvt_pk_bf16_f32 v40, v{A+1}, v{A+1}
          v_cvt_pk_bf16_f32 v41, v{A+1}, v{A}
          v_cvt_pk_bf16_f32 v42, v{A}, v{A}
          ds_write2_b32 v25, v40, v41 offset0:0 offset1:1
          ds_write2_b32 v25, v42, v42 offset0:2 offset1:3
          s_mov_b32 exec_lo, 0
          s_mov_b32 exec_hi, 1
          ds_write2_b32 v12, v31, v31 offset0:0 offset1:1
          s_mov_b32 exec_lo, -1
          s_mov_b32 exec_hi, 0
          ds_write_b16 v25, v28 offset:510
          ds_write2_b32 v25, v29, v30 offset0:128 offset1:129
          ds_write_b32 v25, v31 offset:520
          ds_write_b16 v25, v31 offset:524
          s_mov_b64 exec, -1
          ds_write_b64 v26, v[32:33] offset:4088''')

HR = 0; W2R = 32768; NS2 = 4
def k2():
    L.append('.p2align 8')
    e('k2_kernel:')
    prologue(2)
    e('''s_lshr_b32 s6, s4, 1
         s_lshl_b32 s6, s6, 5
         s_and_b32 s8, s5, 0xfc
         s_add_u32 s6, s6, s8
         s_and_b32 s7, s4, 1
         s_lshl_b32 s7, s7, 2
         s_and_b32 s8, s5, 3
         s_add_u32 s7, s7, s8
         s_mul_i32 s7, s7, 80
         s_cmp_lt_u32 s3, 4
         s_cbranch_scc1 L_g2c''')
    e('''s_sub_u32 s9, s3, 4
         v_lshlrev_b32 v10, 4, v0
         s_and_b32 s8, s4, 1
         s_mul_i32 s8, s8, %d
         s_add_u32 s10, s6, s9
         s_mul_i32 s10, s10, %d
         s_lshl_b32 s12, s8, 11
         s_add_u32 s10, s10, s12
         s_mul_i32 s13, s9, 3
         s_min_u32 s13, s13, 8
         s_lshl_b32 s13, s13, 10
         s_mul_i32 s11, s7, %d
         s_add_u32 s11, s11, s13
         s_mul_i32 s12, s8, 10240
         s_add_u32 s11, s11, s12
         s_add_u32 s11, s11, %d
         s_lshl_b32 s12, s9, 11
         s_add_u32 s13, s13, %d
         s_cmp_lt_u32 s9, 2
         s_cselect_b32 s15, 0, 0x40000000
         v_add_u32 v11, s15, v10
         s_mov_b32 s64, %d
         s_cselect_b32 s64, 2048, s64
         s_cselect_b32 s65, -1, 0
         s_waitcnt lgkmcnt(0)''' % (int(OPT.get('rot2', 14)), 54*1024, 2*1728, WS_W, W2R, W2R + NS2*10240))
    srd(44, 42, 43, WS_W + W_BYTES)
    e('s_mov_b32 s14, 0')
    e('L_g2l_loop:')
    e('''s_mov_b32 m0, s13
         s_and_b32 s15, s13, s65
         buffer_load_dwordx4 v10, s[44:47], s11 offen lds
         buffer_load_dwordx4 v10, s[44:47], s11 offen offset:1024 lds
         s_add_u32 m0, s15, s64
         s_add_u32 s15, s11, 2048
         buffer_load_dwordx4 v11, s[44:47], s15 offen lds
         s_mov_b32 m0, s12
         s_add_u32 s11, s11, 10240
         buffer_load_dwordx4 v10, s[44:47], s10 offen lds
         buffer_load_dwordx4 v10, s[44:47], s10 offen offset:1024 lds
         s_add_u32 s10, s10, 2048
         s_add_u32 s12, s12, 8192
         s_and_b32 s12, s12, %d
         s_add_u32 s13, s13, 10240
         s_cmp_ge_u32 s13, %d
         s_cselect_b32 s15, %d, 0
         s_sub_u32 s13, s13, s15
         s_add_u32 s8, s8, 1
         s_cmp_eq_u32 s8, 27
         s_cselect_b32 s15, %d, 0
         s_sub_u32 s10, s10, s15
         s_cmp_eq_u32 s8, 27
         s_cselect_b32 s15, %d, 0
         s_sub_u32 s11, s11, s15
         s_add_u32 s14, s14, 1
         s_cmp_lt_u32 s14, 3
         s_cbranch_scc1 L_g2l_loop''' % (NS2*8192-1, W2R + NS2*10240, NS2*10240, 54*1024, 1728*160))
    stamp_e('s14', 13)
    e('s_waitcnt vmcnt(10)\n s_barrier')
    stamp_b()
    e('''s_cmp_lt_u32 s14, 27
         s_cbranch_scc1 L_g2l_loop
         s_waitcnt vmcnt(5)
         s_barrier
         s_waitcnt vmcnt(0)
         s_barrier''')
    stamp_flush(1, 1)
    e('s_endpgm')
    e('L_g2c:')
    ACC = 16
    FR = 56
    Y = 112
    e('''v_and_b32 v14, 15, v0
         v_lshrrev_b32 v15, 4, v0
         s_add_u32 s8, s6, s3
         s_lshl_b32 s8, s8, 4
         s_and_b32 s9, s3, 1''')
    for n in range(20): e(f'v_mov_b32 v{Y+n}, 0')
    e('s_waitcnt lgkmcnt(0)')
    srd(44, 42, 43, Y_BYTES, WS_Y)
    srd(48, 42, 43, G_BYTES, WS_G)
    srd(60, 38, 39, 2048*1280)
    e('''v_lshlrev_b32 v2, 14, v15
         v_lshl_add_u32 v2, v14, 1, v2
         s_lshl_b32 s10, s7, 12
         s_lshl_b32 s11, s8, 1
         s_add_u32 s10, s10, s11
         v_lshlrev_b32 v5, 2, v14
         s_lshl_b32 s13, s8, 2
         buffer_load_dword v6, v5, s[48:51], s13 offen''')
    for n in range(20):
        e(f'buffer_load_short_d16_hi v{Y+n}, v2, s[44:47], s10 offen')
        if n < 19: e(f's_add_u32 s10, s10, {4096 if n % 4 != 3 else 13*4096}')
    e('''v_mul_u32_u24 v3, 1280, v14
         v_lshl_add_u32 v3, v15, 3, v3
         s_mul_i32 s11, s8, 1280
         s_lshl_b32 s12, s7, 1
         s_add_u32 s11, s11, s12''')
    e('''s_lshr_b32 s13, s3, 1
         s_lshl_b32 s13, s13, 12
         s_lshl_b32 s12, s9, 10
         s_add_u32 s13, s13, s12
         v_lshlrev_b32 v7, 4, v0
         v_add_u32 v8, s13, v7
         v_lshrrev_b32 v9, 5, v0
         v_mul_u32_u24 v9, 2560, v9
         v_bfe_u32 v1, v0, 2, 3
         v_mul_u32_u24 v1, 160, v1
         v_add_u32 v9, v9, v1
         v_and_b32 v1, 3, v0
         v_lshl_add_u32 v9, v1, 3, v9
         s_mul_i32 s12, s9, 5120
         s_add_u32 s12, s12, %d
         v_add_u32 v9, s12, v9''' % W2R)
    for i in range(40): e(f'v_mov_b32 v{ACC+i}, 0')
    def reads(slot, st):
        b = FR + 28*st
        r = [f'ds_read_b128 {vr(b+20,4)}, v8 offset:{8192*slot}']
        for j in range(5):
            for half in range(2):
                r.append(f'ds_read_b64_tr_b16 {vr(b+4*j+2*half,2)}, v9 offset:{10240*slot+1280*half+32*j}')
            if j == 0: r.append(f'ds_read_b128 {vr(b+24,4)}, v8 offset:{8192*slot+2048}')
        return r
    def mfmas(st):
        b = FR + 28*st
        return [f'v_mfma_f32_16x16x32_bf16 {vr(ACC+20*ti+4*j,4)}, {vr(b+4*j,4)}, {vr(b+20+4*ti,4)}, {vr(ACC+20*ti+4*j,4)}' for j in range(5) for ti in range(2)]
    def step(rd, mm):
        rd = list(rd)
        if int(OPT.get('k2nc', 0)): rd = []; mm = []
        e('s_barrier')
        for m in mm:
            for _ in range(2):
                if rd: e(rd.pop(0))
            e(m)
        for r in rd: e(r)
        e('s_waitcnt lgkmcnt(0)')
    stamp(1, 1)
    e('s_mov_b32 s15, 0\n s_mov_b32 s14, 0')
    step(reads(0, 0), [])
    e('L_g2c_loop:')
    step(reads(1, 1), mfmas(0))
    step(reads(2, 0), mfmas(1))
    e('s_add_u32 s15, s15, 1\n s_cmp_eq_u32 s15, 7\n s_cbranch_scc1 L_g2c_done')
    step(reads(3, 1), mfmas(0))
    step(reads(0, 0), mfmas(1))
    e('s_branch L_g2c_loop')
    e('L_g2c_done:')
    for m in mfmas(0): e(m)
    stamp(1, 2)
    e(f'''s_mul_i32 s12, s3, 5120
          s_add_u32 s12, s12, {W2R}
          v_add_u32 v8, s12, v7
          s_xor_b32 s12, s3, 1
          s_mul_i32 s12, s12, 5120
          s_add_u32 s12, s12, {W2R}
          v_add_u32 v9, s12, v7
          s_mov_b32 s13, 0xffff0000
          s_cmp_eq_u32 s9, 0
          s_cbranch_scc1 L_g2c_k0''')
    for j in range(5): e(f'ds_write_b128 v8, {vr(ACC+4*j,4)} offset:{1024*j}')
    for i in range(20): e(f'v_mov_b32 v{ACC+i}, v{ACC+20+i}')
    e('s_branch L_g2c_x\n L_g2c_k0:')
    for j in range(5): e(f'ds_write_b128 v8, {vr(ACC+20+4*j,4)} offset:{1024*j}')
    e('L_g2c_x:')
    e('s_waitcnt vmcnt(0)')
    for p in range(10):
        y = Y + 2*p
        e(f'''v_mul_f32 v{y}, v{y}, v6
              v_mul_f32 v{y+1}, v{y+1}, v6
              v_cvt_pk_bf16_f32 v{y}, v{y}, v{y+1}
              v_and_b32 v{y+1}, s13, v{y}
              v_lshlrev_b32 v{y}, 16, v{y}''')
        if p == 3:
            e('s_waitcnt lgkmcnt(0)\n s_barrier')
            for j in range(5): e(f'ds_read_b128 {vr(FR+4*j,4)}, v9 offset:{1024*j}')
    e('''v_sub_f32 v6, 1.0, v6
         v_cvt_pk_bf16_f32 v6, v6, v6
         v_lshlrev_b32 v6, 16, v6''')
    for j in range(5):
        e(f's_waitcnt lgkmcnt({4-j})')
        for p in range(2):
            a = ACC + 4*j + 2*p; y = Y + 4*j + 2*p; x = FR + 4*j + 2*p; t = FR + 20 + 2*p
            e(f'''v_add_f32 v{a}, v{a}, v{x}
                  v_add_f32 v{a+1}, v{a+1}, v{x+1}
                  v_cvt_pk_bf16_f32 v{t}, v{a}, v{a+1}
                  v_and_b32 v{t+1}, s13, v{t}
                  v_lshlrev_b32 v{t}, 16, v{t}
                  v_mul_f32 v{t}, v{t}, v6
                  v_mul_f32 v{t+1}, v{t+1}, v6
                  v_cvt_pk_bf16_f32 v{t}, v{t}, v{t+1}
                  v_and_b32 v{t+1}, s13, v{t}
                  v_lshlrev_b32 v{t}, 16, v{t}
                  v_add_f32 v{t}, v{t}, v{y}
                  v_add_f32 v{t+1}, v{t+1}, v{y+1}
                  v_cvt_pk_bf16_f32 v{FR+28+2*j+p}, v{t}, v{t+1}''')
        e(f'buffer_store_dwordx2 {vr(FR+28+2*j,2)}, v3, s[60:63], s11 offen offset:{32*j} {OPT.get("ost", "").replace("+", " ")}')
    stamp_flush(1, 3)
    e('L_end2:\n L_code_end:\n s_endpgm')

k1()
k2()

HEAD = open(f'cdna_kernels/{NAME}.s.ref').read().split('; Override launch')[0]
HEAD += '''; @launch kernel=k1_kernel grid=(256,1,1) block=(512,1,1) lds=163840
; @launch kernel=k2_kernel grid=(256,1,1) block=(512,1,1) lds=98304
.amdgcn_target "amdgcn-amd-amdhsa--gfx950"
.text
.globl k1_kernel
.globl k2_kernel
.type k1_kernel,@function
.type k2_kernel,@function
.p2align 8
'''
def desc(n, vg):
    return f'''.p2align 6
.amdhsa_kernel {n}
  .amdhsa_next_free_vgpr {vg}
  .amdhsa_next_free_sgpr 102
  .amdhsa_accum_offset {vg}
  .amdhsa_group_segment_fixed_size 0
  .amdhsa_kernarg_size 112
  .amdhsa_user_sgpr_count 2
  .amdhsa_user_sgpr_kernarg_segment_ptr 1
  .amdhsa_system_sgpr_workgroup_id_x 1
.end_amdhsa_kernel
'''
TAIL = '.section .rodata,"a"\n' + desc('k1_kernel', 256) + desc('k2_kernel', 136)
open(OUT, 'w').write(HEAD + '\n'.join(L) + '\n' + TAIL)
print('wrote', OUT, len(L), 'lines')
```

```python
import sys, struct

NAME = 'gated_mix__ssm_conv_s4d__dense_activation_relu__prompt'
OUT = sys.argv[1] if len(sys.argv) > 1 else f'cdna_kernels/{NAME}.s'
OPT = dict(a.split('=') for a in sys.argv[2:])
STAMP = int(OPT.get('stamp', 0))

L = []
def e(s=''):
    for ln in s.split('\n'):
        ln = ln.strip()
        if not ln: continue
        L.append(ln if ln.endswith(':') else '    ' + ln)
def f2u(x): return struct.unpack('<I', struct.pack('<f', x))[0]
def vr(a, n): return f'v[{a}:{a+n-1}]'

WS_H = 0
H_BYTES = 128*54*1024
WS_Y = 0x800000
Y_BYTES = 640*4096
WS_G = 0xB00000
G_BYTES = 8192
WS_ST = 0xC00000
WS_W = 0x1000000
W_BYTES = 8*1728*160

def srd(d, lo, hi, nbytes, off=0):
    if off:
        e(f's_add_u32 s{d}, s{lo}, {hex(off)}')
        e(f's_addc_u32 s{d+1}, s{hi}, 0')
    else:
        e(f's_mov_b32 s{d}, s{lo}')
        e(f's_mov_b32 s{d+1}, s{hi}')
    e(f's_mov_b32 s{d+2}, {hex(nbytes)}')
    e(f's_mov_b32 s{d+3}, 0x00020000')

STV = {1: 255, 2: 255}
CUR = [1]
def stamp(k, slot):
    if STAMP:
        e('s_memrealtime s[80:81]\n s_waitcnt lgkmcnt(0)')
        if isinstance(slot, str):
            e(f's_add_u32 m0, {slot}, 16\n v_writelane_b32 v{STV[CUR[0]]}, s80, m0')
        else:
            e(f'v_writelane_b32 v{STV[CUR[0]]}, s80, {slot}')
def stamp_b():
    if STAMP: e('s_memrealtime s[82:83]')
def stamp_e(slot, base=16):
    if STAMP: e(f's_waitcnt lgkmcnt(0)\n s_add_u32 m0, {slot}, {base}\n v_writelane_b32 v{STV[CUR[0]]}, s82, m0')
def stamp_cyc(slot):
    if STAMP: e(f's_memtime s[80:81]\n s_waitcnt lgkmcnt(0)\n v_writelane_b32 v{STV[CUR[0]]}, s80, {slot}')
def stamp_flush(n):
    if not STAMP: return
    e('s_waitcnt lgkmcnt(0) vmcnt(0)')
    stamp(0, n)
    stamp_cyc(15)
    srd(72, 42, 43, 0x100000, WS_ST)
    e(f's_lshl_b32 s76, s2, 3\n s_add_u32 s76, s76, s3\n s_lshl_b32 s76, s76, 8')
    e(f's_mov_b64 exec, -1\n v_lshlrev_b32 v1, 2, v0\n buffer_store_dword v255, v1, s[72:75], s76 offen')

WS_F = 0xB80000; F_BYTES = 42*256
DBG = 84
FLG = 96
def sync_srds():
    srd(DBG, 40, 41, 256)
    srd(FLG, 42, 43, F_BYTES, WS_F)
def prologue():
    if STAMP: e('v_mov_b32 v255, 0')
    stamp(0, 0)
    stamp_cyc(14)
    if STAMP: e('s_mov_b32 s82, 0')
    e('''s_cmp_ge_u32 s2, 256
         s_cbranch_scc1 L_end
         s_load_dwordx16 s[16:31], s[0:1], 0
         s_load_dwordx8 s[32:39], s[0:1], 64
         s_load_dwordx4 s[40:43], s[0:1], 96
         v_lshrrev_b32 v1, 6, v0''')
    e('''s_getpc_b64 s[6:7]
         L_pc:
         v_min_u32 v2, (L_code_end-L_pc)/128, v0
         v_lshlrev_b32 v2, 7, v2
         global_load_dword v254, v2, s[6:7]
         v_and_b32 v0, 63, v0
         v_readfirstlane_b32 s3, v1
         s_and_b32 s4, s2, 7
         s_lshr_b32 s5, s2, 3
         s_getreg_b32 s88, hwreg(HW_REG_XCC_ID, 0, 4)
         s_add_u32 s88, s88, 1
         s_mov_b32 s79, 0
         s_mov_b32 s89, 0
         s_mov_b32 s94, 0
         s_mov_b32 s95, 0
         v_mov_b32 v252, 0''')

def join_load():
    e(f'v_mov_b32 v252, 0\n buffer_load_dword v251, v252, s[{DBG}:{DBG+3}], 0 offen sc1')
NJ = [0]
def join():
    n = NJ[0]; NJ[0] += 1
    e(f'''L_join{n}:
          s_waitcnt vmcnt(0)
          v_readfirstlane_b32 s90, v251
          s_lshl_b32 s91, s4, 6
          s_add_u32 s91, s91, s5
          s_lshl_b32 s91, s91, 2
          s_add_u32 s91, s91, {34*256}
          s_cmp_eq_u32 s90, 1
          s_cbranch_scc1 L_joined{n}
          s_sleep 4
          buffer_load_dword v251, v252, s[{DBG}:{DBG+3}], 0 offen sc1
          s_add_u32 s94, s94, 1
          s_cmp_lt_u32 s94, 0x100000
          s_cbranch_scc1 L_join{n}
          L_joined{n}:''')
    flag('s91', 's88')

def flag(off_sgpr, val, pol='sc1'):
    e(f'''v_mov_b32 v253, {val}
          v_mov_b32 v252, 0
          s_mov_b64 exec, 1
          buffer_store_dword v253, v252, s[{FLG}:{FLG+3}], {off_sgpr} offen {pol}
          s_mov_b64 exec, -1
          s_nop 1''')

def xcc_load():
    e(f'''s_lshl_b32 s90, s4, 8
          s_add_u32 s90, s90, {34*256}
          v_and_b32 v246, 31, v0
          v_lshlrev_b32 v246, 2, v246
          buffer_load_dword v245, v246, s[{FLG}:{FLG+3}], s90 offen sc1''')
def xcc_check():
    e(f'''v_cmp_eq_u32 vcc, s88, v245
          s_nop 3
          s_cmp_eq_u64 vcc, -1
          s_cselect_b32 s95, {2 if int(OPT.get('fast', 1)) else 1}, 1''')

def k1():
    e(NAME + '_kernel:')
    prologue()
    e('s_cmp_lt_u32 s5, 14\n s_cbranch_scc1 L_ssm')
    gemm1()
    ssm()

XR = 0; WR = 65536
def gemm1():
    e('''s_sub_u32 s6, s5, 14
         s_and_b32 s7, s6, 1
         s_lshr_b32 s6, s6, 1
         s_lshl_b32 s8, s4, 1
         s_add_u32 s7, s7, s8
         s_cmp_lt_u32 s3, 4
         s_cbranch_scc1 L_g1c''')
    e('s_sub_u32 s9, s3, 4')
    e('''v_lshrrev_b32 v2, 3, v0
         v_mul_u32_u24 v2, 1280, v2
         v_and_b32 v3, 7, v0
         v_lshrrev_b32 v4, 4, v0
         v_xor_b32 v3, v3, v4
         v_lshl_add_u32 v10, v3, 4, v2
         v_xor_b32 v3, 4, v3
         v_lshl_add_u32 v11, v3, 4, v2
         v_add_u32 v11, %d, v11
         v_add_u32 v12, %d, v10
         v_add_u32 v13, %d, v11''' % (9216, 2*9216, 2*9216))
    for b in range(3):
        e(f'''v_add_u32 v2, {64*b}, v0
              v_mul_u32_u24 v3, 2731, v2
              v_lshrrev_b32 v3, 16, v3
              v_mul_u32_u24 v4, 24, v3
              v_sub_u32 v4, v2, v4
              v_bfe_u32 v5, v3, 1, 1
              v_lshlrev_b32 v5, 2, v5
              v_xor_b32 v4, v4, v5
              v_mul_u32_u24 v3, 3456, v3
              v_lshl_add_u32 v{14+b}, v4, 4, v3''')
        if b: e(f'v_subrev_u32 v{14+b}, {1024*b}, v{14+b}')
    e('''s_and_b32 s14, s7, 1
         s_mul_i32 s14, s14, %d
         s_add_u32 s14, s14, s6
         s_add_u32 s14, s14, s4
         s_mul_i32 s12, s14, 6554
         s_lshr_b32 s12, s12, 16
         s_mul_i32 s12, s12, 10
         s_sub_u32 s14, s14, s12''' % int(OPT.get('rr', 0)))
    if not int(OPT.get('rot1', 1)): e('s_mov_b32 s14, 0')
    e('''s_lshl_b32 s10, s7, 2
         s_add_u32 s10, s10, s9
         s_mul_i32 s10, s10, %d
         s_lshl_b32 s12, s14, 7
         s_add_u32 s10, s10, s12
         s_mul_i32 s11, s9, %d
         s_mul_i32 s12, s6, 384
         s_add_u32 s11, s11, s12
         s_mul_i32 s12, s14, %d
         s_add_u32 s11, s11, s12
         s_lshl_b32 s12, s9, 12
         s_mul_i32 s13, s9, 6144
         s_add_u32 s13, s13, %d
         s_waitcnt lgkmcnt(0)''' % (32*1280, 16*3456, 64*3456, WR))
    srd(44, 16, 17, 2048*1280)
    srd(48, 32, 33, 640*3456)
    srd(52, 36, 37, 1280)
    e('v_and_b32 v3, 15, v0\n v_lshlrev_b32 v3, 4, v3\n s_mov_b32 s8, 0')
    for n in range(5):
        e(f'buffer_load_dwordx4 {vr(40+4*n,4)}, v3, s[52:55], 0 offen offset:{256*n}')
    e('L_g1l_loop:')
    e('''s_mov_b32 m0, s12
         s_add_u32 s15, s11, %d
         buffer_load_dwordx4 v10, s[44:47], s10 offen lds
         buffer_load_dwordx4 v11, s[44:47], s10 offen offset:1024 lds
         buffer_load_dwordx4 v12, s[44:47], s10 offen offset:2048 lds
         buffer_load_dwordx4 v13, s[44:47], s10 offen offset:3072 lds
         s_mov_b32 m0, s13
         s_add_u32 s10, s10, 128
         buffer_load_dwordx4 v14, s[48:51], s11 offen lds
         buffer_load_dwordx4 v15, s[48:51], s11 offen offset:1024 lds
         buffer_load_dwordx4 v16, s[48:51], s11 offen offset:2048 lds
         s_add_u32 m0, s13, 3072
         s_add_u32 s11, s11, %d
         buffer_load_dwordx4 v14, s[48:51], s15 offen lds
         buffer_load_dwordx4 v15, s[48:51], s15 offen offset:1024 lds
         buffer_load_dwordx4 v16, s[48:51], s15 offen offset:2048 lds
         s_add_u32 s12, s12, 16384
         s_and_b32 s12, s12, 0xffff
         s_add_u32 s13, s13, 24576
         s_cmp_ge_u32 s13, %d
         s_cselect_b32 s15, 98304, 0
         s_sub_u32 s13, s13, s15
         s_add_u32 s14, s14, 1
         s_cmp_eq_u32 s14, 10
         s_cselect_b32 s15, 1280, 0
         s_sub_u32 s10, s10, s15
         s_cmp_eq_u32 s14, 10
         s_cselect_b32 s15, %d, 0
         s_sub_u32 s11, s11, s15
         s_add_u32 s8, s8, 1
         s_cmp_lt_u32 s8, 2
         s_cbranch_scc1 L_g1l_loop''' % (8*3456, 64*3456, WR + 98304, 640*3456))
    stamp_e('s8', 14)
    e('s_waitcnt vmcnt(10)\n s_barrier')
    stamp_b()
    e('s_cmp_lt_u32 s8, 10\n s_cbranch_scc1 L_g1l_loop')
    stamp_e(9)
    sync_srds()
    srd(60, 42, 43, G_BYTES, WS_G)
    e('''s_lshl_b32 s10, s7, 3
         s_add_u32 s10, s10, s6
         s_lshl_b32 s10, s10, 2
         s_add_u32 s10, s10, s9
         s_lshl_b32 s10, s10, 2
         v_lshrrev_b32 v2, 4, v0
         v_mul_u32_u24 v4, 1280, v2
         v_add_u32 v4, v4, v3
         s_mul_i32 s11, s10, 1280''')
    for n in range(5):
        e(f'buffer_load_dwordx4 {vr(20+4*n,4)}, v4, s[44:47], s11 offen offset:{256*n}')
    e('''s_waitcnt vmcnt(5)
         s_barrier
         s_cmp_eq_u32 s3, 4
         s_cbranch_scc0 L_g1l_nx''')
    xcc_load()
    e('''s_waitcnt vmcnt(1)
         L_g1l_nx:
         s_cbranch_scc1 L_g1l_ny
         s_waitcnt vmcnt(0)
         L_g1l_ny:''')
    e('v_mov_b32 v8, 0\n v_mov_b32 v9, 0\n s_mov_b32 s13, 0xffff0000')
    for n in range(20):
        e(f'''v_lshlrev_b32 v64, 16, v{20+n}
              v_and_b32 v65, s13, v{20+n}
              v_lshlrev_b32 v66, 16, v{40+n}
              v_and_b32 v67, s13, v{40+n}
              v_mul_f32 v64, v64, v66
              v_mul_f32 v65, v65, v67
              v_cvt_pk_bf16_f32 v64, v64, v65
              v_lshlrev_b32 v66, 16, v64
              v_and_b32 v67, s13, v64
              v_add_f32 v8, v8, v66
              v_add_f32 v9, v9, v67''')
    e('v_add_f32 v8, v8, v9\n s_nop 1')
    for sh in (8, 4, 2, 1):
        e(f'v_add_f32_dpp v8, v8, v8 row_ror:{sh} row_mask:0xf bank_mask:0xf\n s_nop 1')
    e('''v_cvt_pk_bf16_f32 v8, v8, v8
         v_lshlrev_b32 v8, 16, v8
         v_mul_f32 v8, 0xbfb8aa3b, v8
         v_exp_f32 v8, v8
         s_nop 0
         v_add_f32 v8, 1.0, v8
         v_rcp_f32 v8, v8
         s_nop 0
         v_cvt_pk_bf16_f32 v8, v8, v8
         v_lshlrev_b32 v8, 16, v8
         v_lshlrev_b32 v2, 2, v2
         s_lshl_b32 s10, s10, 2
         s_cmp_ge_u32 s6, 8
         s_cbranch_scc1 L_g1l_done
         buffer_store_dword v8, v2, s[60:63], s10 offen sc1
         L_g1l_done:
         s_waitcnt vmcnt(0)''')
    stamp(0, 1)
    e('s_cmp_eq_u32 s3, 4\n s_cbranch_scc1 L_g1l_w4\n s_barrier\n s_branch L_pb\n L_g1l_w4:')
    xcc_check()
    e(f'''s_lshl_b32 s12, s7, 6
          s_add_u32 s12, s12, s6
          s_lshl_b32 s12, s12, 2
          s_barrier
          s_cmp_eq_u32 s95, 2
          s_cbranch_scc0 L_g1l_sf''')
    flag('s12', 1, '')
    e('s_branch L_pb\n L_g1l_sf:\n buffer_wbl2 sc1\n s_waitcnt vmcnt(0)')
    flag('s12', 1)
    e('s_branch L_pb')

    e('L_g1c:')
    ACC = 0 + 16
    FR = 112
    XB = 2
    XA = 8
    e('''s_lshr_b32 s8, s3, 1
         s_and_b32 s9, s3, 1''')
    e('''v_and_b32 v14, 31, v0
         s_lshl_b32 s10, s8, 6
         v_add_u32 v15, s10, v14
         v_lshlrev_b32 v15, 7, v15
         v_bfe_u32 v14, v0, 1, 3
         v_lshrrev_b32 v1, 5, v0
         v_xor_b32 v14, v14, v1''')
    for ks in range(4):
        e(f'v_xor_b32 v1, {2*ks}, v14\n v_lshl_add_u32 v{XB+ks}, v1, 4, v15')
    e('''v_lshrrev_b32 v1, 5, v0
         v_lshlrev_b32 v1, 3, v1
         v_bfe_u32 v14, v0, 2, 2
         v_add_u32 v1, v1, v14
         v_mul_u32_u24 v1, 384, v1
         v_bfe_u32 v14, v0, 4, 1
         v_lshl_add_u32 v1, v14, 5, v1
         v_and_b32 v14, 3, v0
         v_lshl_add_u32 v1, v14, 3, v1
         s_mul_i32 s10, s9, 192
         s_add_u32 s10, s10, %d
         v_add_u32 v1, s10, v1
         v_bfe_u32 v14, v0, 3, 1
         v_lshlrev_b32 v14, 6, v14
         s_lshl_b32 s10, s9, 1
         s_sub_u32 s10, 1, s10
         v_mul_lo_u32 v14, v14, s10
         v_add_u32 v6, v1, v14
         v_sub_u32 v7, v1, v14''' % WR)
    for i in range(96): e(f'v_mov_b32 v{ACC+i}, 0')
    e('s_waitcnt lgkmcnt(0)')
    srd(52, 42, 43, H_BYTES, WS_H)
    sync_srds()
    e('s_cmp_eq_u32 s3, 0\n s_cselect_b32 s15, 1, 99\n s_mov_b32 s12, 0\n s_mov_b32 s13, 0\n s_mov_b32 s14, 0\n v_mov_b32 v251, 0\n v_mov_b32 v252, 0')
    def reads(ks, st):
        r = []
        base = FR + 20*st
        for ti in range(2):
            r.append(f'ds_read_b128 {vr(base+12+4*ti,4)}, v{XA+ks} offset:{4096*ti}')
        for fi in range(3):
            for half in range(2):
                r.append(f'ds_read_b64_tr_b16 {vr(base+4*fi+2*half,2)}, v{XA+4+(fi&1)} offset:{(16*ks+4*half)*384+64*fi}')
        return [r[0], r[2], r[3], r[1], r[4], r[5], r[6], r[7]]
    def mfmas(st):
        base = FR + 20*st
        m = []
        for fi in range(3):
            for ti in range(2):
                a = ACC + 16*(2*fi+ti)
                m.append(f'v_mfma_f32_32x32x16_bf16 {vr(a,16)}, {vr(base+4*fi,4)}, {vr(base+12+4*ti,4)}, {vr(a,16)}')
        return m
    def step(rd, mm):
        rd = list(rd)
        e('s_waitcnt lgkmcnt(8)')
        for i, m in enumerate(mm):
            e(m)
            for _ in range(2):
                if rd: e(rd.pop(0))
    for i in range(4): e(f'v_mov_b32 v{XA+i}, v{XB+i}')
    for i in range(2): e(f'v_mov_b32 v{XA+4+i}, v{XB+4+i}')
    e('s_barrier')
    for r in reads(0, 0) + reads(1, 1): e(r)
    e('s_branch L_g1c_mid')
    e('L_g1c_hook:\n s_cmp_eq_u32 s15, 1\n s_cbranch_scc0 L_g1c_hk2')
    join_load()
    e('s_mov_b32 s15, 3\n s_branch L_g1c_lp2\n L_g1c_hk2:')
    join()
    e('s_branch L_g1c_lp2')
    e('L_g1c_loop:\n s_cmp_eq_u32 s14, s15\n s_cbranch_scc1 L_g1c_hook\n L_g1c_lp2:')
    for i in range(4): e(f'v_add_u32 v{XA+i}, s12, v{XB+i}')
    for i in range(2): e(f'v_add_u32 v{XA+4+i}, s13, v{XB+4+i}')
    e('s_barrier')
    step(reads(0, 0), mfmas(2))
    step(reads(1, 1), mfmas(3))
    e('L_g1c_mid:')
    step(reads(2, 2), mfmas(0))
    e('''s_add_u32 s12, s12, 16384
         s_and_b32 s12, s12, 0xffff
         s_add_u32 s13, s13, 24576
         s_cmp_ge_u32 s13, 98304
         s_cselect_b32 s13, 0, s13
         s_add_u32 s14, s14, 1
         s_cmp_lt_u32 s14, 10''')
    step(reads(3, 3), mfmas(1))
    e('s_cbranch_scc1 L_g1c_loop')
    step([], mfmas(2))
    e('s_waitcnt lgkmcnt(0)')
    for m in mfmas(3): e(m)
    stamp(0, 1)
    e('''v_bfe_u32 v1, v0, 4, 1
         v_mul_u32_u24 v1, %d, v1
         v_lshrrev_b32 v14, 5, v0
         v_lshl_add_u32 v1, v14, 8, v1
         v_and_b32 v14, 15, v0
         v_lshl_add_u32 v1, v14, 4, v1
         s_lshl_b32 s10, s7, 1
         s_add_u32 s10, s10, s8
         s_mul_i32 s10, s10, %d
         s_mul_i32 s11, s6, 6
         s_mul_i32 s12, s9, 3
         s_add_u32 s11, s11, s12
         s_add_u32 s10, s10, s11
         s_lshl_b32 s10, s10, 10
         s_add_u32 s11, s10, %d
         s_nop 4''' % (54*1024, 4*54, 2*54*1024))
    for pol in ('',):
        k = 0
        if pol: e('L_g1c_safe:')
        for fi in range(3):
            for ti in range(2):
                a = ACC + 16*(2*fi+ti)
                for piece in range(2):
                    d = FR + 4*(k % 8); k += 1
                    for q in range(4):
                        e(f'v_cvt_pk_bf16_f32 v{d+q}, v{a+8*piece+2*q}, v{a+8*piece+2*q+1}')
                    for q in range(4):
                        e(f'v_pk_max_i16 v{d+q}, v{d+q}, 0')
                    e(f'buffer_store_dwordx4 {vr(d,4)}, v1, s[52:55], s{10+ti} offen offset:{1024*fi+512*piece} {pol}')
        e('s_waitcnt vmcnt(0)')
        stamp(0, 2)
        e('s_barrier\n s_branch L_pb')

CHS = 12880; UO = 4164; RB = 8304; STG = 0; STGS = 8704; CB = 52224
def ssm():
    e('L_ssm:')
    e('''s_lshr_b32 s78, s4, 2
         s_add_u32 s78, s78, 8
         s_and_b32 s7, s4, 3
         s_mul_i32 s7, s7, 3
         s_add_u32 s7, s7, s5
         s_sub_u32 s7, s7, 11
         s_cmp_lt_u32 s5, 11
         s_cselect_b32 s77, s5, s7
         s_cselect_b32 s7, s4, s78
         s_mul_i32 s6, s77, 6
         s_min_u32 s6, s6, 58
         s_lshl_b32 s7, s7, 6
         s_add_u32 s6, s6, s7
         s_cmp_eq_u32 s2, 107
         s_cbranch_scc1 L_clear
         L_cleared:
         s_cmp_ge_u32 s3, 6
         s_cbranch_scc1 L_ssm_u
         s_add_u32 s7, s6, s3
         v_lshlrev_b32 v4, 2, v0
         v_mov_b32 v5, 0
         s_lshl_b32 s10, s7, 8
         s_lshl_b32 s11, s7, 1
         s_waitcnt lgkmcnt(0)''')
    sync_srds()
    srd(48, 18, 19, 163840); srd(64, 26, 27, 1280)
    e('''buffer_load_dword v6, v4, s[48:51], s10 offen
         buffer_load_ushort v10, v5, s[64:67], s11 offen''')
    srd(52, 20, 21, 163840); srd(56, 22, 23, 163840); srd(60, 24, 25, 163840); srd(44, 28, 29, 1280)
    e('''buffer_load_dword v7, v4, s[52:55], s10 offen
         buffer_load_dword v8, v4, s[56:59], s10 offen
         buffer_load_dword v9, v4, s[60:63], s10 offen
         buffer_load_ushort v11, v5, s[44:47], s11 offen
         s_barrier''')
    e('s_cmp_eq_u32 s77, 11\n s_cbranch_scc1 L_pb0')
    kgen()
    e(f'''s_cmp_eq_u32 s3, 0
          s_cbranch_scc0 L_kg_done
          s_and_b32 s89, s6, 0xffc0
          s_add_u32 s89, s89, s77
          s_lshl_b32 s89, s89, 2
          s_add_u32 s89, s89, {24*256}''')
    join()
    e('L_kg_done:')
    stamp(0, 1)
    e('s_branch L_ssm_conv')
    e('L_clear:\n s_waitcnt lgkmcnt(0)')
    sync_srds()
    e(f'''s_lshl_b32 s8, s3, 10
          v_lshl_add_u32 v2, v0, 4, s8
          v_mov_b32 v4, 0
          v_mov_b32 v5, 0
          v_mov_b32 v6, 0
          v_mov_b32 v7, 0
          s_movk_i32 s8, 0x2000
          buffer_store_dwordx4 v[4:7], v2, s[{FLG}:{FLG+3}], 0 offen sc1
          buffer_store_dwordx4 v[4:7], v2, s[{FLG}:{FLG+3}], s8 offen sc1
          s_waitcnt vmcnt(0)
          s_barrier
          s_cmp_eq_u32 s3, 0
          s_cbranch_scc0 L_cleared
          v_mov_b32 v5, 1
          s_mov_b64 exec, 1
          buffer_store_dword v5, v4, s[{DBG}:{DBG+3}], 0 offen sc1
          s_mov_b64 exec, -1
          s_branch L_cleared''')
    e('L_ssm_u:')
    U = 32
    e('''s_sub_u32 s8, s3, 6
         s_cmp_eq_u32 s8, 0
         s_cselect_b32 s9, s4, s78
         s_lshl_b32 s9, s9, 7
         s_mul_i32 s10, s5, 147
         s_mul_i32 s11, s10, 1280
         s_add_u32 s9, s9, s11
         v_mul_u32_u24 v2, 1280, v0
         v_mul_u32_u24 v3, 5120, v0
         s_lshr_b32 s10, s10, 8
         s_add_u32 s10, s10, s8
         s_waitcnt lgkmcnt(0)''')
    srd(44, 16, 17, 2048*1280)
    sync_srds()
    e('s_barrier')
    if int(OPT.get('upf', 1)):
        e('s_mov_b32 exec_hi, 0x1ffff')
        for n in range(3):
            e(f'buffer_load_dword v{4+n}, v2, s[44:47], s9 offen')
            if n < 2: e(f's_add_u32 s9, s9, {49*1280}')
        e('s_mov_b32 exec_hi, -1')
    e('s_cmp_eq_u32 s77, 11\n s_cbranch_scc1 L_pb0')
    e('s_lshl_b32 s9, s6, 1')
    for n in range(4):
        g = U + 20*n
        e(f'''s_add_u32 s11, s10, {2*n}
              s_and_b32 s11, s11, 7
              s_lshl_b32 s{48+n}, s11, 9
              s_mul_i32 s11, s11, {256*1280}
              s_add_u32 s11, s11, s9''')
        for r in range(4):
            e(f'buffer_load_dwordx3 {vr(g+4*r,3)}, v3, s[44:47], s11 offen offset:{1280*r}')
        e(f'''s_sub_u32 s11, s11, 1280
              v_mov_b32 v{8+n}, s11
              s_mov_b64 exec, 1
              buffer_load_dwordx3 {vr(g+16,3)}, v{8+n}, s[44:47], 0 offen
              s_mov_b64 exec, -1''')
    e(f'''v_lshlrev_b32 v14, 3, v0
          v_add_u32 v14, {CB}, v14
          s_mov_b32 s12, 0x05040100
          s_mov_b32 s13, 0x07060302''')
    for n in range(4):
        g = U + 20*n
        e(f'''v_add_u32 v{24+2*n}, s{48+n}, v14
              v_add_u32 v{25+2*n}, {3*CHS}, v{24+2*n}
              s_waitcnt vmcnt({15-5*n})''')
        for c in range(3):
            e(f'v_mov_b32_dpp v{g+16+c}, v{g+12+c} wave_shr:1 row_mask:0xf bank_mask:0xf')
        for ch in range(6):
            c = ch >> 1; sel = 12 + (ch & 1); t = 112 + 4*(6*(n&1) + ch); ar = 24 + 2*n
            e(f'''v_perm_b32 v{t}, v{g+4+c}, v{g+c}, s{sel}
                  v_perm_b32 v{t+1}, v{g+12+c}, v{g+8+c}, s{sel}
                  v_perm_b32 v{t+2}, v{g+c}, v{g+16+c}, s{sel}
                  v_perm_b32 v{t+3}, v{g+8+c}, v{g+4+c}, s{sel}
                  ds_write_b64 v{ar + ch//3}, {vr(t,2)} offset:{(ch%3)*CHS+32}
                  ds_write_b64 v{ar + ch//3}, {vr(t+2,2)} offset:{(ch%3)*CHS+UO+28}''')
    stamp(0, 1)
    e('L_ssm_conv:')
    e(f'''s_and_b32 s8, s3, 3
          s_lshr_b32 s9, s3, 2
          s_mul_i32 s10, s9, {3*CHS}
          s_mov_b32 s11, 0
          s_mov_b32 s14, 0
          s_cmp_eq_u32 s8, 1
          s_cselect_b32 s11, {6*64}, s11
          s_cselect_b32 s14, {CHS - 8*64}, s14
          s_cmp_eq_u32 s8, 2
          s_cselect_b32 s11, {2*CHS}, s11
          s_cselect_b32 s14, {(-CHS + 2*64) & 0xffffffff}, s14
          s_cmp_eq_u32 s8, 3
          s_cselect_b32 s11, {2*CHS + 2*64}, s11
          s_add_u32 s10, s10, s11
          s_add_u32 s10, s10, {CB}''')
    e(f'''v_and_b32 v4, 15, v0
          v_lshrrev_b32 v5, 4, v0
          v_add_u32 v6, 1, v4
          v_and_b32 v7, 1, v6
          v_mul_u32_u24 v7, {UO}, v7
          v_lshrrev_b32 v6, 1, v6
          v_lshl_add_u32 v7, v6, 2, v7
          v_lshlrev_b32 v6, 4, v5
          v_sub_u32 v7, v7, v6
          v_add_u32 v7, 48, v7
          v_add_u32 v8, s10, v7
          v_add_u32 v9, 1024, v8
          v_add_u32 v10, 2048, v8
          v_add_u32 v11, 3072, v8
          v_lshlrev_b32 v7, 5, v4
          v_add_u32 v7, v7, v6
          v_sub_u32 v7, {RB+528}, v7
          v_add_u32 v12, s10, v7''')
    ACC = 32; F = 64
    for i in range(32): e(f'v_mov_b32 v{ACC+i}, 0')
    e('s_cmp_lt_u32 s3, 4\n s_cbranch_scc1 L_cv_lo')
    hpre_setup()
    e('s_mov_b32 s93, 0\n s_branch L_cv_go\n L_cv_lo:')
    srd(56, 34, 35, 1728*1280)
    srd(52, 42, 43, W_BYTES, WS_W)
    e(f'''s_lshr_b32 s68, s6, 6
          s_mul_i32 s68, s68, 11
          s_add_u32 s68, s68, s77
          s_lshl_b32 s68, s68, 2
          s_add_u32 s68, s68, s3
          s_mul_i32 s69, s68, 1214
          s_lshr_b32 s69, s69, 16
          s_mul_i32 s70, s69, 54
          s_sub_u32 s70, s68, s70
          s_lshl_b32 s71, s69, 6
          s_add_u32 s71, s71, s70
          s_lshl_b32 s71, s71, 2
          s_add_u32 s71, s71, {16*256}
          s_cmp_lt_u32 s68, 432
          s_cselect_b32 s71, s71, 0x40000000
          s_mul_i32 s92, s68, 5120
          s_mul_i32 s70, s70, {32*1280}
          s_mul_i32 s69, s69, 160
          s_add_u32 s69, s69, s70
          s_mov_b32 s93, 99
          v_lshlrev_b32 v192, 4, v0''')
    for n in range(5):
        e(f'''v_add_u32 v13, {64*n}, v0
              v_mul_u32_u24 v14, 6554, v13
              v_lshrrev_b32 v14, 16, v14
              v_mul_u32_u24 v14, {1280-160}, v14
              v_lshl_add_u32 v{193+n}, v13, 4, v14''')
    e('L_cv_go:\n s_waitcnt lgkmcnt(0)\n s_barrier')
    stamp(0, 2)
    e('s_cmp_lt_u32 s3, 4\n s_cbranch_scc1 L_cv_lo2')
    e('buffer_load_dword v194, v192, s[52:55], s92 offen sc1\n s_branch L_cv_go2\n L_cv_lo2:')
    for n in range(5):
        e(f'buffer_load_dwordx4 {vr(200+4*n,4)}, v{193+n}, s[56:59], s69 offen')
    e('L_cv_go2:')
    def reads(st):
        b = F + 64*st
        r = []
        for m in range(8):
            r.append(f'ds_read_b128 {vr(b+32+4*m,4)}, v12 offset:{(7-m)*512}')
            o = 128*(m & 1)
            r.append(f'ds_read2_b32 {vr(b+4*m,2)}, v{8+m//2} offset0:{o} offset1:{o+1}')
            r.append(f'ds_read2_b32 {vr(b+4*m+2,2)}, v{8+m//2} offset0:{o+2} offset1:{o+3}')
        return r
    def adv(src):
        return [f'v_add_u32 v{8+i}, {src}, v{8+i}' for i in range(5)]
    def mfmas(st):
        b = F + 64*st
        mm = []
        for m in range(8):
            for h in range(m, 8):
                mm.append(f'v_mfma_f32_16x16x32_bf16 {vr(ACC+4*h,4)}, {vr(b+4*m,4)}, {vr(b+32+4*(h-m),4)}, {vr(ACC+4*h,4)}')
        return mm
    def unit(st, other):
        other = list(other)
        for i, m in enumerate(mfmas(st)):
            e(m)
            if other: e(other.pop(0))
        assert not other
        e('s_waitcnt lgkmcnt(0)')
    for r in reads(0): e(r)
    e('s_mov_b32 s15, 0\n s_add_u32 s14, s14, 64\n s_waitcnt lgkmcnt(0)')
    e('L_conv_loop:')
    unit(0, adv(64) + reads(1))
    e('''s_cmp_eq_u32 s15, s93
         s_cbranch_scc0 L_conv_np
         buffer_load_dword v195, v193, s[52:55], s92 offen sc1
         L_conv_np:''')
    unit(1, adv('s14') + reads(0))
    stamp(0, 's15')
    e('''s_mov_b32 s14, 64
         s_add_u32 s15, s15, 1
         s_cmp_eq_u32 s15, 1
         s_cbranch_scc0 L_conv_nf
         s_cmp_lt_u32 s3, 4
         s_cbranch_scc0 L_conv_ns
         s_add_u32 s11, s92, 4096
         s_waitcnt vmcnt(0)''')
    for n in range(4):
        e(f'buffer_store_dwordx4 {vr(200+4*n,4)}, v192, s[52:55], s92 offen offset:{1024*n} sc1')
    e(f'''buffer_store_dwordx4 {vr(216,4)}, v192, s[52:55], s11 offen sc1
          L_conv_ns:
          s_sub_u32 s11, s8, 1
          s_cmp_lt_u32 s11, 2
          s_cbranch_scc0 L_conv_loop''')
    e(f'''s_mul_i32 s12, s9, 3
          s_lshl_b32 s11, s11, 1
          s_add_u32 s12, s12, s11
          s_mul_i32 s12, s12, {STGS}
          s_add_u32 s12, s12, {STG}
          v_lshlrev_b32 v13, 4, v0
          v_add_u32 v13, s12, v13
          s_nop 2''')
    for h in range(8): e(f'ds_write_b128 v13, {vr(ACC+4*h,4)} offset:{1024*h}')
    for i in range(32): e(f'v_mov_b32 v{ACC+i}, 0')
    e('''s_nop 1
         s_branch L_conv_loop
         L_conv_nf:
         s_cmp_lt_u32 s15, 3
         s_cbranch_scc0 L_conv_end
         s_cmp_lt_u32 s3, 4
         s_cbranch_scc0 L_conv_loop
         s_waitcnt vmcnt(0)''')
    flag('s71', 1)
    e('s_nop 1\n s_branch L_conv_loop\n L_conv_end:')
    stamp(0, 3)
    e('s_cmp_eq_u32 s3, 4\n s_cbranch_scc0 L_fin_np')
    poll_setup()
    xcc_load()
    e(f'buffer_load_dword v247, v248, s[{FLG}:{FLG+3}], 0 offen sc1\n L_fin_np:')
    e(f'''s_add_u32 s11, s8, 1
          s_lshr_b32 s11, s11, 1
          s_mul_i32 s12, s9, 3
          s_add_u32 s11, s11, s12
          s_mul_i32 s12, s11, {STGS}
          v_lshlrev_b32 v13, 4, v0
          v_add_u32 v13, s12, v13
          s_cmp_eq_u32 s77, 10
          s_cselect_b32 s13, 2, 0
          s_cmp_lt_u32 s11, s13
          s_cselect_b32 s13, 0x40000, 0
          s_add_u32 s11, s11, s13
          s_add_u32 s11, s11, s6
          s_lshl_b32 s11, s11, 12
          v_lshlrev_b32 v14, 6, v4
          v_lshl_add_u32 v14, v5, 4, v14
          s_nop 0''')
    srd(48, 42, 43, Y_BYTES, WS_Y)
    e('s_cmp_eq_u32 s8, 1\n s_cbranch_scc0 L_fin_a')
    for h in range(4, 8): e(f'ds_write_b128 v13, {vr(ACC+4*h,4)} offset:{1024*h}')
    e('L_fin_a:\n s_cmp_eq_u32 s8, 2\n s_cbranch_scc0 L_fin_b')
    for h in range(0, 4): e(f'ds_write_b128 v13, {vr(ACC+4*h,4)} offset:{1024*h}')
    e('L_fin_b:\n s_waitcnt lgkmcnt(0)\n s_barrier')
    e('s_cmp_eq_u32 s3, 4\n s_cbranch_scc0 L_fin_nq\n s_waitcnt vmcnt(0)')
    xcc_check()
    poll_check()
    e('s_cselect_b32 s79, 1, 0\n L_fin_nq:')
    def fin(hs):
        for h in hs: e(f'ds_read_b128 {vr(F+4*h,4)}, v13 offset:{1024*h}')
        for n, h in enumerate(hs):
            e(f's_waitcnt lgkmcnt({len(hs)-1-n})')
            for r in range(4): e(f'v_add_f32 v{F+4*h+r}, v{F+4*h+r}, v{ACC+4*h+r}')
            o = F + 64 + 2*h
            e(f'v_cvt_pk_bf16_f32 v{o}, v{F+4*h}, v{F+4*h+1}')
            e(f'v_cvt_pk_bf16_f32 v{o+1}, v{F+4*h+2}, v{F+4*h+3}')
            if h & 1: e(f'buffer_store_dwordx4 {vr(o-2,4)}, v14, s[48:51], s11 offen offset:{1024*(h>>1)} sc1')
    e('s_cmp_eq_u32 s8, 2\n s_cbranch_scc1 L_fin_c')
    fin(range(0, 4))
    e('L_fin_c:\n s_cmp_eq_u32 s8, 1\n s_cbranch_scc1 L_fin_d')
    fin(range(4, 8))
    e('L_fin_d:')
    stamp(0, 4)
    e('s_branch L_pb')

def hpre_setup():
    srd(52, 42, 43, H_BYTES, WS_H)
    e(f'''s_lshl_b32 s12, s5, 2
          s_add_u32 s12, s12, s3
          s_sub_u32 s12, s12, 4
          s_lshl_b32 s12, s12, 7
          v_add_u32 v192, s12, v0
          v_add_u32 v193, 64, v192
          v_min_u32 v192, 6911, v192
          v_min_u32 v193, 6911, v193
          v_lshlrev_b32 v192, 7, v192
          v_lshlrev_b32 v193, 7, v193
          s_mul_i32 s92, s4, {16*54*1024}''')
    if not int(OPT.get('hpre', 1)): e('s_mov_b32 s92, 0x40000000')
def poll_setup():
    e(f'''s_lshr_b32 s90, s5, 4
          s_lshl_b32 s91, s4, 1
          s_add_u32 s90, s90, s91
          s_lshl_b32 s90, s90, 8
          s_and_b32 s91, s5, 7
          s_lshl_b32 s91, s91, 8
          s_add_u32 s91, s91, {16*256 - 36}
          v_lshl_add_u32 v248, v0, 2, s90
          v_min_u32 v249, 62, v0
          v_lshl_add_u32 v249, v249, 2, s91
          v_cmp_gt_u32 vcc, 9, v0
          s_nop 1
          v_cndmask_b32 v248, v249, v248, vcc''')
def poll_check(v=247):
    e(f'''v_cmp_eq_u32 vcc, 1, v{v}
         s_nop 3
         s_cmp_eq_u64 vcc, -1''')

def kgen():
    L2E = 1.4426950408889634
    l2e_hi = struct.unpack('<f', struct.pack('<f', L2E))[0]
    l2e_lo = L2E - l2e_hi
    e(f'''s_mul_i32 s12, s3, {CHS}
          s_add_u32 s12, s12, {CB}
          v_add_u32 v12, s12, v4
          v_mov_b32 v14, 0
          v_mov_b32 v15, 0
          v_lshl_add_u32 v13, v0, 2, v12
          s_mov_b64 exec, 0xff
          ds_write_b32 v12, v14
          ds_write_b32 v12, v14 offset:{UO-4}
          s_mov_b32 exec_lo, -1
          s_mov_b32 exec_hi, 0x0fffffff
          ds_write_b64 v13, v[14:15] offset:{RB+4096}
          s_mov_b64 exec, -1''')
    e(f'''s_mul_i32 s13, s3, {STGS}
          s_mov_b32 m0, s13
          v_and_b32 v18, 15, v0
          v_lshrrev_b32 v19, 4, v0
          v_mul_u32_u24 v17, 544, v18
          v_lshl_add_u32 v17, v19, 4, v17
          v_add_u32 v17, s13, v17
          v_mov_b32 v16, 0x3c00
          ds_write_addtid_b32 v16
          ds_write_addtid_b32 v16 offset:256''')
    e(f'''s_add_u32 s12, s12, {RB}
          v_lshlrev_b32 v12, 4, v18
          v_sub_u32 v12, s12, v12
          v_lshlrev_b32 v13, 9, v19
          v_sub_u32 v24, v12, v13
          v_add_u32 v24, {2040-256}, v24
          v_lshlrev_b32 v13, 8, v19
          v_sub_u32 v25, v12, v13
          v_add_u32 v25, 3060, v25
          v_lshrrev_b32 v13, 1, v19
          v_lshlrev_b32 v13, 8, v13
          v_sub_u32 v26, v12, v13
          v_and_b32 v13, 1, v19
          v_lshlrev_b32 v13, 3, v13
          v_sub_u32 v26, v26, v13
          s_mov_b32 s68, {hex(f2u(l2e_hi))}
          s_mov_b32 s69, {hex(f2u(l2e_lo))}
          s_mov_b32 s70, {hex(f2u(0.6931471805599453))}
          s_mov_b32 s71, 0xffff0000
          s_waitcnt vmcnt(4)''')
    stamp(0, 5)
    if STAMP: e('s_mov_b32 m0, s13')
    T = 28
    e('v_lshlrev_b32 v10, 16, v10\n v_lshlrev_b32 v20, 16, v6\n v_and_b32 v21, s71, v6')
    xs = [(10, T, T+1), (20, T+2, T+3), (21, T+4, T+5)]
    for fmt in ('v_mul_f32 v{t}, s68, v{x}', 'v_fma_f32 v{lo}, v{x}, s68, -v{t}', 'v_fma_f32 v{lo}, v{x}, s69, v{lo}',
                'v_exp_f32 v{t}, v{t}', 'v_mul_f32 v{lo}, s70, v{lo}', 'v_fma_f32 v{x}, v{t}, v{lo}, v{t}'):
        for x, t, lo in xs: e(fmt.format(x=x, t=t, lo=lo))
    e('''v_cvt_pk_bf16_f32 v10, v10, v10
         v_cvt_pk_bf16_f32 v20, v20, v21
         v_lshlrev_b32 v10, 16, v10
         v_and_b32 v21, s71, v20
         v_lshlrev_b32 v20, 16, v20
         v_mul_f32 v20, v20, v10
         v_mul_f32 v21, v21, v10
         v_mul_f32 v20, 0xbfb8aa3b, v20
         v_mul_f32 v21, 0xbfb8aa3b, v21
         s_waitcnt vmcnt(0)
         v_lshlrev_b32 v22, 16, v7
         v_and_b32 v23, s71, v7
         v_mul_f32 v22, v22, v10
         v_mul_f32 v23, v23, v10
         v_mul_f32 v22, 0.15915494, v22
         v_mul_f32 v23, 0.15915494, v23''')
    PA, PB, QA, QB = 44, 48, 52, 56
    MH = 60
    X = 84
    XK = 100
    XL = 116
    XM = 132
    YY = 100
    TT = 228
    BF = 152; AF = 184; D = 216
    ce = [(PA, 20, 22, 1, T), (PA+2, 21, 23, 1, T+4), (QA, 20, 22, 128.0, T+8), (QA+2, 21, 23, 128.0, T+12)]
    ce2 = []
    for dst, a, p, sc, t in ce:
        if sc != 1:
            e(f'v_mul_f32 v{t}, {hex(f2u(sc))}, v{a}\n v_mul_f32 v{t+1}, {hex(f2u(sc))}, v{p}')
            a, p = t, t+1
        ce2.append((dst, a, p, t))
    for fmt in ('v_rndne_f32 v{t2}, v{p}', 'v_exp_f32 v{t3}, v{a}', 'v_sub_f32 v{t2}, v{p}, v{t2}', 'v_cos_f32 v{d0}, v{t2}',
                'v_sin_f32 v{d1}, v{t2}', 'v_mul_f32 v{d0}, v{d0}, v{t3}', 'v_mul_f32 v{d1}, v{d1}, v{t3}'):
        for dst, a, p, t in ce2: e(fmt.format(t2=t+2, t3=t+3, p=p, a=a, d0=dst, d1=dst+1))
    norm = f'''v_and_b32 v28, 0x7fff7fff, v8
          v_and_b32 v29, 0x7fff7fff, v9
          v_pk_max_u16 v28, v28, v29
          v_lshlrev_b32 v29, 16, v28
          v_max_u32 v28, v28, v29
          NOP
          v_max_u32_dpp v28, v28, v28 row_ror:8 row_mask:0xf bank_mask:0xf
          NOP
          v_max_u32_dpp v28, v28, v28 row_ror:4 row_mask:0xf bank_mask:0xf
          NOP
          v_max_u32_dpp v28, v28, v28 row_ror:2 row_mask:0xf bank_mask:0xf
          NOP
          v_max_u32_dpp v28, v28, v28 row_ror:1 row_mask:0xf bank_mask:0xf
          NOP
          v_readlane_b32 s64, v28, 0
          v_readlane_b32 s65, v28, 16
          v_readlane_b32 s66, v28, 32
          v_readlane_b32 s67, v28, 48
          NOP
          s_max_u32 s64, s64, s65
          s_max_u32 s66, s66, s67
          s_max_u32 s64, s64, s66
          s_lshr_b32 s64, s64, 23
          s_max_u32 s64, s64, 1
          s_min_u32 s64, s64, 252
          s_sub_u32 s65, 254, s64
          s_lshl_b32 s65, s65, 23
          s_add_u32 s64, s64, 1
          s_lshl_b32 s64, s64, 23
          v_lshlrev_b32 v28, 16, v8
          v_lshlrev_b32 v29, 16, v9
          v_and_b32 v30, s71, v8
          v_and_b32 v31, s71, v9
          v_mul_f32 v28, s65, v28
          v_mul_f32 v29, s65, v29
          v_mul_f32 v30, s65, v30
          v_mul_f32 v31, s65, v31
          v_mul_f32 v10, s64, v10
          v_cvt_pk_f16_f32 v{X}, v28, -v29
          v_cvt_pk_f16_f32 v{X+1}, v30, -v31'''.split('NOP')
    def sq(dst, x):
        for k in range(2):
            e(f'v_pk_mul_f32 {vr(dst+2*k,2)}, {vr(x+2*k,2)}, {vr(x+2*k,2)} op_sel:[0,0] op_sel_hi:[1,0]')
        for k in range(2):
            e(f'v_pk_fma_f32 {vr(dst+2*k,2)}, {vr(x+2*k,2)}, {vr(x+2*k,2)}, {vr(dst+2*k,2)} op_sel:[1,1,0] op_sel_hi:[0,1,1] neg_lo:[0,1,0]')
    def cv(lg, x):
        e(f'v_cvt_pk_f16_f32 v{MH+2*lg}, v{x}, v{x+1}\n v_cvt_pk_f16_f32 v{MH+2*lg+1}, v{x+2}, v{x+3}')
    def M(k): return MH + 2*(k.bit_length()-1)
    def row(r, x):
        e(f'ds_write_addtid_b32 v{x} offset:{544*r}\n ds_write_addtid_b32 v{x+1} offset:{544*r+256}')
    p, pn, q, qn = PA, PB, QA, QB
    for i in range(7):
        e(norm[i])
        cv(i, p)
        if i >= 3: row(1 << (i-3), MH+2*i)
        if i < 5: cv(7+i, q)
        if i < 6: sq(pn, p); p, pn = pn, p
        if i < 4: sq(qn, q); q, qn = qn, q
    stamp(0, 6)
    def mulrows(items, conj):
        ng = 'neg_hi:[0,1,0]' if conj else 'neg_lo:[0,1,0]'
        for i in range(0, len(items), 2):
            grp = items[i:i+2]
            for r, dst, x, m in grp:
                for k in range(2): e(f'v_pk_mul_f16 v{dst+k}, v{x+k}, v{m+k} op_sel:[0,0] op_sel_hi:[1,0]')
            for r, dst, x, m in grp:
                for k in range(2): e(f'v_pk_fma_f16 v{dst+k}, v{x+k}, v{m+k}, v{dst+k} op_sel:[1,1,0] op_sel_hi:[0,1,1] {ng}')
            for r, dst, x, m in grp:
                if r is not None: row(r, dst)
    def rdfr(dst):
        for s_ in range(8): e(f'ds_read_b128 {vr(dst+4*s_,4)}, v17 offset:{64*s_}')
    def mm(d):
        for s_ in range(8):
            c = '0' if s_ == 0 else vr(d,4)
            e(f'v_mfma_f32_16x16x32_f16 {vr(d,4)}, {vr(AF+4*s_,4)}, {vr(BF+4*s_,4)}, {c}')
    Y = {1: M(8), 2: M(16), 4: M(32), 3: YY, 5: YY+2, 6: YY+4, 7: YY+6}
    mulrows([(3, Y[3], Y[1], M(16)), (5, Y[5], Y[1], M(32)), (6, Y[6], Y[2], M(32)), (7, Y[7], Y[3], M(32))], False)
    mulrows([(8+j, TT+2*j, Y[j], M(64)) for j in range(1, 8)], False)
    rdfr(BF)
    row(0, X)
    mulrows([(1, X+2, X, M(1)), (2, X+4, X, M(2)), (3, X+6, X+2, M(2)), (4, X+8, X, M(4)),
             (5, X+10, X+2, M(4)), (6, X+12, X+4, M(4)), (7, X+14, X+6, M(4)), (8, XK, X, M(128))], True)
    mulrows([(8+a, XK+2*a, X+2*a, M(128)) for a in range(1, 8)], True)
    rdfr(AF)
    e('s_cmp_eq_u32 s3, 0\n s_cbranch_scc0 L_kg_nj')
    join_load()
    e('L_kg_nj:')
    src = [X, X+4, X+8, X+12, XK, XK+4, XK+8, XK+12]
    it = [(n, XL+2*n, src[n], M(256)) for n in range(8)] + [(8, TT, X, M(2048))]
    mulrows(it[:4], True)
    e('s_waitcnt lgkmcnt(8)')
    mm(D)
    mulrows(it[4:], True)
    rdfr(AF)
    s2 = [X, X+8, XK, XK+8, XL, XL+4, XL+8, XL+12]
    it = [(4*(n >> 1) + (n & 1), XM+2*n, s2[n], M(512)) for n in range(8)]
    mulrows(it[:4], True)
    e('s_waitcnt lgkmcnt(8)')
    mm(D+4)
    mulrows(it[4:], True)
    s3 = [X, XK, XL, XL+8, XM, XM+4, XM+8, XM+12]
    mulrows([(4*(i >> 1) + 2 + (i & 1), TT+2*i, s3[i], M(1024)) for i in range(8)], True)
    rdfr(AF)
    B1 = D+4
    e(f'''v_mul_f32 v{D}, v{D}, v10
          v_lshlrev_b32 v11, 16, v11
          s_mov_b64 exec, 1
          v_add_f32 v{D}, v{D}, v11
          s_mov_b64 exec, -1''')
    for i in range(1, 8): e(f'v_mul_f32 v{D+i}, v{D+i}, v10')
    e('s_waitcnt lgkmcnt(0)')
    mm(D+8)
    e(f'''v_cvt_pk_bf16_f32 v28, v{B1+3}, v{B1+3}
          v_cvt_pk_bf16_f32 v29, v{B1+2}, v{B1+2}
          v_cvt_pk_bf16_f32 v30, v{B1+2}, v{B1+1}
          v_cvt_pk_bf16_f32 v31, v{B1}, v{B1}
          v_cvt_pk_bf16_f32 v32, v{D+3}, v{D+2}
          v_cvt_pk_bf16_f32 v33, v{D+1}, v{D}
          s_nop 1''')
    A = D+8
    e(f'''v_mul_f32 v{A+2}, v{A+2}, v10
          v_mul_f32 v{A+3}, v{A+3}, v10
          v_mul_f32 v{A}, v{A}, v10
          v_mul_f32 v{A+1}, v{A+1}, v10
          v_mov_b32_dpp v34, v{A+2} quad_perm:[0,0,2,2] row_mask:0xf bank_mask:0xf
          v_mov_b32_dpp v35, v{A+3} quad_perm:[0,0,2,2] row_mask:0xf bank_mask:0xf
          v_cvt_pk_bf16_f32 v36, v{A+2}, v{A+2}
          v_cvt_pk_bf16_f32 v37, v{A+2}, v34
          v_cvt_pk_bf16_f32 v38, v{A+3}, v{A+3}
          v_cvt_pk_bf16_f32 v39, v{A+3}, v35
          ds_write2_b32 v24, v36, v36 offset0:64 offset1:65
          ds_write2_b32 v24, v36, v37 offset0:66 offset1:67
          ds_write2_b32 v24, v38, v38 offset0:0 offset1:1
          ds_write2_b32 v24, v38, v39 offset0:2 offset1:3
          v_cvt_pk_bf16_f32 v40, v{A+1}, v{A+1}
          v_cvt_pk_bf16_f32 v41, v{A+1}, v{A}
          v_cvt_pk_bf16_f32 v42, v{A}, v{A}
          ds_write2_b32 v25, v40, v41 offset0:0 offset1:1
          ds_write2_b32 v25, v42, v42 offset0:2 offset1:3
          s_mov_b32 exec_lo, 0
          s_mov_b32 exec_hi, 1
          ds_write2_b32 v12, v31, v31 offset0:0 offset1:1
          s_mov_b32 exec_lo, -1
          s_mov_b32 exec_hi, 0
          ds_write_b16 v25, v28 offset:510
          ds_write2_b32 v25, v29, v30 offset0:128 offset1:129
          ds_write_b32 v25, v31 offset:520
          ds_write_b16 v25, v31 offset:524
          s_mov_b64 exec, -1
          ds_write_b64 v26, v[32:33] offset:4088''')

HR = 0; W2R = 32768; NS2 = 4
def k2():
    e('L_pb0:\n s_waitcnt vmcnt(0)\n s_cmp_lt_u32 s3, 4\n s_cbranch_scc1 L_pb')
    hpre_setup()
    e('''buffer_load_dword v194, v192, s[52:55], s92 offen sc1
         buffer_load_dword v195, v193, s[52:55], s92 offen sc1
         s_cmp_eq_u32 s3, 4
         s_cbranch_scc0 L_pb''')
    join_load()
    join()
    e('L_pb:')
    stamp(0, 32)
    e('''s_lshl_b32 s6, s4, 4
         s_lshr_b32 s8, s5, 3
         s_lshl_b32 s8, s8, 2
         s_add_u32 s6, s6, s8
         s_and_b32 s7, s5, 7
         s_mul_i32 s7, s7, 80
         s_cmp_lt_u32 s3, 4
         s_cbranch_scc1 L_g2c''')
    e('''s_sub_u32 s9, s3, 4
         v_lshlrev_b32 v10, 4, v0
         s_lshr_b32 s8, s5, 3
         s_mul_i32 s8, s8, %d
         s_add_u32 s10, s6, s9
         s_mul_i32 s10, s10, %d
         s_lshl_b32 s12, s8, 11
         s_add_u32 s10, s10, s12
         s_mul_i32 s13, s9, 3
         s_min_u32 s13, s13, 8
         s_lshl_b32 s13, s13, 10
         s_mul_i32 s11, s7, %d
         s_add_u32 s11, s11, s13
         s_mul_i32 s12, s8, 10240
         s_add_u32 s11, s11, s12
         s_add_u32 s11, s11, %d
         s_lshl_b32 s12, s9, 11
         s_add_u32 s13, s13, %d
         s_cmp_lt_u32 s9, 2
         s_cselect_b32 s15, 0, 0x40000000
         v_add_u32 v11, s15, v10
         s_mov_b32 s64, %d
         s_cselect_b32 s64, 2048, s64
         s_cselect_b32 s65, -1, 0''' % (int(OPT.get('rot2', 0)), 54*1024, 2*1728, WS_W, W2R, W2R + NS2*10240))
    srd(44, 42, 43, WS_W + W_BYTES)
    e('''s_cmp_eq_u32 s3, 4
         s_cbranch_scc0 L_g2l_go
         s_cmp_lg_u32 s79, 0
         s_cbranch_scc1 L_g2l_ok''')
    poll_setup()
    e(f'''L_g2l_poll:
          buffer_load_dword v247, v248, s[{FLG}:{FLG+3}], 0 offen sc1
          s_waitcnt vmcnt(0)''')
    poll_check()
    e('''s_cbranch_scc1 L_g2l_ok
         s_sleep 2
         s_add_u32 s94, s94, 1
         s_cmp_lt_u32 s94, 0x100000
         s_cbranch_scc1 L_g2l_poll
         L_g2l_ok:
         s_cmp_eq_u32 s95, 2
         s_cbranch_scc1 L_g2l_go''')
    xcc_load()
    e('s_waitcnt vmcnt(0)')
    xcc_check()
    e('''s_cmp_eq_u32 s95, 2
         s_cbranch_scc1 L_g2l_go
         buffer_inv sc1
         s_waitcnt vmcnt(0)
         L_g2l_go:
         s_barrier''')
    stamp(0, 33)
    if int(OPT.get('wb', 0)):
        e('s_cmp_eq_u32 s5, 31\n s_cbranch_scc0 L_g2l_nwb\n s_cmp_eq_u32 s3, 7\n s_cbranch_scc0 L_g2l_nwb\n buffer_wbl2 sc1\n L_g2l_nwb:')
    e('s_mov_b32 s14, 0')
    e('L_g2l_loop:')
    e('''s_mov_b32 m0, s13
         s_and_b32 s15, s13, s65
         buffer_load_dwordx4 v10, s[44:47], s11 offen sc1 lds
         buffer_load_dwordx4 v10, s[44:47], s11 offen offset:1024 sc1 lds
         s_add_u32 m0, s15, s64
         s_add_u32 s15, s11, 2048
         buffer_load_dwordx4 v11, s[44:47], s15 offen sc1 lds
         s_mov_b32 m0, s12
         s_add_u32 s11, s11, 10240
         buffer_load_dwordx4 v10, s[44:47], s10 offen sc1 lds
         buffer_load_dwordx4 v10, s[44:47], s10 offen offset:1024 sc1 lds
         s_add_u32 s10, s10, 2048
         s_add_u32 s12, s12, 8192
         s_and_b32 s12, s12, %d
         s_add_u32 s13, s13, 10240
         s_cmp_ge_u32 s13, %d
         s_cselect_b32 s15, %d, 0
         s_sub_u32 s13, s13, s15
         s_add_u32 s8, s8, 1
         s_cmp_eq_u32 s8, 27
         s_cselect_b32 s15, %d, 0
         s_sub_u32 s10, s10, s15
         s_cmp_eq_u32 s8, 27
         s_cselect_b32 s15, %d, 0
         s_sub_u32 s11, s11, s15
         s_add_u32 s14, s14, 1
         s_cmp_lt_u32 s14, 3
         s_cbranch_scc1 L_g2l_loop''' % (NS2*8192-1, W2R + NS2*10240, NS2*10240, 54*1024, 1728*160))
    stamp_e('s14', 33)
    e('s_waitcnt vmcnt(10)\n s_barrier')
    stamp_b()
    e('''s_cmp_lt_u32 s14, 27
         s_cbranch_scc1 L_g2l_loop
         s_waitcnt vmcnt(5)
         s_barrier
         s_waitcnt vmcnt(0)
         s_barrier''')
    stamp_flush(35)
    e('s_endpgm')
    e('L_g2c:')
    ACC = 16
    FR = 56
    Y = 112
    e('''v_and_b32 v14, 15, v0
         v_lshrrev_b32 v15, 4, v0
         s_add_u32 s8, s6, s3
         s_lshl_b32 s8, s8, 4
         s_and_b32 s9, s3, 1''')
    for n in range(20): e(f'v_mov_b32 v{Y+n}, 0')
    srd(44, 42, 43, Y_BYTES, WS_Y)
    srd(48, 42, 43, G_BYTES, WS_G)
    srd(60, 38, 39, 2048*1280)
    e(f'''v_lshlrev_b32 v2, 14, v15
         v_lshrrev_b32 v1, 2, v14
         v_lshl_add_u32 v2, v1, 4, v2
         v_and_b32 v1, 3, v14
         v_lshl_add_u32 v2, v1, 1, v2
         s_lshl_b32 s10, s7, 12
         s_lshr_b32 s11, s4, 1
         s_lshl_b32 s11, s11, 10
         s_add_u32 s10, s10, s11
         s_and_b32 s11, s4, 1
         s_lshl_b32 s11, s11, 3
         s_add_u32 s10, s10, s11
         s_and_b32 s11, s8, 0xff
         s_lshl_b32 s11, s11, 2
         s_add_u32 s10, s10, s11
         v_lshlrev_b32 v5, 2, v14
         s_lshr_b32 s11, s7, 6
         s_lshl_b32 s11, s11, 8
         s_add_u32 s11, s11, {24*256}
         v_min_u32 v12, 10, v14
         v_lshl_add_u32 v12, v12, 2, s11
         v_and_b32 v1, 1, v15
         v_lshl_add_u32 v12, v1, 8, v12''')
    e('''v_mul_u32_u24 v3, 1280, v14
         v_lshl_add_u32 v3, v15, 3, v3
         s_mul_i32 s11, s8, 1280
         s_lshl_b32 s12, s7, 1
         s_add_u32 s11, s11, s12''')
    e('''s_lshr_b32 s13, s3, 1
         s_lshl_b32 s13, s13, 12
         s_lshl_b32 s12, s9, 10
         s_add_u32 s13, s13, s12
         v_lshlrev_b32 v7, 4, v0
         v_add_u32 v8, s13, v7
         v_lshrrev_b32 v9, 5, v0
         v_mul_u32_u24 v9, 2560, v9
         v_bfe_u32 v1, v0, 2, 3
         v_mul_u32_u24 v1, 160, v1
         v_add_u32 v9, v9, v1
         v_and_b32 v1, 3, v0
         v_lshl_add_u32 v9, v1, 3, v9
         s_mul_i32 s12, s9, 5120
         s_add_u32 s12, s12, %d
         v_add_u32 v9, s12, v9''' % W2R)
    for i in range(40): e(f'v_mov_b32 v{ACC+i}, 0')
    def reads(slot, st):
        b = FR + 28*st
        r = [f'ds_read_b128 {vr(b+20,4)}, v8 offset:{8192*slot}']
        for j in range(5):
            for half in range(2):
                r.append(f'ds_read_b64_tr_b16 {vr(b+4*j+2*half,2)}, v9 offset:{10240*slot+1280*half+32*j}')
            if j == 0: r.append(f'ds_read_b128 {vr(b+24,4)}, v8 offset:{8192*slot+2048}')
        return r
    def mfmas(st):
        b = FR + 28*st
        return [f'v_mfma_f32_16x16x32_bf16 {vr(ACC+20*ti+4*j,4)}, {vr(b+4*j,4)}, {vr(b+20+4*ti,4)}, {vr(ACC+20*ti+4*j,4)}' for j in range(5) for ti in range(2)]
    def step(rd, mm):
        rd = list(rd)
        if int(OPT.get('k2nc', 0)): rd = []; mm = []
        e('s_barrier')
        for m in mm:
            for _ in range(2):
                if rd: e(rd.pop(0))
            e(m)
        for r in rd: e(r)
        e('s_waitcnt lgkmcnt(0)')
    e('s_mov_b32 s15, 0\n s_barrier\n s_waitcnt vmcnt(0)')
    step(reads(0, 0), [])
    e('s_cmp_eq_u32 s3, 0\n s_cbranch_scc0 L_g2c_loop\n s_cmp_eq_u32 s89, 0\n s_cbranch_scc1 L_g2c_loop')
    flag('s89', 1)
    e('L_g2c_loop:')
    step(reads(1, 1), mfmas(0))
    step(reads(2, 0), mfmas(1))
    e('s_add_u32 s15, s15, 1\n s_cmp_eq_u32 s15, 7\n s_cbranch_scc1 L_g2c_done')
    step(reads(3, 1), mfmas(0))
    step(reads(0, 0), mfmas(1))
    YP = int(OPT.get('yp', 4))
    e(f'''s_cmp_eq_u32 s15, {YP}
          s_cbranch_scc1 L_g2c_yp
          s_cmp_eq_u32 s15, {YP+1}
          s_cbranch_scc0 L_g2c_loop
          L_g2c_yc:
          s_waitcnt vmcnt(0)
          v_cmp_eq_u32 vcc, 1, v13
          s_nop 3
          s_cmp_eq_u64 vcc, -1
          s_cbranch_scc1 L_g2c_yg
          s_sleep 2
          buffer_load_dword v13, v12, s[{FLG}:{FLG+3}], 0 offen sc1
          s_add_u32 s94, s94, 1
          s_cmp_lt_u32 s94, 0x100000
          s_cbranch_scc1 L_g2c_yc
          L_g2c_yg:
          s_lshl_b32 s13, s8, 2
          buffer_load_dword v6, v5, s[48:51], s13 offen sc1''')
    for n in range(20):
        e(f'buffer_load_short_d16_hi v{Y+n}, v2, s[44:47], s10 offen sc1')
        if n < 19: e(f's_add_u32 s10, s10, {4096 if n % 4 != 3 else 13*4096}')
    e(f'''s_branch L_g2c_loop
          L_g2c_yp:
          buffer_load_dword v13, v12, s[{FLG}:{FLG+3}], 0 offen sc1
          s_branch L_g2c_loop''')
    e('L_g2c_done:')
    for m in mfmas(0): e(m)
    stamp(0, 34)
    e(f'''s_mul_i32 s12, s3, 5120
          s_add_u32 s12, s12, {W2R}
          v_add_u32 v8, s12, v7
          s_xor_b32 s12, s3, 1
          s_mul_i32 s12, s12, 5120
          s_add_u32 s12, s12, {W2R}
          v_add_u32 v9, s12, v7
          s_mov_b32 s13, 0xffff0000
          s_cmp_eq_u32 s9, 0
          s_cbranch_scc1 L_g2c_k0''')
    for j in range(5): e(f'ds_write_b128 v8, {vr(ACC+4*j,4)} offset:{1024*j}')
    for i in range(20): e(f'v_mov_b32 v{ACC+i}, v{ACC+20+i}')
    e('s_branch L_g2c_x\n L_g2c_k0:')
    for j in range(5): e(f'ds_write_b128 v8, {vr(ACC+20+4*j,4)} offset:{1024*j}')
    e('L_g2c_x:')
    e('s_waitcnt vmcnt(0)')
    for p in range(10):
        y = Y + 2*p
        e(f'''v_mul_f32 v{y}, v{y}, v6
              v_mul_f32 v{y+1}, v{y+1}, v6
              v_cvt_pk_bf16_f32 v{y}, v{y}, v{y+1}
              v_and_b32 v{y+1}, s13, v{y}
              v_lshlrev_b32 v{y}, 16, v{y}''')
        if p == 3:
            e('s_waitcnt lgkmcnt(0)\n s_barrier')
            for j in range(5): e(f'ds_read_b128 {vr(FR+4*j,4)}, v9 offset:{1024*j}')
    e('''v_sub_f32 v6, 1.0, v6
         v_cvt_pk_bf16_f32 v6, v6, v6
         v_lshlrev_b32 v6, 16, v6''')
    for j in range(5):
        e(f's_waitcnt lgkmcnt({4-j})')
        for p in range(2):
            a = ACC + 4*j + 2*p; y = Y + 4*j + 2*p; x = FR + 4*j + 2*p; t = FR + 20 + 2*p
            e(f'''v_add_f32 v{a}, v{a}, v{x}
                  v_add_f32 v{a+1}, v{a+1}, v{x+1}
                  v_cvt_pk_bf16_f32 v{t}, v{a}, v{a+1}
                  v_and_b32 v{t+1}, s13, v{t}
                  v_lshlrev_b32 v{t}, 16, v{t}
                  v_mul_f32 v{t}, v{t}, v6
                  v_mul_f32 v{t+1}, v{t+1}, v6
                  v_cvt_pk_bf16_f32 v{t}, v{t}, v{t+1}
                  v_and_b32 v{t+1}, s13, v{t}
                  v_lshlrev_b32 v{t}, 16, v{t}
                  v_add_f32 v{t}, v{t}, v{y}
                  v_add_f32 v{t+1}, v{t+1}, v{y+1}
                  v_cvt_pk_bf16_f32 v{FR+28+2*j+p}, v{t}, v{t+1}''')
        e(f'buffer_store_dwordx2 {vr(FR+28+2*j,2)}, v3, s[60:63], s11 offen offset:{32*j} {OPT.get("ost", "").replace("+", " ")}')
    stamp_flush(35)
    e('L_end:\n L_code_end:\n s_endpgm')

k1()
k2()

HEAD = open(f'cdna_kernels/{NAME}.s.ref').read().split('; Override launch')[0]
HEAD += f'''; @launch grid=(256,1,1) block=(512,1,1) lds=163840
.amdgcn_target "amdgcn-amd-amdhsa--gfx950"
.text
.globl {NAME}_kernel
.type {NAME}_kernel,@function
.p2align 8
'''
def desc(n, vg):
    return f'''.p2align 6
.amdhsa_kernel {n}
  .amdhsa_next_free_vgpr {vg}
  .amdhsa_next_free_sgpr 102
  .amdhsa_accum_offset {vg}
  .amdhsa_group_segment_fixed_size 0
  .amdhsa_kernarg_size 112
  .amdhsa_user_sgpr_count 2
  .amdhsa_user_sgpr_kernarg_segment_ptr 1
  .amdhsa_system_sgpr_workgroup_id_x 1
.end_amdhsa_kernel
'''
TAIL = '.section .rodata,"a"\n' + desc(NAME + '_kernel', 256)
open(OUT, 'w').write(HEAD + '\n'.join(L) + '\n' + TAIL)
print('wrote', OUT, len(L), 'lines')
```

```python
import sys, struct

NAME = 'gated_mix__ssm_conv_s4d__dense_activation_relu__prompt'
OUT = sys.argv[1] if len(sys.argv) > 1 else f'cdna_kernels/{NAME}.s'
OPT = dict(a.split('=') for a in sys.argv[2:])
STAMP = int(OPT.get('stamp', 0))
def opt(k, d): return int(OPT.get(k, d))

L = []
def e(s=''):
    for ln in s.split('\n'):
        ln = ln.strip()
        if not ln: continue
        L.append(ln if ln.endswith(':') else '    ' + ln)
def f2u(x): return struct.unpack('<I', struct.pack('<f', x))[0]
def vr(a, n): return f'v[{a}:{a+n-1}]'

WS_H = 0;        H_BYTES = 128*54*1024
WS_Y = 0x700000; Y_BYTES = 640*4096
WS_G = 0x980000; G_BYTES = 8192
WS_F = 0x990000; F_BYTES = 34*256
WS_ST = 0xC00000
F_Y = 16*256; F_X = 26*256
DBG = 84; FLG = 96

def srd(d, lo, nbytes, off=0):
    if off: e(f's_add_u32 s{d}, s{lo}, {hex(off)}\n s_addc_u32 s{d+1}, s{lo+1}, 0')
    else:   e(f's_mov_b32 s{d}, s{lo}\n s_mov_b32 s{d+1}, s{lo+1}')
    e(f's_mov_b32 s{d+2}, {hex(nbytes)}\n s_mov_b32 s{d+3}, 0x00020000')
P_U, P_LAR, P_AI, P_CR, P_CI, P_LDT, P_DSK, P_W1, P_W2, P_GW, P_OUT, P_DBG, P_WS = 16, 18, 20, 22, 24, 26, 28, 32, 34, 36, 38, 40, 42
def sync_srds():
    srd(DBG, P_DBG, 256); srd(FLG, P_WS, F_BYTES, WS_F)

def stamp(slot):
    if STAMP: e(f's_memrealtime s[80:81]\n s_waitcnt lgkmcnt(0)\n v_writelane_b32 v255, s80, {slot}')
def stamp_b():
    if STAMP: e('s_memtime s[82:83]' if STAMP == 2 else 's_memrealtime s[82:83]')
def stamp_e(slot, base):
    if STAMP: e(f's_waitcnt lgkmcnt(0)\n s_add_u32 m0, {slot}, {base}\n v_writelane_b32 v255, s82, m0')
def stamp_cyc(slot):
    if STAMP: e(f's_memtime s[80:81]\n s_waitcnt lgkmcnt(0)\n v_writelane_b32 v255, s80, {slot}')
def finish():
    if STAMP:
        e('s_waitcnt lgkmcnt(0) vmcnt(0)')
        stamp(35); stamp_cyc(15)
        srd(72, P_WS, 0x100000, WS_ST)
        e('''s_lshl_b32 s76, s2, 3
             s_add_u32 s76, s76, s3
             s_lshl_b32 s76, s76, 8
             v_lshlrev_b32 v1, 2, v0
             buffer_store_dword v255, v1, s[72:75], s76 offen''')
    e('s_endpgm')

def flag(off, val, pol='sc1'):
    e(f'''v_mov_b32 v253, {val}
          s_mov_b64 exec, 1
          buffer_store_dword v253, v252, s[{FLG}:{FLG+3}], {off} offen {pol}
          s_mov_b64 exec, -1''')
def join_load():
    e(f'buffer_load_dword v251, v252, s[{DBG}:{DBG+3}], 0 offen sc1')
NJ = [0]
def join(publish):
    n = NJ[0]; NJ[0] += 1
    e(f'''L_join{n}:
          s_waitcnt vmcnt(0)
          v_readfirstlane_b32 s90, v251
          s_lshl_b32 s91, s4, 6
          s_add_u32 s91, s91, s5
          s_lshl_b32 s91, s91, 2
          s_add_u32 s91, s91, {F_X}
          s_cmp_eq_u32 s90, 1
          s_cbranch_scc1 L_joined{n}
          s_sleep 4
          buffer_load_dword v251, v252, s[{DBG}:{DBG+3}], 0 offen sc1
          s_add_u32 s94, s94, 1
          s_cmp_lt_u32 s94, 0x100000
          s_cbranch_scc1 L_join{n}
          L_joined{n}:''')
    if publish: flag('s91', 's88')
def xcc_load():
    e(f'''s_lshl_b32 s90, s4, 8
          s_add_u32 s90, s90, {F_X}
          v_min_u32 v246, 19, v0
          v_lshlrev_b32 v246, 2, v246
          buffer_load_dword v245, v246, s[{FLG}:{FLG+3}], s90 offen sc1''')
def xcc_check():
    e(f'''v_cmp_eq_u32 vcc, s88, v245
          s_nop 3
          s_cmp_eq_u64 vcc, -1
          s_cselect_b32 s95, {2 if opt('fast', 1) else 1}, 1''')

def prologue():
    e(NAME + '_kernel:')
    if STAMP: e('v_mov_b32 v255, 0')
    stamp(0); stamp_cyc(14)
    if STAMP: e('s_mov_b32 s82, 0')
    e('''s_cmp_ge_u32 s2, 256
         s_cbranch_scc1 L_end
         s_load_dwordx16 s[16:31], s[0:1], 0
         s_load_dwordx8 s[32:39], s[0:1], 64
         s_load_dwordx4 s[40:43], s[0:1], 96
         v_lshrrev_b32 v1, 6, v0
         s_getpc_b64 s[6:7]
         L_pc:
         v_min_u32 v2, (L_code_end-L_pc)/128, v0
         v_lshlrev_b32 v2, 7, v2
         global_load_dword v254, v2, s[6:7]
         v_and_b32 v0, 63, v0
         v_readfirstlane_b32 s3, v1
         s_and_b32 s4, s2, 7
         s_lshr_b32 s5, s2, 3
         s_getreg_b32 s88, hwreg(HW_REG_XCC_ID, 0, 4)
         s_add_u32 s88, s88, 1
         s_mov_b32 s94, 0
         s_mov_b32 s95, 0
         v_mov_b32 v252, 0
         v_mov_b32 v251, 0
         s_cmp_ge_u32 s5, 18
         s_cbranch_scc1 L_not_g1''')

SL = 40960; WR = 16384
H0 = 114688; AB = 16384; WB = 32768; NWS = 10; OM = WB + 3*8192
def tile_ids():
    e('''s_and_b32 s7, s5, 1
         s_lshr_b32 s6, s5, 1
         s_lshl_b32 s8, s4, 1
         s_add_u32 s7, s7, s8''')
T_HG, T_HL, T_WG, T_WL = 56, 57, 58, 59
def wpre_setup():
    srd(56, P_W2, 1728*1280)
    srd(52, P_WS, WS_F)
    e(f'''v_lshrrev_b32 v2, 3, v0
          v_mul_u32_u24 v17, 1280, v2
          v_and_b32 v3, 7, v0
          v_and_b32 v2, 6, v2
          v_xor_b32 v3, v3, v2
          v_lshl_add_u32 v17, v3, 4, v17
          v_add_u32 v18, {8*1280-1024}, v17
          s_mul_i32 s68, s6, 3
          v_min_u32 v2, 26, v0
          v_add_u32 v2, s68, v2
          v_subrev_u32 v3, 27, v2
          v_min_u32 v2, v2, v3
          s_lshl_b32 s66, s7, 2
          s_add_u32 s66, s66, s9
          s_mul_i32 s66, s66, {2*54*1024}
          v_lshl_add_u32 v{T_HG}, v2, 11, s66
          s_mul_i32 s66, s9, {16*1280}
          s_lshl_b32 s67, s6, 7
          s_add_u32 s66, s66, s67
          v_mul_u32_u24 v2, {64*1280}, v2
          v_add_u32 v{T_WG}, s66, v2
          v_and_b32 v2, 3, v0
          v_lshlrev_b32 v2, 14, v2
          v_add_u32 v2, {H0}, v2
          v_subrev_u32 v3, 163840, v2
          v_min_u32 v2, v2, v3
          s_lshl_b32 s66, s9, 12
          v_add_u32 v{T_HL}, s66, v2
          v_add_u32 v2, 6, v0
          v_mul_u32_u24 v3, 6554, v2
          v_lshrrev_b32 v3, 16, v3
          v_mul_u32_u24 v3, 10, v3
          v_sub_u32 v2, v2, v3
          s_lshl_b32 s66, s9, 11
          s_add_u32 s66, s66, {WB}
          v_lshl_add_u32 v{T_WL}, v2, 13, s66
          s_mov_b32 s73, 0
          v_readlane_b32 s66, v{T_WG}, 0
          v_readlane_b32 s67, v{T_WL}, 0
          s_nop 2''')
def w_issue():
    e(f'''s_mov_b32 m0, s67
          s_add_u32 s73, s73, 1
          buffer_load_dwordx4 v17, s[56:59], s66 offen lds
          buffer_load_dwordx4 v18, s[56:59], s66 offen offset:1024 lds
          v_readlane_b32 s66, v{T_WG}, s73
          v_readlane_b32 s67, v{T_WL}, s73''')
NW = [0]
def w_preload(upto):
    k = NW[0]; NW[0] += 1
    e(f'L_wp{k}:')
    w_issue()
    e(f's_cmp_lt_u32 s73, {upto}\n s_cbranch_scc1 L_wp{k}')

def gemm1():
    tile_ids()
    e('s_cmp_lt_u32 s3, 4\n s_cbranch_scc1 L_g1c')
    e('''s_sub_u32 s9, s3, 4
         v_lshrrev_b32 v2, 3, v0
         v_mul_u32_u24 v2, 1280, v2
         v_and_b32 v3, 7, v0
         v_lshrrev_b32 v4, 4, v0
         v_xor_b32 v3, v3, v4
         v_lshl_add_u32 v10, v3, 4, v2
         v_xor_b32 v3, 4, v3
         v_lshl_add_u32 v11, v3, 4, v2
         v_add_u32 v11, %d, v11
         v_add_u32 v12, %d, v10
         v_add_u32 v13, %d, v11''' % (9216, 2*9216, 2*9216))
    for b in range(3):
        e(f'''v_add_u32 v2, {64*b}, v0
              v_mul_u32_u24 v3, 2731, v2
              v_lshrrev_b32 v3, 16, v3
              v_mul_u32_u24 v4, 24, v3
              v_sub_u32 v4, v2, v4
              v_bfe_u32 v5, v3, 1, 1
              v_lshlrev_b32 v5, 2, v5
              v_xor_b32 v4, v4, v5
              v_mul_u32_u24 v3, 3456, v3
              v_lshl_add_u32 v{14+b}, v4, 4, v3''')
        if b: e(f'v_subrev_u32 v{14+b}, {1024*b}, v{14+b}')
    e('''s_add_u32 s14, s6, s4
         s_cmp_ge_u32 s14, 10
         s_cselect_b32 s12, 10, 0
         s_sub_u32 s14, s14, s12
         s_lshl_b32 s10, s7, 2
         s_add_u32 s10, s10, s9
         s_mul_i32 s10, s10, %d
         s_lshl_b32 s12, s14, 7
         s_add_u32 s10, s10, s12
         s_mul_i32 s11, s9, %d
         s_mul_i32 s12, s6, 384
         s_add_u32 s11, s11, s12
         s_mul_i32 s12, s14, %d
         s_add_u32 s11, s11, s12
         s_lshl_b32 s12, s9, 12
         s_mul_i32 s13, s9, 6144
         s_add_u32 s13, s13, %d
         s_mov_b32 s8, 0
         s_mov_b32 s64, %d
         s_mov_b32 s65, %d
         s_waitcnt lgkmcnt(0)''' % (32*1280, 16*3456, 64*3456, WR, (-3*SL) & 0xffffffff, SL))
    srd(44, P_U, 2048*1280)
    srd(48, P_W1, 640*3456)
    iblk = '''         s_mov_b32 m0, s12
         s_add_u32 s15, s11, %d
         buffer_load_dwordx4 v10, s[44:47], s10 offen lds
         buffer_load_dwordx4 v11, s[44:47], s10 offen offset:1024 lds
         buffer_load_dwordx4 v12, s[44:47], s10 offen offset:2048 lds
         buffer_load_dwordx4 v13, s[44:47], s10 offen offset:3072 lds
         s_mov_b32 m0, s13
         s_add_u32 s10, s10, 128
         buffer_load_dwordx4 v14, s[48:51], s11 offen lds
         buffer_load_dwordx4 v15, s[48:51], s11 offen offset:1024 lds
         buffer_load_dwordx4 v16, s[48:51], s11 offen offset:2048 lds
         s_add_u32 m0, s13, 3072
         s_add_u32 s11, s11, %d
         buffer_load_dwordx4 v14, s[48:51], s15 offen lds
         buffer_load_dwordx4 v15, s[48:51], s15 offen offset:1024 lds
         buffer_load_dwordx4 v16, s[48:51], s15 offen offset:2048 lds
         s_cmp_ge_u32 s12, %d
         s_cselect_b32 s15, s64, s65
         s_add_u32 s12, s12, s15
         s_add_u32 s13, s13, s15
         s_add_u32 s14, s14, 1
         s_cmp_eq_u32 s14, 10
         s_cselect_b32 s15, 1280, 0
         s_sub_u32 s10, s10, s15
         s_cmp_eq_u32 s14, 10
         s_cselect_b32 s15, %d, 0
         s_sub_u32 s11, s11, s15
         s_add_u32 s8, s8, 1
''' % (8*3456, 64*3456, 3*SL, 640*3456)
    e(iblk)
    sync_srds()
    wpre_setup()
    e('s_add_u32 s74, s6, 1')
    pb_setup(3)
    e('L_g1l_loop:')
    e(iblk)
    stamp_e('s8', 14)
    e('s_waitcnt vmcnt(10)\n s_barrier')
    stamp_b()
    e('s_cmp_lt_u32 s8, 10\n s_cbranch_scc1 L_g1l_loop')
    e(f'buffer_load_dword v247, v248, s[{FLG}:{FLG+3}], 0 offen sc1')
    w_preload(4)
    stamp(7)
    e('s_waitcnt vmcnt(9)\n s_barrier')
    stamp(8)
    e('s_waitcnt vmcnt(0)')
    stamp(10)
    e('s_barrier')
    stamp(32)
    w_preload(opt('wp', 8))
    e(f'buffer_load_dword v247, v248, s[{FLG}:{FLG+3}], 0 offen sc1')
    w_preload(10)
    stamp(11)
    e(f's_waitcnt vmcnt({2*(10-opt("wp", 8))})')
    poll_eval()
    h_issue(True)
    e('s_barrier')
    stamp(9)
    e('s_branch L_g2l_pre')

    e('L_g1c:')
    ACC = 16; FR = 112; XB = 2; XA = 8
    e('''s_lshr_b32 s8, s3, 1
         s_and_b32 s9, s3, 1
         v_and_b32 v14, 31, v0
         s_lshl_b32 s10, s8, 6
         v_add_u32 v15, s10, v14
         v_lshlrev_b32 v15, 7, v15
         v_bfe_u32 v14, v0, 1, 3
         v_lshrrev_b32 v1, 5, v0
         v_xor_b32 v14, v14, v1''')
    for ks in range(4):
        e(f'v_xor_b32 v1, {2*ks}, v14\n v_lshl_add_u32 v{XB+ks}, v1, 4, v15')
    e('''v_lshrrev_b32 v1, 5, v0
         v_lshlrev_b32 v1, 3, v1
         v_bfe_u32 v14, v0, 2, 2
         v_add_u32 v1, v1, v14
         v_mul_u32_u24 v1, 384, v1
         v_bfe_u32 v14, v0, 4, 1
         v_lshl_add_u32 v1, v14, 5, v1
         v_and_b32 v14, 3, v0
         v_lshl_add_u32 v1, v14, 3, v1
         s_mul_i32 s10, s9, 192
         s_add_u32 s10, s10, %d
         v_add_u32 v1, s10, v1
         v_bfe_u32 v14, v0, 3, 1
         v_lshlrev_b32 v14, 6, v14
         s_lshl_b32 s10, s9, 1
         s_sub_u32 s10, 1, s10
         v_mul_lo_u32 v14, v14, s10
         v_add_u32 v6, v1, v14
         v_sub_u32 v7, v1, v14''' % WR)
    for i in range(96): e(f'v_mov_b32 v{ACC+i}, 0')
    e('''v_bfe_u32 v1, v0, 4, 1
         v_mul_u32_u24 v1, %d, v1
         v_lshrrev_b32 v14, 5, v0
         v_lshl_add_u32 v1, v14, 8, v1
         v_and_b32 v14, 15, v0
         v_lshl_add_u32 v1, v14, 4, v1
         s_lshl_b32 s10, s7, 1
         s_add_u32 s10, s10, s8
         s_mul_i32 s10, s10, %d
         s_mul_i32 s11, s6, 6
         s_mul_i32 s12, s9, 3
         s_add_u32 s11, s11, s12
         s_add_u32 s10, s10, s11
         s_lshl_b32 s10, s10, 10
         s_add_u32 s11, s10, %d
         v_bfe_u32 v240, v0, 4, 1
         v_lshlrev_b32 v240, 11, v240
         v_lshl_add_u32 v240, v14, 4, v240
         v_lshrrev_b32 v14, 5, v0
         v_lshl_add_u32 v240, v14, 8, v240
         s_lshl_b32 s12, s8, 13
         s_add_u32 s12, s12, %d
         s_mul_i32 s13, s9, 31744
         s_add_u32 s13, s13, s12
         v_add_u32 v241, s13, v240
         s_mul_i32 s13, s9, 17408
         s_add_u32 s13, s13, s12
         v_add_u32 v240, s13, v240
         s_waitcnt lgkmcnt(0)''' % (54*1024, 4*54, 2*54*1024, H0))
    srd(52, P_WS, H_BYTES, WS_H)
    sync_srds()
    pbc_setup()
    e('s_cmp_eq_u32 s3, 0\n s_cselect_b32 s15, 1, 99\n s_mov_b32 s12, 0\n s_mov_b32 s13, 0\n s_mov_b32 s14, 0')
    def reads(ks, st):
        r = []
        base = FR + 20*st
        for ti in range(2):
            r.append(f'ds_read_b128 {vr(base+12+4*ti,4)}, v{XA+ks} offset:{4096*ti}')
        for fi in range(3):
            for half in range(2):
                r.append(f'ds_read_b64_tr_b16 {vr(base+4*fi+2*half,2)}, v{XA+4+(fi&1)} offset:{(16*ks+4*half)*384+64*fi}')
        return [r[0], r[2], r[3], r[1], r[4], r[5], r[6], r[7]]
    def mfmas(st):
        base = FR + 20*st
        return [f'v_mfma_f32_32x32x16_bf16 {vr(ACC+16*(2*fi+ti),16)}, {vr(base+4*fi,4)}, {vr(base+12+4*ti,4)}, {vr(ACC+16*(2*fi+ti),16)}'
                for fi in range(3) for ti in range(2)]
    def step(rd, mm):
        rd = list(rd)
        e('s_waitcnt lgkmcnt(8)')
        for m in mm:
            e(m)
            for _ in range(2):
                if rd: e(rd.pop(0))
    for i in range(6): e(f'v_mov_b32 v{XA+i}, v{XB+i}')
    e('s_barrier')
    for r in reads(0, 0) + reads(1, 1): e(r)
    e('s_branch L_g1c_mid')
    e('L_g1c_hook:\n s_cmp_eq_u32 s15, 1\n s_cbranch_scc0 L_g1c_hk2')
    join_load()
    e('s_mov_b32 s15, 3\n s_branch L_g1c_lp2\n L_g1c_hk2:')
    join(True)
    e('s_branch L_g1c_lp2')
    e('L_g1c_loop:\n s_cmp_eq_u32 s14, s15\n s_cbranch_scc1 L_g1c_hook\n L_g1c_lp2:')
    for i in range(6): e(f'v_add_u32 v{XA+i}, s12, v{XB+i}')
    e('s_barrier')
    step(reads(0, 0), mfmas(2))
    step(reads(1, 1), mfmas(3))
    e('L_g1c_mid:')
    step(reads(2, 2), mfmas(0))
    e(f'''s_add_u32 s12, s12, {SL}
         s_cmp_ge_u32 s12, {4*SL}
         s_cselect_b32 s12, 0, s12
         s_add_u32 s14, s14, 1
         s_cmp_lt_u32 s14, 10''')
    step(reads(3, 3), mfmas(1))
    e('s_cbranch_scc1 L_g1c_loop')
    stamp(3)
    xcc_load()
    e('s_waitcnt lgkmcnt(0)')
    m2, m3 = mfmas(2), mfmas(3)
    def epi(n):
        fi, ti = n >> 1, n & 1
        a = ACC + 16*n; out = []
        for piece in range(2):
            d = FR + (8*n + 4*piece) % 40
            out += [f'v_cvt_pk_bf16_f32 v{d+q}, v{a+8*piece+2*q}, v{a+8*piece+2*q+1}' for q in range(4)]
            out += [f'v_pk_max_i16 v{d+q}, v{d+q}, 0' for q in range(4)]
            out.append(f'buffer_store_dwordx4 {vr(d,4)}, v1, s[52:55], s{10+ti} offen offset:{1024*fi+512*piece} {"sc1" if opt("wt", 1) else ""}')
            out.append(f'ds_write_b128 v{240+(fi&1)}, {vr(d,4)} offset:{[0, 1024, 16384][fi] + 4096*ti + 512*piece}')
        return out
    e(m2[0]); e(m3[0]); e(m2[1]); e(m3[1]); e('s_nop 9')
    for n in range(6):
        ep = epi(n)
        if n + 2 < 6:
            e(m2[n+2])
            for x in ep[:10]: e(x)
            e(m3[n+2])
            for x in ep[10:]: e(x)
        else:
            for x in ep: e(x)
    stamp(1)
    e('''s_lshl_b32 s89, s7, 4
         s_add_u32 s89, s89, s6
         s_lshl_b32 s89, s89, 2
         s_add_u32 s89, s89, s3
         s_lshl_b32 s89, s89, 2''')
    phase_b_compute()

def helper():
    e('''L_not_g1:
         s_cmp_ge_u32 s5, 22
         s_cbranch_scc1 L_ssm
         s_sub_u32 s8, s5, 18
         s_waitcnt lgkmcnt(0)''')
    sync_srds()
    e(f'''s_cmp_eq_u32 s2, {21*8}
          s_cbranch_scc0 L_hp_nc
          s_lshl_b32 s9, s3, 10
          v_lshl_add_u32 v2, v0, 4, s9
          v_mov_b32 v4, 0
          v_mov_b32 v5, 0
          v_mov_b32 v6, 0
          v_mov_b32 v7, 0
          s_movk_i32 s9, 0x2000
          buffer_store_dwordx4 v[4:7], v2, s[{FLG}:{FLG+3}], 0 offen sc1
          buffer_store_dwordx4 v[4:7], v2, s[{FLG}:{FLG+3}], s9 offen sc1
          s_waitcnt vmcnt(0)
          s_barrier
          s_cmp_eq_u32 s3, 0
          s_cbranch_scc0 L_hp_nc
          v_mov_b32 v5, 1
          s_mov_b64 exec, 1
          buffer_store_dword v5, v4, s[{DBG}:{DBG+3}], 0 offen sc1
          s_mov_b64 exec, -1
          L_hp_nc:''')
    srd(56, P_W2, 1728*1280)
    e(f'''v_min_u32 v5, 59, v0
          v_mul_u32_u24 v6, 6554, v5
          v_lshrrev_b32 v6, 16, v6
          v_mul_u32_u24 v7, 10, v6
          v_sub_u32 v7, v5, v7
          v_mul_u32_u24 v5, 192, v7
          v_add_u32 v5, v5, v6
          v_lshlrev_b32 v7, 7, v7
          s_lshl_b32 s10, s8, 3
          s_add_u32 s10, s10, s3
          s_mul_i32 s10, s10, 6
          s_cmp_lt_u32 s5, 20
          s_cbranch_scc0 L_hp_go
          s_cmp_eq_u32 s3, 0
          s_cbranch_scc0 L_hp_nj''')
    join_load()
    join(True)
    e('L_hp_nj:\n s_barrier\n L_hp_go:')
    def pf(rb, d):
        e(f'''v_add_u32 v8, {rb}, v5
              v_subrev_u32 v9, 1728, v8
              v_min_u32 v8, v8, v9
              v_mul_u32_u24 v8, 1280, v8
              v_add_u32 v8, v8, v7
              buffer_load_dword v{d}, v8, s[56:59], 0 offen''')
    if opt('wt', 1):
        for n in range(4):
            e(f's_add_u32 s11, s4, {n}\n s_and_b32 s11, s11, 3\n s_mul_i32 s11, s11, 192\n s_add_u32 s11, s11, s10')
            pf('s11', 20+n)
        e('''s_lshl_b32 s11, s8, 3
             s_add_u32 s11, s11, s3
             s_lshl_b32 s11, s11, 3
             s_add_u32 s11, s11, s4
             s_lshl_b32 s11, s11, 2
             s_add_u32 s11, s11, 768
             s_min_u32 s11, s11, 1722
             s_mov_b32 exec_hi, 0xff''')
        pf('s11', 25)
        e('s_mov_b32 exec_hi, -1\n s_barrier')
        stamp(1)
        e(f's_cmp_lt_u32 s5, 20\n s_cbranch_scc1 L_hp_d\n s_add_u32 s11, s10, {768 - 96}\n L_hp_rest:')
    else:
        srd(52, P_WS, H_BYTES, WS_H)
        e(f'''s_lshl_b32 s11, s8, 3
          s_add_u32 s11, s11, s3
          s_lshl_b32 s12, s11, 3
          s_add_u32 s12, s12, s4
          s_mul_i32 s12, s12, {68*128}
          v_lshlrev_b32 v10, 7, v0
          v_min_u32 v11, {3*128}, v10
          s_add_u32 s13, s12, {64*128}
          buffer_load_dword v20, v10, s[56:59], s12 offen
          buffer_load_dword v21, v11, s[56:59], s13 offen
          v_min_u32 v11, {47*128}, v10
          s_mul_i32 s11, s11, {48*128}
          s_mul_i32 s12, s4, {16*54*1024}
          s_add_u32 s11, s11, s12
          s_add_u32 s12, s11, {32*48*128}
          buffer_load_dword v22, v11, s[52:55], s11 offen sc1
          buffer_load_dword v23, v11, s[52:55], s12 offen sc1
          s_add_u32 s11, s10, 192''')
        pf('s10', 24); pf('s11', 25)
        e('s_barrier')
        stamp(1)
        e(f'''s_cmp_lt_u32 s5, 20
          s_cbranch_scc1 L_hp_d
          s_add_u32 s11, s10, {384 - 96}
          L_hp_rest:''')
    pf('s11', 26)
    e('s_add_u32 s11, s11, 96\n s_cmp_lt_u32 s11, 1728\n s_cbranch_scc1 L_hp_rest\n L_hp_d:')
    e('s_waitcnt vmcnt(0)')
    stamp(2)
    e('s_cmp_lt_u32 s5, 20\n s_cbranch_scc1 L_hp_pb')
    finish()
    e('L_hp_pb:')
    tile_ids()
    e('s_cmp_lt_u32 s3, 4\n s_cbranch_scc0 L_hp_l\n s_lshr_b32 s8, s3, 1\n s_and_b32 s9, s3, 1')
    pbc_setup()
    e('v_mov_b32 v245, s88\n s_mov_b32 s89, 0x40000000\n s_branch L_pbc\n L_hp_l:\n s_sub_u32 s9, s3, 4')
    wpre_setup()
    w_preload(10)
    e('s_mov_b32 s74, 0')
    pb_setup(0)
    h_issue(True); e('s_nop 3'); h_issue(False); e('s_nop 3'); h_issue(False)
    e('s_waitcnt vmcnt(8)\n s_barrier')
    h_issue(True)
    e('s_waitcnt vmcnt(4)\n s_barrier\n s_branch L_g2l_pre')

US = 8704; UO = 4164; RA = 8*8704 + 16; RS = 4592
def ssm():
    U = 228
    e('''L_ssm:
         s_sub_u32 s77, s5, 22
         s_mul_i32 s6, s4, 10
         s_add_u32 s6, s6, s77
         s_lshl_b32 s6, s6, 3
         s_add_u32 s7, s6, s3
         v_lshlrev_b32 v4, 2, v0
         s_lshl_b32 s10, s7, 8
         s_lshl_b32 s11, s7, 1
         s_waitcnt lgkmcnt(0)''')
    srd(48, P_LAR, 163840); srd(64, P_LDT, 1280)
    e('buffer_load_dword v6, v4, s[48:51], s10 offen\n buffer_load_ushort v10, v252, s[64:67], s11 offen')
    srd(52, P_AI, 163840); srd(56, P_CR, 163840); srd(60, P_CI, 163840); srd(44, P_DSK, 1280)
    e('''buffer_load_dword v7, v4, s[52:55], s10 offen
         buffer_load_dword v8, v4, s[56:59], s10 offen
         buffer_load_dword v9, v4, s[60:63], s10 offen
         buffer_load_ushort v11, v252, s[44:47], s11 offen
         s_barrier''')
    srd(72, P_U, 2048*1280)
    sync_srds()
    e(f'''s_mul_i32 s9, s4, 160
          s_and_b32 s9, s9, 0xffffff80
          s_and_b32 s10, s3, 1
          s_lshl_b32 s10, s10, 7
          s_add_u32 s9, s9, s10
          s_lshl_b32 s10, s77, 2
          s_lshr_b32 s11, s3, 1
          s_add_u32 s10, s10, s11
          s_mul_i32 s10, s10, {52*1280}
          s_add_u32 s9, s9, s10
          v_min_u32 v2, 51, v0
          v_mul_u32_u24 v2, 1280, v2
          buffer_load_dword v248, v2, s[72:75], s9 offen
          v_mul_u32_u24 v3, 5120, v0
          s_mul_i32 s78, s3, {256*1280}
          s_lshl_b32 s9, s6, 1
          s_add_u32 s78, s78, s9
          s_sub_u32 s9, s78, 1280
          v_mov_b32 v5, s9''')
    uld = [f'buffer_load_dwordx4 {vr(U+4*r,4)}, v3, s[72:75], s78 offen offset:{1280*r}' for r in range(4)]
    uld[3] += f'\n s_mov_b64 exec, 1\n buffer_load_dwordx4 {vr(U+16,4)}, v5, s[72:75], 0 offen\n s_mov_b64 exec, -1'
    kgen(uld)
    stamp(1)
    e('s_cmp_eq_u32 s3, 0\n s_cbranch_scc0 L_ssm_nj')
    join(False)
    e('L_ssm_nj:\n s_waitcnt lgkmcnt(0)\n s_barrier')
    e(f'''s_mul_i32 s12, s3, {US}
          v_add_u32 v12, s12, v4
          s_mov_b64 exec, 0xff
          ds_write_b32 v12, v252
          ds_write_b32 v12, v252 offset:{UO-4}
          s_mov_b64 exec, -1
          s_lshl_b32 s13, s3, 9
          v_lshl_add_u32 v13, v0, 3, s13
          s_mov_b32 s14, 0x05040100
          s_mov_b32 s15, 0x07060302
          s_waitcnt vmcnt(0)
          s_nop 0''')
    for c in range(4):
        e(f'v_mov_b32_dpp v{U+16+c}, v{U+12+c} wave_shr:1 row_mask:0xf bank_mask:0xf')
    for ch in range(8):
        c = ch >> 1; sel = 14 + (ch & 1); t = 64 + 4*ch
        e(f'''v_perm_b32 v{t}, v{U+4+c}, v{U+c}, s{sel}
              v_perm_b32 v{t+1}, v{U+12+c}, v{U+8+c}, s{sel}
              v_perm_b32 v{t+2}, v{U+c}, v{U+16+c}, s{sel}
              v_perm_b32 v{t+3}, v{U+8+c}, v{U+4+c}, s{sel}
              ds_write_b64 v13, {vr(t,2)} offset:{ch*US+32}
              ds_write_b64 v13, {vr(t+2,2)} offset:{ch*US+UO+28}''')
    e(f'''v_and_b32 v4, 15, v0
          v_lshrrev_b32 v5, 4, v0
          v_add_u32 v6, 1, v4
          v_and_b32 v7, 1, v6
          v_mul_u32_u24 v7, {UO}, v7
          v_lshrrev_b32 v6, 1, v6
          v_lshl_add_u32 v7, v6, 2, v7
          v_lshlrev_b32 v6, 4, v5
          v_sub_u32 v7, v7, v6
          v_add_u32 v7, 48, v7
          v_add_u32 v8, s12, v7
          v_add_u32 v9, 1024, v8
          v_add_u32 v10, 2048, v8
          v_add_u32 v11, 3072, v8
          v_lshlrev_b32 v7, 5, v4
          v_add_u32 v7, v7, v6
          s_mul_i32 s13, s3, {RS}
          s_add_u32 s13, s13, {RA+528}
          v_sub_u32 v12, s13, v7''')
    ACC = 32; F = 64
    for i in range(32): e(f'v_mov_b32 v{ACC+i}, 0')
    srd(52, P_WS, H_BYTES, WS_H)
    srd(48, P_WS, Y_BYTES, WS_Y)
    e(f'''s_mul_i32 s13, s77, 6
          s_add_u32 s13, s13, s3
          s_lshl_b32 s13, s13, 13
          s_mul_i32 s14, s4, {16*54*1024}
          s_add_u32 s13, s13, s14
          s_add_u32 s13, s13, {3072*128}
          v_lshlrev_b32 v192, 7, v0
          s_lshr_b32 s14, s3, 1
          s_cmp_ge_u32 s3, 4
          s_cselect_b32 s14, 9, s14
          {'s_mov_b32 s14, 9' if opt('wt', 1) else ''}
          s_waitcnt lgkmcnt(0)
          s_barrier''')
    stamp(2)
    def reads(st):
        b = F + 64*st; r = []
        for m in range(8):
            r.append(f'ds_read_b128 {vr(b+32+4*m,4)}, v12 offset:{(7-m)*512}')
            o = 128*(m & 1)
            r.append(f'ds_read2_b32 {vr(b+4*m,2)}, v{8+m//2} offset0:{o} offset1:{o+1}')
            r.append(f'ds_read2_b32 {vr(b+4*m+2,2)}, v{8+m//2} offset0:{o+2} offset1:{o+3}')
        return r
    adv = [f'v_add_u32 v{8+i}, 64, v{8+i}' for i in range(5)]
    def unit(st, other):
        b = F + 64*st; other = list(other)
        for m in range(8):
            for h in range(m, 8):
                e(f'v_mfma_f32_16x16x32_bf16 {vr(ACC+4*h,4)}, {vr(b+4*m,4)}, {vr(b+32+4*(h-m),4)}, {vr(ACC+4*h,4)}')
                if other: e(other.pop(0))
        e('s_waitcnt lgkmcnt(0)')
    for r in reads(0): e(r)
    e(f'''s_mov_b32 s15, 0
          s_waitcnt lgkmcnt(0)
          L_conv_loop:
          s_cmp_eq_u32 s15, s14
          s_cbranch_scc0 L_conv_np
          buffer_load_dword v193, v192, s[52:55], s13 offen sc1
          s_add_u32 s13, s13, {4*8192}
          s_lshl_b32 s14, s14, 2
          s_add_u32 s14, s14, 2
          L_conv_np:''')
    unit(0, adv + reads(1))
    unit(1, adv + reads(0))
    e('s_add_u32 s15, s15, 1\n s_cmp_lt_u32 s15, 4\n s_cbranch_scc1 L_conv_loop')
    stamp(3)
    e(f'''v_lshlrev_b32 v14, 5, v4
          v_lshrrev_b32 v6, 1, v5
          v_lshl_add_u32 v14, v6, 4, v14
          v_and_b32 v6, 1, v5
          v_lshl_add_u32 v14, v6, 9, v14
          s_lshl_b32 s11, s7, 12
          s_nop 0''')
    for hp in range(4):
        a = ACC + 8*hp; o = F + 4*hp
        e(f'''v_cvt_pk_bf16_f32 v{o}, v{a}, v{a+1}
              v_cvt_pk_bf16_f32 v{o+1}, v{a+2}, v{a+3}
              v_cvt_pk_bf16_f32 v{o+2}, v{a+4}, v{a+5}
              v_cvt_pk_bf16_f32 v{o+3}, v{a+6}, v{a+7}
              s_nop 1
              v_permlane16_swap_b32 v{o}, v{o+2}
              v_permlane16_swap_b32 v{o+1}, v{o+3}
              buffer_store_dwordx4 {vr(o,4)}, v14, s[48:51], s11 offen offset:{1024*hp} sc1''')
    e('s_cmp_lt_u32 s3, 4\n s_cbranch_scc0 L_ssm_fin')
    gate()
    e('L_ssm_fin:')
    e(f'''s_lshr_b32 s12, s6, 6
          s_lshl_b32 s12, s12, 8
          s_bfe_u32 s13, s6, 0x30003
          s_lshl_b32 s13, s13, 2
          s_add_u32 s12, s12, s13
          s_add_u32 s12, s12, {F_Y}
          s_waitcnt vmcnt(0)
          s_barrier
          s_cmp_eq_u32 s3, 0
          s_cbranch_scc0 L_ssm_end''')
    flag('s12', 1)
    e('L_ssm_end:')
    finish()

def gate():
    srd(52, P_GW, 1280); srd(60, P_WS, G_BYTES, WS_G)
    e(f'''s_lshl_b32 s9, s77, 2
          s_add_u32 s9, s9, s3
          s_lshl_b32 s10, s4, 5
          s_add_u32 s10, s10, s9
          s_lshl_b32 s10, s10, 3
          v_lshlrev_b32 v3, 4, v4
          v_mul_u32_u24 v6, 1280, v5
          v_add_u32 v6, v6, v3
          s_mul_i32 s11, s10, 1280
          s_add_u32 s12, s11, 5120
          s_cmp_lt_u32 s77, 8
          s_cbranch_scc0 L_ssm_fin''')
    for n in range(5): e(f'buffer_load_dwordx4 {vr(140+4*n,4)}, v3, s[52:55], 0 offen offset:{256*n}')
    for p in range(2):
        for n in range(5): e(f'buffer_load_dwordx4 {vr(100+20*p+4*n,4)}, v6, s[72:75], s{11+p} offen offset:{256*n}')
    e('''s_mov_b32 s13, 0xffff0000
         v_lshlrev_b32 v2, 2, v5
         s_lshl_b32 s10, s10, 2
         s_waitcnt vmcnt(10)''')
    for n in range(20): e(f'v_lshlrev_b32 v{160+2*n}, 16, v{140+n}\n v_and_b32 v{161+2*n}, s13, v{140+n}')
    e('s_mov_b32 s14, 0\n s_waitcnt vmcnt(0)')
    e('L_gate:\n v_mov_b32 v8, 0\n v_mov_b32 v9, 0')
    for n in range(20):
        e(f'''v_lshlrev_b32 v10, 16, v{100+n}
              v_and_b32 v11, s13, v{100+n}
              v_mul_f32 v10, v10, v{160+2*n}
              v_mul_f32 v11, v11, v{161+2*n}
              v_cvt_pk_bf16_f32 v10, v10, v11
              v_mov_b32 v{100+n}, v{120+n}
              v_and_b32 v11, s13, v10
              v_lshlrev_b32 v10, 16, v10
              v_add_f32 v9, v9, v11
              v_add_f32 v8, v8, v10''')
    e('v_add_f32 v8, v8, v9\n s_nop 1')
    for sh in (8, 4, 2, 1):
        e(f'v_add_f32_dpp v8, v8, v8 row_ror:{sh} row_mask:0xf bank_mask:0xf\n s_nop 1')
    e('''v_cvt_pk_bf16_f32 v8, v8, v8
         v_lshlrev_b32 v8, 16, v8
         v_mul_f32 v8, 0xbfb8aa3b, v8
         v_exp_f32 v8, v8
         s_nop 0
         v_add_f32 v8, 1.0, v8
         v_rcp_f32 v8, v8
         s_nop 0
         v_cvt_pk_bf16_f32 v8, v8, v8
         v_lshlrev_b32 v12, 16, v8
         buffer_store_dword v12, v2, s[60:63], s10 offen sc1
         s_add_u32 s10, s10, 16
         s_add_u32 s14, s14, 1
         s_cmp_lt_u32 s14, 2
         s_cbranch_scc1 L_gate''')

def kgen(uld):
    L2E = 1.4426950408889634
    l2e_hi = struct.unpack('<f', struct.pack('<f', L2E))[0]
    l2e_lo = L2E - l2e_hi
    e(f'''s_mul_i32 s12, s3, {RS}
          s_add_u32 s12, s12, {RA}
          v_lshl_add_u32 v13, v0, 3, s12
          v_mov_b32 v14, 0
          v_mov_b32 v15, 0
          s_mov_b32 exec_hi, 0x0fffffff
          ds_write_b64 v13, v[14:15] offset:4096
          s_mov_b32 exec_hi, -1
          s_mul_i32 s13, s3, {US}
          s_mov_b32 m0, s13
          v_and_b32 v18, 15, v0
          v_lshrrev_b32 v19, 4, v0
          v_mul_u32_u24 v17, 544, v18
          v_lshl_add_u32 v17, v19, 4, v17
          v_add_u32 v17, s13, v17
          v_mov_b32 v16, 0x3c00
          ds_write_addtid_b32 v16
          ds_write_addtid_b32 v16 offset:256
          v_lshlrev_b32 v12, 4, v18
          v_sub_u32 v12, s12, v12
          v_lshlrev_b32 v27, 9, v19
          v_sub_u32 v24, v12, v27
          v_add_u32 v24, {2040-256}, v24
          v_lshlrev_b32 v27, 8, v19
          v_sub_u32 v25, v12, v27
          v_add_u32 v25, 3060, v25
          v_lshrrev_b32 v27, 1, v19
          v_lshlrev_b32 v27, 8, v27
          v_sub_u32 v26, v12, v27
          v_and_b32 v27, 1, v19
          v_lshlrev_b32 v27, 3, v27
          v_sub_u32 v26, v26, v27
          s_mov_b32 s68, {hex(f2u(l2e_hi))}
          s_mov_b32 s69, {hex(f2u(l2e_lo))}
          s_mov_b32 s70, {hex(f2u(0.6931471805599453))}
          s_mov_b32 s71, 0xffff0000
          s_waitcnt vmcnt(5)''')
    stamp(5)
    T = 28
    e('v_lshlrev_b32 v10, 16, v10\n v_lshlrev_b32 v20, 16, v6\n v_and_b32 v21, s71, v6')
    xs = [(10, T, T+1), (20, T+2, T+3), (21, T+4, T+5)]
    for fmt in ('v_mul_f32 v{t}, s68, v{x}', 'v_fma_f32 v{lo}, v{x}, s68, -v{t}', 'v_fma_f32 v{lo}, v{x}, s69, v{lo}',
                'v_exp_f32 v{t}, v{t}', 'v_mul_f32 v{lo}, s70, v{lo}', 'v_fma_f32 v{x}, v{t}, v{lo}, v{t}'):
        for x, t, lo in xs: e(fmt.format(x=x, t=t, lo=lo))
    e('''v_cvt_pk_bf16_f32 v10, v10, v10
         v_cvt_pk_bf16_f32 v20, v20, v21
         v_lshlrev_b32 v10, 16, v10
         v_and_b32 v21, s71, v20
         v_lshlrev_b32 v20, 16, v20
         v_mul_f32 v20, v20, v10
         v_mul_f32 v21, v21, v10
         v_mul_f32 v20, 0xbfb8aa3b, v20
         v_mul_f32 v21, 0xbfb8aa3b, v21
         s_waitcnt vmcnt(1)
         v_lshlrev_b32 v22, 16, v7
         v_and_b32 v23, s71, v7
         v_mul_f32 v22, v22, v10
         v_mul_f32 v23, v23, v10
         v_mul_f32 v22, 0.15915494, v22
         v_mul_f32 v23, 0.15915494, v23''')
    PA, PB, QA, QB = 44, 48, 52, 56
    MH = 60; X = 84; XK = 100; XL = 116; XM = 132; YY = 100; TT = 28
    BF = 152; AF = 184; D = 216
    ce = [(PA, 20, 22, 1, T), (PA+2, 21, 23, 1, T+4), (QA, 20, 22, 128.0, T+8), (QA+2, 21, 23, 128.0, T+12)]
    ce2 = []
    for dst, a, p, sc, t in ce:
        if sc != 1:
            e(f'v_mul_f32 v{t}, {hex(f2u(sc))}, v{a}\n v_mul_f32 v{t+1}, {hex(f2u(sc))}, v{p}')
            a, p = t, t+1
        ce2.append((dst, a, p, t))
    for fmt in ('v_rndne_f32 v{t2}, v{p}', 'v_exp_f32 v{t3}, v{a}', 'v_sub_f32 v{t2}, v{p}, v{t2}', 'v_cos_f32 v{d0}, v{t2}',
                'v_sin_f32 v{d1}, v{t2}', 'v_mul_f32 v{d0}, v{d0}, v{t3}', 'v_mul_f32 v{d1}, v{d1}, v{t3}'):
        for dst, a, p, t in ce2: e(fmt.format(t2=t+2, t3=t+3, p=p, a=a, d0=dst, d1=dst+1))
    norm = f'''v_and_b32 v28, 0x7fff7fff, v8
          v_and_b32 v29, 0x7fff7fff, v9
          v_pk_max_u16 v28, v28, v29
          v_lshlrev_b32 v29, 16, v28
          v_max_u32 v28, v28, v29
          NOP
          v_max_u32_dpp v28, v28, v28 row_ror:8 row_mask:0xf bank_mask:0xf
          NOP
          v_max_u32_dpp v28, v28, v28 row_ror:4 row_mask:0xf bank_mask:0xf
          NOP
          v_max_u32_dpp v28, v28, v28 row_ror:2 row_mask:0xf bank_mask:0xf
          NOP
          v_max_u32_dpp v28, v28, v28 row_ror:1 row_mask:0xf bank_mask:0xf
          NOP
          v_readlane_b32 s90, v28, 0
          v_readlane_b32 s91, v28, 16
          v_readlane_b32 s92, v28, 32
          v_readlane_b32 s93, v28, 48
          NOP
          s_max_u32 s90, s90, s91
          s_max_u32 s92, s92, s93
          s_max_u32 s90, s90, s92
          s_lshr_b32 s90, s90, 23
          s_max_u32 s90, s90, 1
          s_min_u32 s90, s90, 252
          s_sub_u32 s91, 254, s90
          s_lshl_b32 s91, s91, 23
          s_add_u32 s90, s90, 1
          s_lshl_b32 s90, s90, 23
          v_lshlrev_b32 v28, 16, v8
          v_lshlrev_b32 v29, 16, v9
          v_and_b32 v30, s71, v8
          v_and_b32 v31, s71, v9
          v_mul_f32 v28, s91, v28
          v_mul_f32 v29, s91, v29
          v_mul_f32 v30, s91, v30
          v_mul_f32 v31, s91, v31
          v_mul_f32 v10, s90, v10
          v_cvt_pk_f16_f32 v{X}, v28, -v29
          v_cvt_pk_f16_f32 v{X+1}, v30, -v31'''.split('NOP')
    def sq(dst, x):
        for k in range(2):
            e(f'v_pk_mul_f32 {vr(dst+2*k,2)}, {vr(x+2*k,2)}, {vr(x+2*k,2)} op_sel:[0,0] op_sel_hi:[1,0]')
        for k in range(2):
            e(f'v_pk_fma_f32 {vr(dst+2*k,2)}, {vr(x+2*k,2)}, {vr(x+2*k,2)}, {vr(dst+2*k,2)} op_sel:[1,1,0] op_sel_hi:[0,1,1] neg_lo:[0,1,0]')
    def cv(lg, x):
        e(f'v_cvt_pk_f16_f32 v{MH+2*lg}, v{x}, v{x+1}\n v_cvt_pk_f16_f32 v{MH+2*lg+1}, v{x+2}, v{x+3}')
    def M(k): return MH + 2*(k.bit_length()-1)
    def row(r, x):
        e(f'ds_write_addtid_b32 v{x} offset:{544*r}\n ds_write_addtid_b32 v{x+1} offset:{544*r+256}')
    p, pn, q, qn = PA, PB, QA, QB
    for i in range(7):
        e(norm[i])
        cv(i, p)
        if i >= 3: row(1 << (i-3), MH+2*i)
        if i < 5: cv(7+i, q)
        if i < 6: sq(pn, p); p, pn = pn, p
        if i < 4: sq(qn, q); q, qn = qn, q
    stamp(6)
    def mulrows(items, conj, wait_first=False):
        ng = 'neg_hi:[0,1,0]' if conj else 'neg_lo:[0,1,0]'
        for i in range(0, len(items), 2):
            grp = items[i:i+2]
            for r, dst, x, m in grp:
                for k in range(2): e(f'v_pk_mul_f16 v{dst+k}, v{x+k}, v{m+k} op_sel:[0,0] op_sel_hi:[1,0]')
            for r, dst, x, m in grp:
                for k in range(2): e(f'v_pk_fma_f16 v{dst+k}, v{x+k}, v{m+k}, v{dst+k} op_sel:[1,1,0] op_sel_hi:[0,1,1] {ng}')
            if wait_first and i == 0: e('s_waitcnt lgkmcnt(0)')
            for r, dst, x, m in grp: row(r, dst)
    def rdfr(dst):
        for s_ in range(8): e(f'ds_read_b128 {vr(dst+4*s_,4)}, v17 offset:{64*s_}')
    def mm(d):
        for s_ in range(8):
            c = '0' if s_ == 0 else vr(d,4)
            e(f'v_mfma_f32_16x16x32_f16 {vr(d,4)}, {vr(AF+4*s_,4)}, {vr(BF+4*s_,4)}, {c}')
    Y = {1: M(8), 2: M(16), 4: M(32), 3: YY, 5: YY+2, 6: YY+4, 7: YY+6}
    mulrows([(3, Y[3], Y[1], M(16)), (5, Y[5], Y[1], M(32)), (6, Y[6], Y[2], M(32)), (7, Y[7], Y[3], M(32))], False)
    mulrows([(8+j, TT+2*j, Y[j], M(64)) for j in range(1, 8)], False)
    rdfr(BF)
    e(uld[0])
    mulrows([(1, X+2, X, M(1)), (2, X+4, X, M(2)), (3, X+6, X+2, M(2)), (4, X+8, X, M(4)),
             (5, X+10, X+2, M(4)), (6, X+12, X+4, M(4)), (7, X+14, X+6, M(4)), (8, XK, X, M(128))], True, True)
    row(0, X)
    e(uld[1])
    mulrows([(8+a, XK+2*a, X+2*a, M(128)) for a in range(1, 8)], True)
    rdfr(AF)
    e(uld[2])
    src = [X, X+4, X+8, X+12, XK, XK+4, XK+8, XK+12]
    it = [(n, XL+2*n, src[n], M(256)) for n in range(8)] + [(8, TT, X, M(2048))]
    mulrows(it[:2], True, True)
    mm(D)
    mulrows(it[2:], True)
    rdfr(AF)
    e(uld[3])
    e('s_cmp_eq_u32 s3, 0\n s_cbranch_scc0 L_kg_nj')
    join_load()
    e('L_kg_nj:')
    s2 = [X, X+8, XK, XK+8, XL, XL+4, XL+8, XL+12]
    it = [(4*(n >> 1) + (n & 1), XM+2*n, s2[n], M(512)) for n in range(8)]
    mulrows(it[:2], True, True)
    mm(D+4)
    mulrows(it[2:], True)
    s3 = [X, XK, XL, XL+8, XM, XM+4, XM+8, XM+12]
    mulrows([(4*(i >> 1) + 2 + (i & 1), TT+2*i, s3[i], M(1024)) for i in range(8)], True)
    rdfr(AF)
    B1 = D+4; A = D+8; C = 60
    e(f'''v_mul_f32 v{D}, v{D}, v10
          v_lshlrev_b32 v11, 16, v11
          s_mov_b64 exec, 1
          v_add_f32 v{D}, v{D}, v11
          s_mov_b64 exec, -1''')
    for i in range(1, 8): e(f'v_mul_f32 v{D+i}, v{D+i}, v10')
    e('s_waitcnt lgkmcnt(0)')
    mm(D+8)
    e(f'''v_cvt_pk_bf16_f32 v{C}, v{B1+3}, v{B1+3}
          v_cvt_pk_bf16_f32 v{C+1}, v{B1+2}, v{B1+2}
          v_cvt_pk_bf16_f32 v{C+2}, v{B1+2}, v{B1+1}
          v_cvt_pk_bf16_f32 v{C+3}, v{B1}, v{B1}
          v_cvt_pk_bf16_f32 v{C+4}, v{D+3}, v{D+2}
          v_cvt_pk_bf16_f32 v{C+5}, v{D+1}, v{D}
          s_nop 1
          v_mul_f32 v{A+2}, v{A+2}, v10
          v_mul_f32 v{A+3}, v{A+3}, v10
          v_mul_f32 v{A}, v{A}, v10
          v_mul_f32 v{A+1}, v{A+1}, v10
          v_mov_b32_dpp v{C+6}, v{A+2} quad_perm:[0,0,2,2] row_mask:0xf bank_mask:0xf
          v_mov_b32_dpp v{C+7}, v{A+3} quad_perm:[0,0,2,2] row_mask:0xf bank_mask:0xf
          v_cvt_pk_bf16_f32 v{C+8}, v{A+2}, v{A+2}
          v_cvt_pk_bf16_f32 v{C+9}, v{A+2}, v{C+6}
          v_cvt_pk_bf16_f32 v{C+10}, v{A+3}, v{A+3}
          v_cvt_pk_bf16_f32 v{C+11}, v{A+3}, v{C+7}
          ds_write2_b32 v24, v{C+8}, v{C+8} offset0:64 offset1:65
          ds_write2_b32 v24, v{C+8}, v{C+9} offset0:66 offset1:67
          ds_write2_b32 v24, v{C+10}, v{C+10} offset0:0 offset1:1
          ds_write2_b32 v24, v{C+10}, v{C+11} offset0:2 offset1:3
          v_cvt_pk_bf16_f32 v{C+12}, v{A+1}, v{A+1}
          v_cvt_pk_bf16_f32 v{C+13}, v{A+1}, v{A}
          v_cvt_pk_bf16_f32 v{C+14}, v{A}, v{A}
          ds_write2_b32 v25, v{C+12}, v{C+13} offset0:0 offset1:1
          ds_write2_b32 v25, v{C+14}, v{C+14} offset0:2 offset1:3
          s_mov_b32 exec_lo, 0
          s_mov_b32 exec_hi, 1
          ds_write2_b32 v12, v{C+3}, v{C+3} offset0:0 offset1:1
          s_mov_b32 exec_lo, -1
          s_mov_b32 exec_hi, 0
          ds_write_b16 v25, v{C} offset:510
          ds_write2_b32 v25, v{C+1}, v{C+2} offset0:128 offset1:129
          ds_write_b32 v25, v{C+3} offset:520
          ds_write_b16 v25, v{C+3} offset:524
          s_mov_b64 exec, -1
          ds_write_b64 v26, {vr(C+4,2)} offset:4088''')

def pb_setup(first):
    e(f'''v_lshlrev_b32 v50, 4, v0
          v_add_u32 v51, {54*1024 - 2048}, v50
          v_lshrrev_b32 v2, 4, v0
          v_lshlrev_b32 v52, 12, v2
          v_and_b32 v2, 15, v0
          v_lshl_add_u32 v52, v2, 4, v52
          v_lshlrev_b32 v53, 5, v2
          v_min_u32 v248, 35, v0
          v_lshl_add_u32 v248, s74, 2, v248
          v_subrev_u32 v3, 36, v248
          v_min_u32 v248, v248, v3
          s_lshl_b32 s91, s7, 8
          v_lshl_add_u32 v248, v248, 2, s91
          s_lshl_b32 s91, s6, 8
          s_add_u32 s91, s91, {F_Y}
          v_and_b32 v249, 7, v0
          v_lshl_add_u32 v249, v249, 2, s91
          s_mul_i32 s91, s4, 10
          s_and_b32 s92, s7, 1
          s_lshl_b32 s92, s92, 2
          s_add_u32 s91, s91, s92
          v_and_b32 v2, 3, v0
          v_add_u32 v2, s91, v2
          v_lshrrev_b32 v3, 3, v2
          v_lshlrev_b32 v3, 8, v3
          v_and_b32 v2, 7, v2
          v_lshl_add_u32 v3, v2, 2, v3
          v_add_u32 v3, {F_Y}, v3
          v_cmp_gt_u32 vcc, 32, v0
          s_mov_b32 s69, {first}
          s_mov_b32 s72, {first}
          s_mov_b32 s75, 0
          v_cndmask_b32 v249, v3, v249, vcc
          v_readlane_b32 s60, v{T_HG}, {first}
          v_readlane_b32 s61, v{T_HL}, {first}
          s_nop 3''')
NH = [0]
def h_issue(check):
    n = NH[0]; NH[0] += 1
    if check:
        e(f'''s_cmp_lt_u32 s69, s75
              s_cbranch_scc1 L_hk{n}
              s_getpc_b64 s[78:79]
              s_branch L_hpoll
              L_hk{n}:''')
    e(f'''s_mov_b32 m0, s61
          s_add_u32 s69, s69, 1
          buffer_load_dwordx4 v50, s[52:55], s60 offen sc1 lds
          buffer_load_dwordx4 v50, s[52:55], s60 offen offset:1024 sc1 lds
          buffer_load_dwordx4 v51, s[52:55], s60 offen offset:2048 sc1 lds
          buffer_load_dwordx4 v51, s[52:55], s60 offen offset:3072 sc1 lds
          v_readlane_b32 s60, v{T_HG}, s69
          v_readlane_b32 s61, v{T_HL}, s69''')

def poll_eval():
    e(f'''v_cmp_eq_u32 vcc, 1, v247
          s_nop 3
          s_ff0_i32_b64 s15, vcc
          s_lshr_b32 s15, s15, 2
          s_min_u32 s15, s15, 20
          s_mul_i32 s15, s15, 3
          s_add_u32 s75, s15, s72''')

def phase_b():
    e(f'''L_hpoll:
          buffer_load_dword v247, v248, s[{FLG}:{FLG+3}], 0 offen sc1
          s_waitcnt vmcnt(0)
          v_cmp_eq_u32 vcc, 1, v247
          s_nop 3
          s_ff0_i32_b64 s75, vcc
          s_lshr_b32 s75, s75, 2
          s_min_u32 s75, s75, 20
          s_mul_i32 s75, s75, 3
          s_add_u32 s75, s75, s72
          s_cmp_lt_u32 s69, s75
          s_cbranch_scc1 L_hpoll_ok
          s_sleep 1
          s_add_u32 s94, s94, 1
          s_cmp_lt_u32 s94, 0x100000
          s_cbranch_scc1 L_hpoll
          L_hpoll_ok:''')
    if STAMP: e('s_cmp_gt_u32 s69, 3\n s_cbranch_scc1 L_hps')
    stamp(12)
    e('''L_hps:
         s_add_u32 s78, s78, 4
         s_addc_u32 s79, s79, 0
         s_setpc_b64 s[78:79]
         L_g2l_chk:
         s_getpc_b64 s[78:79]
         s_branch L_hpoll
         s_branch L_g2l_h''')
    e(f'L_g2l_pre:\n buffer_load_dword v247, v248, s[{FLG}:{FLG+3}], 0 offen sc1')
    for i in (4, 5):
        w_issue(); h_issue(False)
        stamp_e(i+1, 33)
        e(f's_waitcnt vmcnt({13 if i == 4 else 12})\n s_barrier')
        stamp_b()
    poll_eval()
    e('L_g2l_loop:')
    w_issue()
    e('s_cmp_lt_u32 s69, s75\n s_cbranch_scc0 L_g2l_chk\n L_g2l_h:')
    h_issue(False)
    stamp_e('s69', 33)
    e('s_cmp_lt_u32 s69, 21\n s_waitcnt vmcnt(12)\n s_barrier')
    stamp_b()
    e('s_cbranch_scc1 L_g2l_loop')
    def bar(n, slot):
        stamp_e(slot, 33); e(f's_waitcnt vmcnt({n})\n s_barrier\n s_nop 0'); stamp_b()
    e(f'buffer_load_dword v250, v249, s[{FLG}:{FLG+3}], 0 offen sc1')
    h_issue(True); bar(11, 22)
    h_issue(False); bar(9, 23)
    e(f'''s_lshl_b32 s15, s6, 2
          s_add_u32 s15, s15, s9
          s_lshl_b32 s15, s15, 16
          s_lshl_b32 s11, s7, 8
          s_add_u32 s11, s11, s15
          s_add_u32 s11, s11, {WS_Y}
          s_waitcnt vmcnt(8)
          L_g2l_yc:
          v_cmp_eq_u32 vcc, 1, v250
          s_nop 3
          s_cmp_eq_u64 vcc, -1
          s_cbranch_scc0 L_g2l_yw
          L_g2l_yok:''')
    h_issue(False)
    e(f'''s_lshl_b32 s15, s7, 9
          s_add_u32 s15, s15, {WS_G}
          buffer_load_dwordx4 v[36:39], v53, s[52:55], s15 offen sc1
          buffer_load_dwordx4 v[40:43], v53, s[52:55], s15 offen offset:16 sc1''')
    for n in range(4):
        e(f'buffer_load_dwordx4 {vr(20+4*n,4)}, v52, s[52:55], s11 offen sc1')
        if n < 3: e(f's_add_u32 s11, s11, {4*4096}')
    bar(14, 24)
    h_issue(True)
    e(f'''s_mov_b32 s64, 0xffff0000
          s_lshl_b32 s15, s9, 12
          s_add_u32 s15, s15, {AB}
          v_add_u32 v54, s15, v50
          v_lshrrev_b32 v53, 1, v53''')
    bar(14, 25)
    def ga(n):
        for q in range(4):
            a_ = 20 + 4*n + q
            e(f'''v_lshlrev_b32 v44, 16, v{a_}
                  v_and_b32 v45, s64, v{a_}
                  v_mul_f32 v44, v44, v{36+2*q}
                  v_mul_f32 v45, v45, v{37+2*q}
                  v_cvt_pk_bf16_f32 v{a_}, v44, v45''')
        e(f'ds_write_b128 v54, {vr(20+4*n,4)} offset:{1024*n}')
    h_issue(False); bar(14, 26)
    h_issue(False)
    e('s_waitcnt vmcnt(12)')
    ga(0)
    bar(8, 27)
    ga(1); ga(2)
    e('s_waitcnt vmcnt(4)\n s_barrier')
    ga(3)
    for q in range(4):
        e(f'''v_sub_f32 v{36+2*q}, 1.0, v{36+2*q}
              v_sub_f32 v{37+2*q}, 1.0, v{37+2*q}
              v_cvt_pk_bf16_f32 v{46+q}, v{36+2*q}, v{37+2*q}''')
    e(f'''ds_write_b128 v53, v[46:49] offset:{OM}
          s_waitcnt vmcnt(0) lgkmcnt(0)
          s_barrier''')
    finish()
    e(f'''L_g2l_yw:
          s_add_u32 s94, s94, 1
          s_cmp_lt_u32 s94, 0x100000
          s_cbranch_scc0 L_g2l_yok
          s_sleep 2
          buffer_load_dword v250, v249, s[{FLG}:{FLG+3}], 0 offen sc1
          s_waitcnt vmcnt(0)
          s_branch L_g2l_yc''')

PACC = 192
R_H, R_W0, R_W1, R_A, R_O, R_OM = 224, 225, 226, 227, 228, 229
def pbc_setup():
    srd(60, P_OUT, 2048*1280)
    e(f'''v_and_b32 v230, 15, v0
          v_lshrrev_b32 v231, 4, v0
          s_lshl_b32 s56, s8, 13
          v_lshl_add_u32 v{R_H}, v0, 4, s56
          v_lshrrev_b32 v232, 5, v0
          v_lshlrev_b32 v233, 11, v232
          v_bfe_u32 v232, v0, 2, 3
          v_lshl_add_u32 v233, v232, 7, v233
          v_and_b32 v232, 3, v0
          v_lshl_add_u32 v233, v232, 3, v233
          v_add_u32 v233, {WB}, v233
          v_bfe_u32 v232, v0, 3, 2
          s_lshl_b32 s56, s9, 1
          v_xor_b32 v232, s56, v232
          v_lshl_add_u32 v{R_W0}, v232, 5, v233
          v_xor_b32 v232, 1, v232
          v_lshl_add_u32 v{R_W1}, v232, 5, v233
          v_lshrrev_b32 v232, 2, v0
          v_lshlrev_b32 v{R_A}, 8, v232
          v_and_b32 v232, 3, v0
          v_lshl_add_u32 v{R_A}, v232, 3, v{R_A}
          s_lshl_b32 s56, s9, 13
          s_lshl_b32 s57, s8, 7
          s_add_u32 s56, s56, s57
          s_add_u32 s56, s56, {AB}
          v_add_u32 v{R_A}, s56, v{R_A}
          v_lshl_add_u32 v{R_OM}, v230, 1, s57
          v_mul_u32_u24 v{R_O}, 1280, v230
          v_and_b32 v232, 1, v231
          v_lshl_add_u32 v{R_O}, v232, 5, v{R_O}
          v_lshrrev_b32 v232, 1, v231
          v_lshl_add_u32 v{R_O}, v232, 4, v{R_O}
          s_lshl_b32 s56, s7, 1
          s_add_u32 s56, s56, s8
          s_mul_i32 s65, s56, {64*1280}
          s_lshl_b32 s56, s6, 7
          s_add_u32 s65, s65, s56
          s_lshl_b32 s56, s9, 6
          s_add_u32 s65, s65, s56
          s_mov_b32 s64, 0xffff0000''')
    for i in range(32): e(f'v_mov_b32 v{PACC+i}, 0')
    for i in range(4): e(f'v_mov_b32 v{234+i}, 0')

def phase_b_compute():
    ACC = PACC; FR = 16; GA = 112; G = 234; AT = 144; O = 160; T = 176
    e(f'L_pbc:\n s_mov_b32 s12, {H0}\n s_mov_b32 s13, {6*8192}\n s_mov_b32 s15, 0')
    def reads(st):
        r = []
        for ks in range(2):
            b = FR + 48*st + 24*ks
            for j in range(2):
                r.append(f'ds_read_b128 {vr(b+8+8*j,4)}, v6 offset:{4096*j+1024*ks}')
                for half in range(2):
                    r.append(f'ds_read_b64_tr_b16 {vr(b+4*j+2*half,2)}, v{7+j} offset:{4096*ks+1024*half}')
                r.append(f'ds_read_b128 {vr(b+12+8*j,4)}, v6 offset:{4096*j+2048+1024*ks}')
        return r
    def mfmas(st):
        return [f'v_mfma_f32_16x16x32_bf16 {vr(ACC+8*ti+4*j,4)}, {vr(FR+48*st+24*ks+4*j,4)}, {vr(FR+48*st+24*ks+8+4*ti,4)}, {vr(ACC+8*ti+4*j,4)}'
                for ks in range(2) for ti in range(4) for j in range(2)]
    upd = ['s_add_u32 s12, s12, 16384', 's_cmp_eq_u32 s12, 163840', 's_cselect_b32 s12, 0, s12', 's_cmp_eq_u32 s12, 16384',
           f's_cselect_b32 s12, {H0}, s12', 's_add_u32 s13, s13, 8192', f's_cmp_ge_u32 s13, {NWS*8192}', 's_cselect_b32 s13, 0, s13',
           f'v_add_u32 v6, s12, v{R_H}', f'v_add_u32 v7, s13, v{R_W0}', f'v_add_u32 v8, s13, v{R_W1}']
    def step(st, mm):
        rd = reads(st)
        e('s_barrier')
        per = [int(c) for c in OPT.get('sch', '222211111111')]
        up = list(upd)
        for i, m in enumerate(mm):
            e(m)
            if i < len(per):
                for _ in range(per[i]): e(rd.pop(0))
            else:
                for _ in range(3):
                    if up: e(up.pop(0))
        for r in rd + up: e(r)
        if mm: e('s_waitcnt lgkmcnt(0)')
    for x in upd[-3:]: e(x)
    e('s_waitcnt lgkmcnt(0)')
    step(0, [])
    e('s_waitcnt vmcnt(0)')
    stamp(2)
    xcc_check()
    e('s_cmp_eq_u32 s95, 2\n s_cbranch_scc0 L_pbc_sf')
    flag('s89', 1, '')
    e('L_pbc_go:\n s_waitcnt lgkmcnt(0)\n s_nop 1\n L_g2c_loop:')
    step(1, mfmas(0))
    step(0, mfmas(1))
    e('s_add_u32 s15, s15, 1\n s_cmp_lt_u32 s15, 13\n s_cbranch_scc1 L_g2c_loop')
    for ti in range(4): e(f'ds_read_u16_d16_hi v{G+ti}, v{R_OM} offset:{OM+32*ti}')
    for ti in range(4):
        for j in range(2):
            e(f'ds_read_b64_tr_b16 {vr(AT+4*ti+2*j,2)}, v{R_A} offset:{4096*j+32*ti}')
    mm = mfmas(0)
    order = [mm[8*ks + 2*ti + j] for ti in range(4) for ks in range(2) for j in range(2)]
    for m in order[:8]: e(m)
    stamp(34)
    e('s_waitcnt lgkmcnt(0)')
    for ti in range(4):
        ins = []
        for p in range(4):
            a = ACC + 8*ti + 2*p; y = GA + 8*ti + 2*p; t = T + 2*p
            ins.append([f'v_cvt_pk_bf16_f32 v{t}, v{a}, v{a+1}', f'v_and_b32 v{t+1}, s64, v{t}', f'v_lshlrev_b32 v{t}, 16, v{t}',
                        f'v_mul_f32 v{t}, v{t}, v{G+ti}', f'v_mul_f32 v{t+1}, v{t+1}, v{G+ti}', f'v_cvt_pk_bf16_f32 v{t}, v{t}, v{t+1}',
                        f'v_lshlrev_b32 v{y}, 16, v{AT+4*ti+p}', f'v_and_b32 v{y+1}, s64, v{AT+4*ti+p}',
                        f'v_and_b32 v{t+1}, s64, v{t}', f'v_lshlrev_b32 v{t}, 16, v{t}', f'v_add_f32 v{t}, v{t}, v{y}',
                        f'v_add_f32 v{t+1}, v{t+1}, v{y+1}', f'v_cvt_pk_bf16_f32 v{O+4*ti+p}, v{t}, v{t+1}'])
        if ti < 2:
            for m in order[8+4*ti:12+4*ti]: e(m)
        for k in range(13):
            for p in range(4): e(ins[p][k])
        o = O + 4*ti
        e(f'''s_nop 1
              v_permlane16_swap_b32 v{o}, v{o+2}
              v_permlane16_swap_b32 v{o+1}, v{o+3}
              buffer_store_dwordx4 {vr(o,4)}, v{R_O}, s[60:63], s65 offen''')
        if ti < 3: e(f's_add_u32 s65, s65, {16*1280}')
    finish()
    e('L_pbc_sf:')
    flag('s89', 1)
    e('s_branch L_pbc_go')

prologue(); gemm1(); phase_b(); helper(); ssm()
if opt('prio', 0):
    L.insert(L.index('L_g1c:') + 1, '    s_setprio 2')
e('L_end:\n L_code_end:\n s_endpgm')

HEAD = open(f'cdna_kernels/{NAME}.s.ref').read().split('; Override launch')[0]
HEAD += f'''; @launch grid=(256,1,1) block=(512,1,1) lds=163840
.amdgcn_target "amdgcn-amd-amdhsa--gfx950"
.text
.globl {NAME}_kernel
.type {NAME}_kernel,@function
.p2align 8
'''
TAIL = f'''.section .rodata,"a"
.p2align 6
.amdhsa_kernel {NAME}_kernel
  .amdhsa_next_free_vgpr 256
  .amdhsa_next_free_sgpr 102
  .amdhsa_accum_offset 256
  .amdhsa_group_segment_fixed_size 0
  .amdhsa_kernarg_size 112
  .amdhsa_user_sgpr_count 2
  .amdhsa_user_sgpr_kernarg_segment_ptr 1
  .amdhsa_system_sgpr_workgroup_id_x 1
.end_amdhsa_kernel
'''
open(OUT, 'w').write(HEAD + '\n'.join(L) + '\n' + TAIL)
print('wrote', OUT, len(L), 'lines')
```

```python
import sys, struct

NAME = 'gated_mix__ssm_conv_s4d__dense_activation_relu__prompt'
OUT = sys.argv[1] if len(sys.argv) > 1 else f'cdna_kernels/{NAME}.s'
OPT = dict(a.split('=') for a in sys.argv[2:])
STAMP = int(OPT.get('stamp', 0))
def opt(k, d): return int(OPT.get(k, d))

L = []
def e(s=''):
    for ln in s.split('\n'):
        ln = ln.strip()
        if not ln: continue
        L.append(ln if ln.endswith(':') else '    ' + ln)
def f2u(x): return struct.unpack('<I', struct.pack('<f', x))[0]
def vr(a, n): return f'v[{a}:{a+n-1}]'

WS_H = 0;        H_BYTES = 128*54*1024
WS_Y = 0x700000; Y_BYTES = 640*4096
WS_G = 0x980000; G_BYTES = 8192
WS_F = 0x990000; F_BYTES = 34*256
WS_ST = 0xC00000
F_Y = 16*256; F_X = 26*256
DBG = 84; FLG = 96

def srd(d, lo, nbytes, off=0):
    if off: e(f's_add_u32 s{d}, s{lo}, {hex(off)}\n s_addc_u32 s{d+1}, s{lo+1}, 0')
    else:   e(f's_mov_b32 s{d}, s{lo}\n s_mov_b32 s{d+1}, s{lo+1}')
    e(f's_mov_b32 s{d+2}, {hex(nbytes)}\n s_mov_b32 s{d+3}, 0x00020000')
P_U, P_LAR, P_AI, P_CR, P_CI, P_LDT, P_DSK, P_W1, P_W2, P_GW, P_OUT, P_DBG, P_WS = 16, 18, 20, 22, 24, 26, 28, 32, 34, 36, 38, 40, 42
def sync_srds():
    srd(DBG, P_DBG, 256); srd(FLG, P_WS, F_BYTES, WS_F)

def stamp(slot):
    if STAMP: e(f's_memrealtime s[80:81]\n s_waitcnt lgkmcnt(0)\n v_writelane_b32 v255, s80, {slot}')
def stamp_b():
    if STAMP: e('s_memtime s[82:83]' if STAMP == 2 else 's_memrealtime s[82:83]')
def stamp_e(slot, base):
    if STAMP: e(f's_waitcnt lgkmcnt(0)\n s_add_u32 m0, {slot}, {base}\n v_writelane_b32 v255, s82, m0')
def stamp_cyc(slot):
    if STAMP: e(f's_memtime s[80:81]\n s_waitcnt lgkmcnt(0)\n v_writelane_b32 v255, s80, {slot}')
def finish():
    if STAMP:
        e('s_waitcnt lgkmcnt(0) vmcnt(0)')
        stamp(35); stamp_cyc(15)
        srd(72, P_WS, 0x100000, WS_ST)
        e('''s_lshl_b32 s76, s2, 3
             s_add_u32 s76, s76, s3
             s_lshl_b32 s76, s76, 8
             v_lshlrev_b32 v1, 2, v0
             buffer_store_dword v255, v1, s[72:75], s76 offen''')
    e('s_endpgm')

def flag(off, val, pol='sc1'):
    e(f'''v_mov_b32 v253, {val}
          s_mov_b64 exec, 1
          buffer_store_dword v253, v252, s[{FLG}:{FLG+3}], {off} offen {pol}
          s_mov_b64 exec, -1''')
def join_load():
    e(f'buffer_load_dword v251, v252, s[{DBG}:{DBG+3}], 0 offen sc1')
NJ = [0]
def join(publish):
    n = NJ[0]; NJ[0] += 1
    e(f'''L_join{n}:
          s_waitcnt vmcnt(0)
          v_readfirstlane_b32 s90, v251
          s_lshl_b32 s91, s4, 6
          s_add_u32 s91, s91, s5
          s_lshl_b32 s91, s91, 2
          s_add_u32 s91, s91, {F_X}
          s_cmp_eq_u32 s90, 1
          s_cbranch_scc1 L_joined{n}
          s_sleep 4
          buffer_load_dword v251, v252, s[{DBG}:{DBG+3}], 0 offen sc1
          s_add_u32 s94, s94, 1
          s_cmp_lt_u32 s94, 0x100000
          s_cbranch_scc1 L_join{n}
          L_joined{n}:''')
    if publish: flag('s91', 's88')
def xcc_load():
    e(f'''s_lshl_b32 s90, s4, 8
          s_add_u32 s90, s90, {F_X}
          v_min_u32 v246, 21, v0
          v_lshlrev_b32 v246, 2, v246
          buffer_load_dword v245, v246, s[{FLG}:{FLG+3}], s90 offen sc1''')
def xcc_check():
    e(f'''v_cmp_eq_u32 vcc, s88, v245
          s_nop 3
          s_cmp_eq_u64 vcc, -1
          s_cselect_b32 s95, {2 if opt('fast', 1) else 1}, 1''')

def prologue():
    e(NAME + '_kernel:')
    if STAMP: e('v_mov_b32 v255, 0')
    stamp(0); stamp_cyc(14)
    if STAMP: e('s_mov_b32 s82, 0')
    e('''s_cmp_ge_u32 s2, 256
         s_cbranch_scc1 L_end
         s_load_dwordx16 s[16:31], s[0:1], 0
         s_load_dwordx8 s[32:39], s[0:1], 64
         s_load_dwordx4 s[40:43], s[0:1], 96
         v_lshrrev_b32 v1, 6, v0
         s_getpc_b64 s[6:7]
         L_pc:
         v_min_u32 v2, (L_code_end-L_pc)/128, v0
         v_lshlrev_b32 v2, 7, v2
         s_cmp_lt_u32 s2, %d
         s_cbranch_scc1 L_ncp
         global_load_dword v254, v2, s[6:7]
         L_ncp:
         v_and_b32 v0, 63, v0
         v_readfirstlane_b32 s3, v1
         s_and_b32 s4, s2, 7
         s_lshr_b32 s5, s2, 3
         s_getreg_b32 s88, hwreg(HW_REG_XCC_ID, 0, 4)
         s_add_u32 s88, s88, 1
         s_mov_b32 s94, 0
         s_mov_b32 s70, 0
         s_mov_b32 s71, 0
         s_mov_b32 s76, 1
         s_mov_b32 s95, 0
         v_mov_b32 v252, 0
         v_mov_b32 v251, 0
         s_cmp_ge_u32 s5, 18
         s_cbranch_scc1 L_not_g1''' % (8*opt('cpm', 18)))

SL = 40960; WR = 16384
H0 = 114688; AB = 16384; WB = 32768; NWS = 10; OM = WB + 3*8192
def tile_ids():
    e('''s_and_b32 s7, s5, 1
         s_lshr_b32 s6, s5, 1
         s_lshl_b32 s8, s4, 1
         s_add_u32 s7, s7, s8''')
T_HG, T_HL, T_WG, T_WL = 56, 57, 58, 59
def wpre_setup():
    srd(56, P_W2, 1728*1280)
    srd(52, P_WS, WS_F)
    e(f'''v_lshrrev_b32 v2, 3, v0
          v_mul_u32_u24 v17, 1280, v2
          v_and_b32 v3, 7, v0
          v_and_b32 v2, 6, v2
          v_xor_b32 v3, v3, v2
          v_lshl_add_u32 v17, v3, 4, v17
          v_add_u32 v18, {8*1280-1024}, v17
          s_mul_i32 s68, s6, 3
          v_min_u32 v2, 26, v0
          v_add_u32 v2, s68, v2
          v_subrev_u32 v3, 27, v2
          v_min_u32 v2, v2, v3
          s_lshl_b32 s66, s7, 3
          s_lshl_b32 s67, s9, s76
          s_add_u32 s66, s66, s67
          s_mul_i32 s66, s66, {54*1024}
          s_mul_i32 s67, s70, {54*64}
          s_add_u32 s66, s66, s67
          v_lshl_add_u32 v{T_HG}, v2, 11, s66
          s_mul_i32 s66, s9, {16*1280}
          s_lshl_b32 s67, s6, 7
          s_add_u32 s66, s66, s67
          v_mul_u32_u24 v2, {64*1280}, v2
          v_add_u32 v{T_WG}, s66, v2
          v_and_b32 v2, 3, v0
          v_lshlrev_b32 v2, 14, v2
          v_add_u32 v2, {H0}, v2
          v_subrev_u32 v3, 163840, v2
          v_min_u32 v2, v2, v3
          s_lshl_b32 s66, s9, 11
          s_lshl_b32 s66, s66, s76
          v_add_u32 v{T_HL}, s66, v2
          v_add_u32 v2, 6, v0
          v_mul_u32_u24 v3, 6554, v2
          v_lshrrev_b32 v3, 16, v3
          v_mul_u32_u24 v3, 10, v3
          v_sub_u32 v2, v2, v3
          s_lshl_b32 s66, s9, 11
          s_add_u32 s66, s66, {WB}
          v_lshl_add_u32 v{T_WL}, v2, 13, s66
          s_mov_b32 s73, 0
          v_readlane_b32 s66, v{T_WG}, 0
          v_readlane_b32 s67, v{T_WL}, 0
          s_nop 2''')
def w_issue():
    e(f'''s_mov_b32 m0, s67
          s_add_u32 s73, s73, 1
          buffer_load_dwordx4 v17, s[56:59], s66 offen lds
          buffer_load_dwordx4 v18, s[56:59], s66 offen offset:1024 lds
          v_readlane_b32 s66, v{T_WG}, s73
          v_readlane_b32 s67, v{T_WL}, s73''')
NW = [0]
def w_preload(upto):
    k = NW[0]; NW[0] += 1
    e(f'L_wp{k}:')
    w_issue()
    e(f's_cmp_lt_u32 s73, {upto}\n s_cbranch_scc1 L_wp{k}')

def gemm1():
    tile_ids()
    e('s_cmp_lt_u32 s3, 4\n s_cbranch_scc1 L_g1c')
    e('''s_sub_u32 s9, s3, 4
         v_lshrrev_b32 v2, 3, v0
         v_mul_u32_u24 v2, 1280, v2
         v_and_b32 v3, 7, v0
         v_lshrrev_b32 v4, 4, v0
         v_xor_b32 v3, v3, v4
         v_lshl_add_u32 v10, v3, 4, v2
         v_xor_b32 v3, 4, v3
         v_lshl_add_u32 v11, v3, 4, v2
         v_add_u32 v11, %d, v11
         v_add_u32 v12, %d, v10
         v_add_u32 v13, %d, v11''' % (9216, 2*9216, 2*9216))
    for b in range(3):
        e(f'''v_add_u32 v2, {64*b}, v0
              v_mul_u32_u24 v3, 2731, v2
              v_lshrrev_b32 v3, 16, v3
              v_mul_u32_u24 v4, 24, v3
              v_sub_u32 v4, v2, v4
              v_and_b32 v5, 2, v3
              v_xor_b32 v4, v4, v5
              v_mul_u32_u24 v3, 3456, v3
              v_subrev_u32 v3, {1024*b}, v3
              v_lshl_add_u32 v{14+b}, v4, 4, v3
              v_xor_b32 v4, 4, v4
              v_lshl_add_u32 v{19+b}, v4, 4, v3''')
    e(f's_mul_i32 s14, s6, {opt("ra", 0)}\n s_lshr_b32 s12, s4, {opt("rs", 0)}\n s_mul_i32 s12, s12, {opt("rb", 1)}\n s_add_u32 s14, s14, s12')
    e('''s_cmp_ge_u32 s14, 10
         s_cselect_b32 s12, 10, 0
         s_sub_u32 s14, s14, s12
         s_lshl_b32 s10, s7, 2
         s_add_u32 s10, s10, s9
         s_mul_i32 s10, s10, %d
         s_lshl_b32 s12, s14, 7
         s_add_u32 s10, s10, s12
         s_mul_i32 s11, s9, %d
         s_mul_i32 s12, s6, 384
         s_add_u32 s11, s11, s12
         s_mul_i32 s12, s14, %d
         s_add_u32 s11, s11, s12
         s_lshl_b32 s12, s9, 12
         s_mul_i32 s13, s9, 6144
         s_add_u32 s13, s13, %d
         s_mov_b32 s8, 0
         s_mov_b32 s64, %d
         s_mov_b32 s65, %d
         s_waitcnt lgkmcnt(0)''' % (32*1280, 16*3456, 64*3456, WR, (-3*SL) & 0xffffffff, SL))
    srd(44, P_U, 2048*1280)
    srd(48, P_W1, 640*3456)
    iblk = '''         s_mov_b32 m0, s12
         s_add_u32 s15, s11, %d
         buffer_load_dwordx4 v10, s[44:47], s10 offen lds
         buffer_load_dwordx4 v11, s[44:47], s10 offen offset:1024 lds
         buffer_load_dwordx4 v12, s[44:47], s10 offen offset:2048 lds
         buffer_load_dwordx4 v13, s[44:47], s10 offen offset:3072 lds
         s_mov_b32 m0, s13
         s_add_u32 s10, s10, 128
         buffer_load_dwordx4 v14, s[48:51], s11 offen lds
         buffer_load_dwordx4 v15, s[48:51], s11 offen offset:1024 lds
         buffer_load_dwordx4 v16, s[48:51], s11 offen offset:2048 lds
         s_add_u32 m0, s13, 3072
         s_add_u32 s11, s11, %d
         buffer_load_dwordx4 v19, s[48:51], s15 offen lds
         buffer_load_dwordx4 v20, s[48:51], s15 offen offset:1024 lds
         buffer_load_dwordx4 v21, s[48:51], s15 offen offset:2048 lds
         s_cmp_ge_u32 s12, %d
         s_cselect_b32 s15, s64, s65
         s_add_u32 s12, s12, s15
         s_add_u32 s13, s13, s15
         s_add_u32 s14, s14, 1
         s_cmp_eq_u32 s14, 10
         s_cselect_b32 s15, 1280, 0
         s_sub_u32 s10, s10, s15
         s_cmp_eq_u32 s14, 10
         s_cselect_b32 s15, %d, 0
         s_sub_u32 s11, s11, s15
         s_add_u32 s8, s8, 1
''' % (8*3456, 64*3456, 3*SL, 640*3456)
    e(iblk)
    sync_srds()
    wpre_setup()
    e('s_add_u32 s74, s6, 1')
    pb_setup(3)
    e('L_g1l_loop:')
    e(iblk)
    stamp_e('s8', 14)
    e('s_waitcnt vmcnt(10)\n s_barrier')
    stamp_b()
    e('s_cmp_lt_u32 s8, 10\n s_cbranch_scc1 L_g1l_loop')
    def rload(k):
        e(f'''s_add_u32 s73, s73, 1
              buffer_load_dwordx4 {vr(64+8*k,4)}, v17, s[56:59], s66 offen
              buffer_load_dwordx4 {vr(68+8*k,4)}, v18, s[56:59], s66 offen offset:1024
              v_readlane_b32 s66, v{T_WG}, s73
              v_readlane_b32 s67, v{T_WL}, s73
              s_nop 2''')
    R2 = opt('r2', 0)
    e(f'buffer_load_dword v247, v248, s[{FLG}:{FLG+3}], 0 offen sc1')
    w_preload(4)
    e('s_nop 1')
    for k in range(R2): rload(k)
    stamp(7)
    e(f's_waitcnt vmcnt({9+2*R2})\n s_barrier')
    stamp(8)
    for k in range(R2, 6): rload(k)
    e(f'''s_lshl_b32 s15, s9, 11
          s_add_u32 s15, s15, {WB}
          v_add_u32 v54, s15, v50
          s_barrier''')
    for k in range(6):
        e(f's_waitcnt vmcnt({10-2*k})\n ds_write_b128 v54, {vr(64+8*k,4)} offset:{8192*k}\n ds_write_b128 v54, {vr(68+8*k,4)} offset:{8192*k+1024}')
    stamp(10)
    e('s_waitcnt lgkmcnt(0)\n s_barrier')
    stamp(32)
    h_issue(True)
    e('s_barrier')
    stamp(9)
    e('s_branch L_g2l_pre')

    e('L_g1c:')
    ACC = 16; FR = 112; XB = 2; XA = 8
    e(f'''s_lshr_b32 s8, s3, 1
          s_and_b32 s9, s3, 1
          v_and_b32 v14, 15, v0
          s_lshl_b32 s10, s8, 6
          v_add_u32 v15, s10, v14
          v_lshlrev_b32 v15, 7, v15
          v_bfe_u32 v14, v0, 1, 3
          v_lshrrev_b32 v1, 4, v0
          v_xor_b32 v14, v14, v1
          v_lshl_add_u32 v{XB}, v14, 4, v15
          v_xor_b32 v14, 4, v14
          v_lshl_add_u32 v{XB+1}, v14, 4, v15
          v_lshlrev_b32 v1, 3, v1
          v_bfe_u32 v14, v0, 2, 2
          v_add_u32 v1, v1, v14
          v_mul_u32_u24 v1, 384, v1
          v_and_b32 v14, 3, v0
          v_lshl_add_u32 v1, v14, 3, v1
          v_add_u32 v1, {WR}, v1
          v_bfe_u32 v14, v0, 3, 2
          s_mul_i32 s10, s9, 6''')
    for c in range(4):
        e(f'''s_add_u32 s11, s10, {c}
              v_xor_b32 v15, s11, v14
              v_lshl_add_u32 v{XB+2+c}, v15, 5, v1''')
    for i in range(96): e(f'v_mov_b32 v{ACC+i}, 0')
    e(f'''v_lshlrev_b32 v1, 4, v0
          s_lshl_b32 s66, s7, 1
          s_add_u32 s66, s66, s8
          s_mul_i32 s66, s66, {4*54}
          s_mul_i32 s11, s6, 6
          s_mul_i32 s12, s9, 3
          s_add_u32 s11, s11, s12
          s_add_u32 s66, s66, s11
          s_lshl_b32 s66, s66, 10
          s_add_u32 s67, s66, {54*1024}
          s_add_u32 s68, s66, {2*54*1024}
          s_add_u32 s69, s66, {3*54*1024}
          s_lshl_b32 s12, s8, 13
          s_add_u32 s12, s12, {H0}
          s_mul_i32 s13, s9, 31744
          s_add_u32 s13, s13, s12
          v_add_u32 v241, s13, v1
          s_mul_i32 s13, s9, 17408
          s_add_u32 s13, s13, s12
          v_add_u32 v240, s13, v1
          s_waitcnt lgkmcnt(0)''')
    srd(52, P_WS, H_BYTES, WS_H)
    sync_srds()
    pbc_setup()
    e('s_cmp_eq_u32 s3, 0\n s_cselect_b32 s15, 1, 99\n s_mov_b32 s12, 0\n s_mov_b32 s13, 0\n s_mov_b32 s14, 0')
    def reads(ks):
        base = FR + 40*ks
        x = [f'ds_read_b128 {vr(base+24+4*ti,4)}, v{XA+ks} offset:{2048*ti}' for ti in range(4)]
        w = [f'ds_read_b64_tr_b16 {vr(base+4*fi+2*half,2)}, v{XA+2+(fi&3)} offset:{(32*ks+4*half)*384+128*(fi>>2)}' for fi in range(6) for half in range(2)]
        return w[:2] + x + w[2:]
    def acc(fi, ti): return ACC + 32*(fi >> 1) + 8*ti + 4*(fi & 1)
    def mfma(ks, fi, ti):
        base = FR + 40*ks
        return f'v_mfma_f32_16x16x32_bf16 {vr(acc(fi,ti),4)}, {vr(base+4*fi,4)}, {vr(base+24+4*ti,4)}, {vr(acc(fi,ti),4)}'
    def step(ks, other):
        other = list(other)
        for fi in range(6):
            for ti in range(4):
                e(mfma(ks, fi, ti))
                if other: e(other.pop(0))
        assert not other
        e('s_waitcnt lgkmcnt(0)')
    for i in range(6): e(f'v_mov_b32 v{XA+i}, v{XB+i}')
    e('s_barrier')
    for r in reads(0): e(r)
    e('s_waitcnt lgkmcnt(0)\n s_branch L_g1c_mid')
    e('L_g1c_hook:\n s_cmp_eq_u32 s15, 1\n s_cbranch_scc0 L_g1c_hk2')
    join_load()
    e('s_mov_b32 s15, 3\n s_branch L_g1c_lp2\n L_g1c_hk2:')
    join(True)
    e('s_branch L_g1c_lp2')
    e('L_g1c_loop:\n s_cmp_eq_u32 s14, s15\n s_cbranch_scc1 L_g1c_hook\n L_g1c_lp2:')
    e('s_barrier')
    step(1, reads(0))
    e('L_g1c_mid:')
    upd = [f's_add_u32 s12, s12, {SL}\n s_cmp_ge_u32 s12, {4*SL}\n s_cselect_b32 s12, 0, s12', 's_add_u32 s14, s14, 1\n s_cmp_lt_u32 s14, 10']
    upd += [f'v_add_u32 v{XA+i}, s12, v{XB+i}' for i in range(6)]
    step(0, reads(1) + upd)
    e('s_cbranch_scc1 L_g1c_loop')
    stamp(3)
    xcc_load()
    e('s_barrier')
    def epi(n):
        m, ti = n >> 2, n & 3
        d = acc(2*m, ti)
        out = [f'v_cvt_pk_bf16_f32 v{d+q}, v{d+2*q}, v{d+2*q+1}' for q in range(4)]
        out += [f'v_pk_max_i16 v{d+q}, v{d+q}, 0' for q in range(4)]
        out.append(f'buffer_store_dwordx4 {vr(d,4)}, v1, s[52:55], s{66+ti} offen offset:{1024*m} sc1')
        return out
    mm = [mfma(1, 2*(n >> 2) + j, n & 3) for n in range(12) for j in range(2)]
    for x in mm[:10]: e(x)
    for n in range(12):
        ep = epi(n)
        for k, x in enumerate(ep):
            e(x)
            if k in (3, 7) and 10 + 2*n + (k >> 2) < 24: e(mm[10 + 2*n + (k >> 2)])
    stamp(4)
    for n in range(12):
        m, ti = n >> 2, n & 3
        e(f'ds_write_b128 v{240+(m&1)}, {vr(acc(2*m,ti),4)} offset:{[0, 1024, 16384][m] + 2048*ti}')
    stamp(1)
    e('''s_lshl_b32 s89, s7, 4
         s_add_u32 s89, s89, s6
         s_lshl_b32 s89, s89, 2
         s_add_u32 s89, s89, s3
         s_lshl_b32 s89, s89, 2''')
    phase_b_compute()

def helper():
    e('''L_not_g1:
         s_cmp_ge_u32 s5, 22
         s_cbranch_scc1 L_ssm
         s_sub_u32 s8, s5, 18
         s_waitcnt lgkmcnt(0)''')
    sync_srds()
    e(f'''s_cmp_eq_u32 s2, {21*8}
          s_cbranch_scc0 L_hp_nc
          s_lshl_b32 s9, s3, 10
          v_lshl_add_u32 v2, v0, 4, s9
          v_mov_b32 v4, 0
          v_mov_b32 v5, 0
          v_mov_b32 v6, 0
          v_mov_b32 v7, 0
          s_movk_i32 s9, 0x2000
          buffer_store_dwordx4 v[4:7], v2, s[{FLG}:{FLG+3}], 0 offen sc1
          buffer_store_dwordx4 v[4:7], v2, s[{FLG}:{FLG+3}], s9 offen sc1
          s_waitcnt vmcnt(0)
          s_barrier
          s_cmp_eq_u32 s3, 0
          s_cbranch_scc0 L_hp_nc
          v_mov_b32 v5, 1
          s_mov_b64 exec, 1
          buffer_store_dword v5, v4, s[{DBG}:{DBG+3}], 0 offen sc1
          s_mov_b64 exec, -1
          L_hp_nc:''')
    srd(56, P_W2, 1728*1280)
    e(f'''v_min_u32 v5, 59, v0
          v_mul_u32_u24 v6, 6554, v5
          v_lshrrev_b32 v6, 16, v6
          v_mul_u32_u24 v7, 10, v6
          v_sub_u32 v7, v5, v7
          v_mul_u32_u24 v5, 192, v7
          v_add_u32 v5, v5, v6
          v_lshlrev_b32 v7, 7, v7
          s_lshl_b32 s10, s8, 3
          s_add_u32 s10, s10, s3
          s_mul_i32 s10, s10, 6
          s_cmp_eq_u32 s3, 0
          s_cbranch_scc0 L_hp_nj''')
    join_load()
    join(True)
    e('L_hp_nj:\n s_barrier\n L_hp_go:')
    def pf(rb, d):
        e(f'''v_add_u32 v8, {rb}, v5
              v_subrev_u32 v9, 1728, v8
              v_min_u32 v8, v8, v9
              v_mul_u32_u24 v8, 1280, v8
              v_add_u32 v8, v8, v7
              buffer_load_dword v{d}, v8, s[56:59], 0 offen''')
    if opt('wt', 1):
        for n in range(4):
            e(f's_add_u32 s11, s4, {n}\n s_and_b32 s11, s11, 3\n s_mul_i32 s11, s11, 192\n s_add_u32 s11, s11, s10')
            pf('s11', 20+n)
        e('''s_lshl_b32 s11, s8, 3
             s_add_u32 s11, s11, s3
             s_lshl_b32 s11, s11, 3
             s_add_u32 s11, s11, s4
             s_lshl_b32 s11, s11, 2
             s_add_u32 s11, s11, 768
             s_min_u32 s11, s11, 1722
             s_mov_b32 exec_hi, 0xff''')
        pf('s11', 25)
        e('s_mov_b32 exec_hi, -1\n s_barrier')
        stamp(1)
    e('s_waitcnt vmcnt(0)')
    stamp(2)
    e('''s_lshr_b32 s70, s8, 1
         s_lshl_b32 s70, s70, 6
         s_nop 0''')
    tile_ids()
    e('s_mov_b32 s6, 9\n s_mov_b32 s76, 0')
    e('s_cmp_lt_u32 s3, 4\n s_cbranch_scc0 L_hp_l\n s_lshr_b32 s8, s3, 1\n s_and_b32 s9, s3, 1')
    pbc_setup()
    phase_b_compute(2)
    e('L_hp_l:\n s_sub_u32 s9, s3, 4')
    wpre_setup()
    w_preload(10)
    e('s_mov_b32 s74, 0')
    pb_setup(0)
    e('s_branch L_hl_loop')

US = 8704; UO = 4164; RA = 8*8704 + 16; RS = 4592
def ssm():
    U = 228
    e('''L_ssm:
         s_sub_u32 s77, s5, 22
         s_mul_i32 s6, s4, 10
         s_add_u32 s6, s6, s77
         s_lshl_b32 s6, s6, 3
         s_add_u32 s7, s6, s3
         v_lshlrev_b32 v4, 2, v0
         s_lshl_b32 s10, s7, 8
         s_lshl_b32 s11, s7, 1
         s_waitcnt lgkmcnt(0)''')
    srd(48, P_LAR, 163840); srd(64, P_LDT, 1280)
    e('buffer_load_dword v6, v4, s[48:51], s10 offen\n buffer_load_ushort v10, v252, s[64:67], s11 offen')
    srd(52, P_AI, 163840); srd(56, P_CR, 163840); srd(60, P_CI, 163840); srd(44, P_DSK, 1280)
    e('''buffer_load_dword v7, v4, s[52:55], s10 offen
         buffer_load_dword v8, v4, s[56:59], s10 offen
         buffer_load_dword v9, v4, s[60:63], s10 offen
         buffer_load_ushort v11, v252, s[44:47], s11 offen
         s_barrier''')
    srd(72, P_U, 2048*1280)
    sync_srds()
    e(f'''s_mul_i32 s9, s4, 160
          s_and_b32 s9, s9, 0xffffff80
          s_and_b32 s10, s3, 1
          s_lshl_b32 s10, s10, 7
          s_add_u32 s9, s9, s10
          s_lshl_b32 s10, s77, 2
          s_lshr_b32 s11, s3, 1
          s_add_u32 s10, s10, s11
          s_mul_i32 s10, s10, {52*1280}
          s_add_u32 s9, s9, s10
          v_min_u32 v2, 51, v0
          v_mul_u32_u24 v2, 1280, v2
          {'s_mov_b32 s79, s9' if opt('wl', 1) else 'buffer_load_dword v248, v2, s[72:75], s9 offen'}
          v_mul_u32_u24 v3, 5120, v0
          s_mul_i32 s78, s3, {256*1280}
          s_lshl_b32 s9, s6, 1
          s_add_u32 s78, s78, s9
          s_sub_u32 s9, s78, 1280
          v_mov_b32 v5, s9''')
    uld = [f'buffer_load_dwordx4 {vr(U+4*r,4)}, v3, s[72:75], s78 offen offset:{1280*r}' for r in range(4)]
    uld[3] += f'\n s_mov_b64 exec, 1\n buffer_load_dwordx4 {vr(U+16,4)}, v5, s[72:75], 0 offen\n s_mov_b64 exec, -1'
    kgen(uld)
    stamp(1)
    e('s_cmp_eq_u32 s3, 0\n s_cbranch_scc0 L_ssm_nj')
    join(False)
    e('L_ssm_nj:\n s_waitcnt lgkmcnt(0)\n s_barrier')
    e(f'''s_mul_i32 s12, s3, {US}
          v_add_u32 v12, s12, v4
          s_mov_b64 exec, 0xff
          ds_write_b32 v12, v252
          ds_write_b32 v12, v252 offset:{UO-4}
          s_mov_b64 exec, -1
          s_lshl_b32 s13, s3, 9
          v_lshl_add_u32 v13, v0, 3, s13
          s_mov_b32 s14, 0x05040100
          s_mov_b32 s15, 0x07060302
          s_waitcnt vmcnt(0)
          s_nop 0''')
    for c in range(4):
        e(f'v_mov_b32_dpp v{U+16+c}, v{U+12+c} wave_shr:1 row_mask:0xf bank_mask:0xf')
    for ch in range(8):
        c = ch >> 1; sel = 14 + (ch & 1); t = 64 + 4*ch
        e(f'''v_perm_b32 v{t}, v{U+4+c}, v{U+c}, s{sel}
              v_perm_b32 v{t+1}, v{U+12+c}, v{U+8+c}, s{sel}
              v_perm_b32 v{t+2}, v{U+c}, v{U+16+c}, s{sel}
              v_perm_b32 v{t+3}, v{U+8+c}, v{U+4+c}, s{sel}
              ds_write_b64 v13, {vr(t,2)} offset:{ch*US+32}
              ds_write_b64 v13, {vr(t+2,2)} offset:{ch*US+UO+28}''')
    e(f'''v_and_b32 v4, 15, v0
          v_lshrrev_b32 v5, 4, v0
          v_add_u32 v6, 1, v4
          v_and_b32 v7, 1, v6
          v_mul_u32_u24 v7, {UO}, v7
          v_lshrrev_b32 v6, 1, v6
          v_lshl_add_u32 v7, v6, 2, v7
          v_lshlrev_b32 v6, 4, v5
          v_sub_u32 v7, v7, v6
          v_add_u32 v7, 48, v7
          v_add_u32 v8, s12, v7
          v_add_u32 v9, 1024, v8
          v_add_u32 v10, 2048, v8
          v_add_u32 v11, 3072, v8
          v_lshlrev_b32 v7, 5, v4
          v_add_u32 v7, v7, v6
          s_mul_i32 s13, s3, {RS}
          s_add_u32 s13, s13, {RA+528}
          v_sub_u32 v12, s13, v7''')
    ACC = 32; F = 64
    for i in range(32): e(f'v_mov_b32 v{ACC+i}, 0')
    srd(48, P_WS, Y_BYTES, WS_Y)
    srd(56, P_W2, 1728*1280)
    e(f'''v_min_u32 v193, 59, v0
          v_mul_u32_u24 v194, 6554, v193
          v_lshrrev_b32 v194, 16, v194
          v_mul_u32_u24 v195, 10, v194
          v_sub_u32 v195, v193, v195
          v_mul_u32_u24 v193, 192, v195
          v_add_u32 v193, v193, v194
          v_lshlrev_b32 v195, 7, v195
          s_lshl_b32 s13, s77, 2
          s_add_u32 s13, s13, s3
          s_mul_i32 s13, s13, 6
          s_add_u32 s13, s13, 768
          v_add_u32 v193, s13, v193''')
    for n in range(4):
        e(f'''v_add_u32 v{196+n}, {240*n}, v193
              v_subrev_u32 v194, 1728, v{196+n}
              v_min_u32 v{196+n}, v{196+n}, v194
              v_mul_u32_u24 v{196+n}, 1280, v{196+n}
              v_add_u32 v{196+n}, v{196+n}, v195''')
    e(f'''s_cmp_ge_u32 s3, 4
          s_cselect_b32 s14, 9, {opt('sp', 0)}
          s_waitcnt lgkmcnt(0)
          s_barrier''')
    stamp(2)
    def reads(st):
        b = F + 64*st; r = []
        for m in range(8):
            r.append(f'ds_read_b128 {vr(b+32+4*m,4)}, v12 offset:{(7-m)*512}')
            o = 128*(m & 1)
            r.append(f'ds_read2_b32 {vr(b+4*m,2)}, v{8+m//2} offset0:{o} offset1:{o+1}')
            r.append(f'ds_read2_b32 {vr(b+4*m+2,2)}, v{8+m//2} offset0:{o+2} offset1:{o+3}')
        return r
    adv = [f'v_add_u32 v{8+i}, 64, v{8+i}' for i in range(5)]
    def unit(st, other):
        b = F + 64*st; other = list(other)
        for m in range(8):
            for h in range(m, 8):
                e(f'v_mfma_f32_16x16x32_bf16 {vr(ACC+4*h,4)}, {vr(b+4*m,4)}, {vr(b+32+4*(h-m),4)}, {vr(ACC+4*h,4)}')
                if other: e(other.pop(0))
        e('s_waitcnt lgkmcnt(0)')
    for r in reads(0): e(r)
    e(f'''s_mov_b32 s15, 0
          s_waitcnt lgkmcnt(0)
          L_conv_loop:
          s_cmp_eq_u32 s15, s14
          s_cbranch_scc0 L_conv_np
          buffer_load_dword v200, v196, s[56:59], 0 offen
          buffer_load_dword v201, v197, s[56:59], 0 offen
          buffer_load_dword v202, v198, s[56:59], 0 offen
          buffer_load_dword v203, v199, s[56:59], 0 offen
          L_conv_np:''')
    unit(0, adv + reads(1))
    unit(1, adv + reads(0))
    e(f's_add_u32 s15, s15, 1\n s_cmp_lt_u32 s15, {opt("cit", 4)}\n s_cbranch_scc1 L_conv_loop')
    stamp(3)
    e(f'''v_lshlrev_b32 v14, 5, v4
          v_lshrrev_b32 v6, 1, v5
          v_lshl_add_u32 v14, v6, 4, v14
          v_and_b32 v6, 1, v5
          v_lshl_add_u32 v14, v6, 9, v14
          s_lshl_b32 s11, s7, 12
          s_nop 0''')
    for hp in range(4):
        a = ACC + 8*hp; o = F + 4*hp
        e(f'''v_cvt_pk_bf16_f32 v{o}, v{a}, v{a+1}
              v_cvt_pk_bf16_f32 v{o+1}, v{a+2}, v{a+3}
              v_cvt_pk_bf16_f32 v{o+2}, v{a+4}, v{a+5}
              v_cvt_pk_bf16_f32 v{o+3}, v{a+6}, v{a+7}
              s_nop 1
              v_permlane16_swap_b32 v{o}, v{o+2}
              v_permlane16_swap_b32 v{o+1}, v{o+3}
              buffer_store_dwordx4 {vr(o,4)}, v14, s[48:51], s11 offen offset:{1024*hp} sc1''')
    e('s_cmp_lt_u32 s3, 4\n s_cbranch_scc0 L_ssm_fin')
    gate()
    e('L_ssm_fin:')
    e(f'''s_lshr_b32 s12, s6, 6
          s_lshl_b32 s12, s12, 8
          s_bfe_u32 s13, s6, 0x30003
          s_lshl_b32 s13, s13, 2
          s_add_u32 s12, s12, s13
          s_add_u32 s12, s12, {F_Y}
          s_waitcnt vmcnt(0)
          s_barrier
          s_cmp_eq_u32 s3, 0
          s_cbranch_scc0 L_ssm_end''')
    flag('s12', 1)
    e('L_ssm_end:')
    finish()

def gate():
    srd(52, P_GW, 1280); srd(60, P_WS, G_BYTES, WS_G)
    e(f'''s_lshl_b32 s9, s77, 2
          s_add_u32 s9, s9, s3
          s_lshl_b32 s10, s4, 5
          s_add_u32 s10, s10, s9
          s_lshl_b32 s10, s10, 3
          v_lshlrev_b32 v3, 4, v4
          v_mul_u32_u24 v6, 1280, v5
          v_add_u32 v6, v6, v3
          s_mul_i32 s11, s10, 1280
          s_add_u32 s12, s11, 5120
          s_cmp_lt_u32 s77, 8
          s_cbranch_scc0 L_ssm_fin''')
    for n in range(5): e(f'buffer_load_dwordx4 {vr(140+4*n,4)}, v3, s[52:55], 0 offen offset:{256*n}')
    for p in range(2):
        for n in range(5): e(f'buffer_load_dwordx4 {vr(100+20*p+4*n,4)}, v6, s[72:75], s{11+p} offen offset:{256*n}')
    e('''s_mov_b32 s13, 0xffff0000
         v_lshlrev_b32 v2, 2, v5
         s_lshl_b32 s10, s10, 2
         s_waitcnt vmcnt(10)''')
    for n in range(20): e(f'v_lshlrev_b32 v{160+2*n}, 16, v{140+n}\n v_and_b32 v{161+2*n}, s13, v{140+n}')
    e('s_mov_b32 s14, 0\n s_waitcnt vmcnt(0)')
    e('L_gate:\n v_mov_b32 v8, 0\n v_mov_b32 v9, 0')
    for n in range(20):
        e(f'''v_lshlrev_b32 v10, 16, v{100+n}
              v_and_b32 v11, s13, v{100+n}
              v_mul_f32 v10, v10, v{160+2*n}
              v_mul_f32 v11, v11, v{161+2*n}
              v_cvt_pk_bf16_f32 v10, v10, v11
              v_mov_b32 v{100+n}, v{120+n}
              v_and_b32 v11, s13, v10
              v_lshlrev_b32 v10, 16, v10
              v_add_f32 v9, v9, v11
              v_add_f32 v8, v8, v10''')
    e('v_add_f32 v8, v8, v9\n s_nop 1')
    for sh in (8, 4, 2, 1):
        e(f'v_add_f32_dpp v8, v8, v8 row_ror:{sh} row_mask:0xf bank_mask:0xf\n s_nop 1')
    e('''v_cvt_pk_bf16_f32 v8, v8, v8
         v_lshlrev_b32 v8, 16, v8
         v_mul_f32 v8, 0xbfb8aa3b, v8
         v_exp_f32 v8, v8
         s_nop 0
         v_add_f32 v8, 1.0, v8
         v_rcp_f32 v8, v8
         s_nop 0
         v_cvt_pk_bf16_f32 v8, v8, v8
         v_lshlrev_b32 v12, 16, v8
         buffer_store_dword v12, v2, s[60:63], s10 offen sc1
         s_add_u32 s10, s10, 16
         s_add_u32 s14, s14, 1
         s_cmp_lt_u32 s14, 2
         s_cbranch_scc1 L_gate''')

def kgen(uld):
    L2E = 1.4426950408889634
    l2e_hi = struct.unpack('<f', struct.pack('<f', L2E))[0]
    l2e_lo = L2E - l2e_hi
    e(f'''s_mul_i32 s12, s3, {RS}
          s_add_u32 s12, s12, {RA}
          v_lshl_add_u32 v13, v0, 3, s12
          v_mov_b32 v14, 0
          v_mov_b32 v15, 0
          s_mov_b32 exec_hi, 0x0fffffff
          ds_write_b64 v13, v[14:15] offset:4096
          s_mov_b32 exec_hi, -1
          s_mul_i32 s13, s3, {US}
          s_mov_b32 m0, s13
          v_and_b32 v18, 15, v0
          v_lshrrev_b32 v19, 4, v0
          v_mul_u32_u24 v17, 544, v18
          v_lshl_add_u32 v17, v19, 4, v17
          v_add_u32 v17, s13, v17
          v_mov_b32 v16, 0x3c00
          ds_write_addtid_b32 v16
          ds_write_addtid_b32 v16 offset:256
          v_lshlrev_b32 v12, 4, v18
          v_sub_u32 v12, s12, v12
          v_lshlrev_b32 v27, 9, v19
          v_sub_u32 v24, v12, v27
          v_add_u32 v24, {2040-256}, v24
          v_lshlrev_b32 v27, 8, v19
          v_sub_u32 v25, v12, v27
          v_add_u32 v25, 3060, v25
          v_lshrrev_b32 v27, 1, v19
          v_lshlrev_b32 v27, 8, v27
          v_sub_u32 v26, v12, v27
          v_and_b32 v27, 1, v19
          v_lshlrev_b32 v27, 3, v27
          v_sub_u32 v26, v26, v27
          s_mov_b32 s68, {hex(f2u(l2e_hi))}
          s_mov_b32 s69, {hex(f2u(l2e_lo))}
          s_mov_b32 s70, {hex(f2u(0.6931471805599453))}
          s_mov_b32 s71, 0xffff0000
          s_waitcnt vmcnt({4 if opt('wl', 1) else 5})''')
    if opt('wl', 1): e('buffer_load_dword v248, v2, s[72:75], s79 offen')
    stamp(5)
    T = 28
    e('v_lshlrev_b32 v10, 16, v10\n v_lshlrev_b32 v20, 16, v6\n v_and_b32 v21, s71, v6')
    xs = [(10, T, T+1), (20, T+2, T+3), (21, T+4, T+5)]
    for fmt in ('v_mul_f32 v{t}, s68, v{x}', 'v_fma_f32 v{lo}, v{x}, s68, -v{t}', 'v_fma_f32 v{lo}, v{x}, s69, v{lo}',
                'v_exp_f32 v{t}, v{t}', 'v_mul_f32 v{lo}, s70, v{lo}', 'v_fma_f32 v{x}, v{t}, v{lo}, v{t}'):
        for x, t, lo in xs: e(fmt.format(x=x, t=t, lo=lo))
    e('''v_cvt_pk_bf16_f32 v10, v10, v10
         v_cvt_pk_bf16_f32 v20, v20, v21
         v_lshlrev_b32 v10, 16, v10
         v_and_b32 v21, s71, v20
         v_lshlrev_b32 v20, 16, v20
         v_mul_f32 v20, v20, v10
         v_mul_f32 v21, v21, v10
         v_mul_f32 v20, 0xbfb8aa3b, v20
         v_mul_f32 v21, 0xbfb8aa3b, v21
         s_waitcnt vmcnt(1)
         v_lshlrev_b32 v22, 16, v7
         v_and_b32 v23, s71, v7
         v_mul_f32 v22, v22, v10
         v_mul_f32 v23, v23, v10
         v_mul_f32 v22, 0.15915494, v22
         v_mul_f32 v23, 0.15915494, v23''')
    PA, PB, QA, QB = 44, 48, 52, 56
    MH = 60; X = 84; XK = 100; XL = 116; XM = 132; YY = 100; TT = 28
    BF = 152; AF = 184; D = 216
    ce = [(PA, 20, 22, 1, T), (PA+2, 21, 23, 1, T+4), (QA, 20, 22, 128.0, T+8), (QA+2, 21, 23, 128.0, T+12)]
    ce2 = []
    for dst, a, p, sc, t in ce:
        if sc != 1:
            e(f'v_mul_f32 v{t}, {hex(f2u(sc))}, v{a}\n v_mul_f32 v{t+1}, {hex(f2u(sc))}, v{p}')
            a, p = t, t+1
        ce2.append((dst, a, p, t))
    for fmt in ('v_rndne_f32 v{t2}, v{p}', 'v_exp_f32 v{t3}, v{a}', 'v_sub_f32 v{t2}, v{p}, v{t2}', 'v_cos_f32 v{d0}, v{t2}',
                'v_sin_f32 v{d1}, v{t2}', 'v_mul_f32 v{d0}, v{d0}, v{t3}', 'v_mul_f32 v{d1}, v{d1}, v{t3}'):
        for dst, a, p, t in ce2: e(fmt.format(t2=t+2, t3=t+3, p=p, a=a, d0=dst, d1=dst+1))
    norm = f'''v_and_b32 v28, 0x7fff7fff, v8
          v_and_b32 v29, 0x7fff7fff, v9
          v_pk_max_u16 v28, v28, v29
          v_lshlrev_b32 v29, 16, v28
          v_max_u32 v28, v28, v29
          NOP
          v_max_u32_dpp v28, v28, v28 row_ror:8 row_mask:0xf bank_mask:0xf
          NOP
          v_max_u32_dpp v28, v28, v28 row_ror:4 row_mask:0xf bank_mask:0xf
          NOP
          v_max_u32_dpp v28, v28, v28 row_ror:2 row_mask:0xf bank_mask:0xf
          NOP
          v_max_u32_dpp v28, v28, v28 row_ror:1 row_mask:0xf bank_mask:0xf
          NOP
          v_readlane_b32 s90, v28, 0
          v_readlane_b32 s91, v28, 16
          v_readlane_b32 s92, v28, 32
          v_readlane_b32 s93, v28, 48
          NOP
          s_max_u32 s90, s90, s91
          s_max_u32 s92, s92, s93
          s_max_u32 s90, s90, s92
          s_lshr_b32 s90, s90, 23
          s_max_u32 s90, s90, 1
          s_min_u32 s90, s90, 252
          s_sub_u32 s91, 254, s90
          s_lshl_b32 s91, s91, 23
          s_add_u32 s90, s90, 1
          s_lshl_b32 s90, s90, 23
          v_lshlrev_b32 v28, 16, v8
          v_lshlrev_b32 v29, 16, v9
          v_and_b32 v30, s71, v8
          v_and_b32 v31, s71, v9
          v_mul_f32 v28, s91, v28
          v_mul_f32 v29, s91, v29
          v_mul_f32 v30, s91, v30
          v_mul_f32 v31, s91, v31
          v_mul_f32 v10, s90, v10
          v_cvt_pk_f16_f32 v{X}, v28, -v29
          v_cvt_pk_f16_f32 v{X+1}, v30, -v31'''.split('NOP')
    def sq(dst, x):
        for k in range(2):
            e(f'v_pk_mul_f32 {vr(dst+2*k,2)}, {vr(x+2*k,2)}, {vr(x+2*k,2)} op_sel:[0,0] op_sel_hi:[1,0]')
        for k in range(2):
            e(f'v_pk_fma_f32 {vr(dst+2*k,2)}, {vr(x+2*k,2)}, {vr(x+2*k,2)}, {vr(dst+2*k,2)} op_sel:[1,1,0] op_sel_hi:[0,1,1] neg_lo:[0,1,0]')
    def cv(lg, x):
        e(f'v_cvt_pk_f16_f32 v{MH+2*lg}, v{x}, v{x+1}\n v_cvt_pk_f16_f32 v{MH+2*lg+1}, v{x+2}, v{x+3}')
    def M(k): return MH + 2*(k.bit_length()-1)
    def row(r, x):
        e(f'ds_write_addtid_b32 v{x} offset:{544*r}\n ds_write_addtid_b32 v{x+1} offset:{544*r+256}')
    p, pn, q, qn = PA, PB, QA, QB
    for i in range(7):
        e(norm[i])
        cv(i, p)
        if i >= 3: row(1 << (i-3), MH+2*i)
        if i < 5: cv(7+i, q)
        if i < 6: sq(pn, p); p, pn = pn, p
        if i < 4: sq(qn, q); q, qn = qn, q
    stamp(6)
    def mulrows(items, conj, wait_first=False):
        ng = 'neg_hi:[0,1,0]' if conj else 'neg_lo:[0,1,0]'
        for i in range(0, len(items), 2):
            grp = items[i:i+2]
            for r, dst, x, m in grp:
                for k in range(2): e(f'v_pk_mul_f16 v{dst+k}, v{x+k}, v{m+k} op_sel:[0,0] op_sel_hi:[1,0]')
            for r, dst, x, m in grp:
                for k in range(2): e(f'v_pk_fma_f16 v{dst+k}, v{x+k}, v{m+k}, v{dst+k} op_sel:[1,1,0] op_sel_hi:[0,1,1] {ng}')
            if wait_first and i == 0: e('s_waitcnt lgkmcnt(0)')
            for r, dst, x, m in grp: row(r, dst)
    def rdfr(dst):
        for s_ in range(8): e(f'ds_read_b128 {vr(dst+4*s_,4)}, v17 offset:{64*s_}')
    def mm(d):
        for s_ in range(8):
            c = '0' if s_ == 0 else vr(d,4)
            e(f'v_mfma_f32_16x16x32_f16 {vr(d,4)}, {vr(AF+4*s_,4)}, {vr(BF+4*s_,4)}, {c}')
    Y = {1: M(8), 2: M(16), 4: M(32), 3: YY, 5: YY+2, 6: YY+4, 7: YY+6}
    mulrows([(3, Y[3], Y[1], M(16)), (5, Y[5], Y[1], M(32)), (6, Y[6], Y[2], M(32)), (7, Y[7], Y[3], M(32))], False)
    mulrows([(8+j, TT+2*j, Y[j], M(64)) for j in range(1, 8)], False)
    rdfr(BF)
    e(uld[0])
    mulrows([(1, X+2, X, M(1)), (2, X+4, X, M(2)), (3, X+6, X+2, M(2)), (4, X+8, X, M(4)),
             (5, X+10, X+2, M(4)), (6, X+12, X+4, M(4)), (7, X+14, X+6, M(4)), (8, XK, X, M(128))], True, True)
    row(0, X)
    e(uld[1])
    mulrows([(8+a, XK+2*a, X+2*a, M(128)) for a in range(1, 8)], True)
    rdfr(AF)
    e(uld[2])
    src = [X, X+4, X+8, X+12, XK, XK+4, XK+8, XK+12]
    it = [(n, XL+2*n, src[n], M(256)) for n in range(8)] + [(8, TT, X, M(2048))]
    mulrows(it[:2], True, True)
    mm(D)
    mulrows(it[2:], True)
    rdfr(AF)
    e(uld[3])
    e('s_cmp_eq_u32 s3, 0\n s_cbranch_scc0 L_kg_nj')
    join_load()
    e('L_kg_nj:')
    s2 = [X, X+8, XK, XK+8, XL, XL+4, XL+8, XL+12]
    it = [(4*(n >> 1) + (n & 1), XM+2*n, s2[n], M(512)) for n in range(8)]
    mulrows(it[:2], True, True)
    mm(D+4)
    mulrows(it[2:], True)
    s3 = [X, XK, XL, XL+8, XM, XM+4, XM+8, XM+12]
    mulrows([(4*(i >> 1) + 2 + (i & 1), TT+2*i, s3[i], M(1024)) for i in range(8)], True)
    rdfr(AF)
    B1 = D+4; A = D+8; C = 60
    e(f'''v_mul_f32 v{D}, v{D}, v10
          v_lshlrev_b32 v11, 16, v11
          s_mov_b64 exec, 1
          v_add_f32 v{D}, v{D}, v11
          s_mov_b64 exec, -1''')
    for i in range(1, 8): e(f'v_mul_f32 v{D+i}, v{D+i}, v10')
    e('s_waitcnt lgkmcnt(0)')
    mm(D+8)
    e(f'''v_cvt_pk_bf16_f32 v{C}, v{B1+3}, v{B1+3}
          v_cvt_pk_bf16_f32 v{C+1}, v{B1+2}, v{B1+2}
          v_cvt_pk_bf16_f32 v{C+2}, v{B1+2}, v{B1+1}
          v_cvt_pk_bf16_f32 v{C+3}, v{B1}, v{B1}
          v_cvt_pk_bf16_f32 v{C+4}, v{D+3}, v{D+2}
          v_cvt_pk_bf16_f32 v{C+5}, v{D+1}, v{D}
          s_nop 1
          v_mul_f32 v{A+2}, v{A+2}, v10
          v_mul_f32 v{A+3}, v{A+3}, v10
          v_mul_f32 v{A}, v{A}, v10
          v_mul_f32 v{A+1}, v{A+1}, v10
          v_mov_b32_dpp v{C+6}, v{A+2} quad_perm:[0,0,2,2] row_mask:0xf bank_mask:0xf
          v_mov_b32_dpp v{C+7}, v{A+3} quad_perm:[0,0,2,2] row_mask:0xf bank_mask:0xf
          v_cvt_pk_bf16_f32 v{C+8}, v{A+2}, v{A+2}
          v_cvt_pk_bf16_f32 v{C+9}, v{A+2}, v{C+6}
          v_cvt_pk_bf16_f32 v{C+10}, v{A+3}, v{A+3}
          v_cvt_pk_bf16_f32 v{C+11}, v{A+3}, v{C+7}
          ds_write2_b32 v24, v{C+8}, v{C+8} offset0:64 offset1:65
          ds_write2_b32 v24, v{C+8}, v{C+9} offset0:66 offset1:67
          ds_write2_b32 v24, v{C+10}, v{C+10} offset0:0 offset1:1
          ds_write2_b32 v24, v{C+10}, v{C+11} offset0:2 offset1:3
          v_cvt_pk_bf16_f32 v{C+12}, v{A+1}, v{A+1}
          v_cvt_pk_bf16_f32 v{C+13}, v{A+1}, v{A}
          v_cvt_pk_bf16_f32 v{C+14}, v{A}, v{A}
          ds_write2_b32 v25, v{C+12}, v{C+13} offset0:0 offset1:1
          ds_write2_b32 v25, v{C+14}, v{C+14} offset0:2 offset1:3
          s_mov_b32 exec_lo, 0
          s_mov_b32 exec_hi, 1
          ds_write2_b32 v12, v{C+3}, v{C+3} offset0:0 offset1:1
          s_mov_b32 exec_lo, -1
          s_mov_b32 exec_hi, 0
          ds_write_b16 v25, v{C} offset:510
          ds_write2_b32 v25, v{C+1}, v{C+2} offset0:128 offset1:129
          ds_write_b32 v25, v{C+3} offset:520
          ds_write_b16 v25, v{C+3} offset:524
          s_mov_b64 exec, -1
          ds_write_b64 v26, {vr(C+4,2)} offset:4088''')

def pb_setup(first):
    e(f'''v_lshlrev_b32 v50, 4, v0
          v_add_u32 v51, {54*1024 - 2048}, v50
          v_lshrrev_b32 v2, 4, v0
          v_lshlrev_b32 v52, 12, v2
          v_and_b32 v2, 15, v0
          v_lshl_add_u32 v52, v2, 4, v52
          v_lshlrev_b32 v53, 5, v2
          v_min_u32 v248, 35, v0
          v_lshl_add_u32 v248, s74, 2, v248
          v_subrev_u32 v3, 36, v248
          v_min_u32 v248, v248, v3
          s_lshl_b32 s91, s7, 8
          v_lshl_add_u32 v248, v248, 2, s91
          s_lshl_b32 s91, s6, 8
          s_add_u32 s91, s91, {F_Y}
          v_and_b32 v249, 7, v0
          v_lshl_add_u32 v249, v249, 2, s91
          s_mul_i32 s91, s4, 10
          s_and_b32 s92, s7, 1
          s_lshl_b32 s92, s92, 2
          s_add_u32 s91, s91, s92
          v_and_b32 v2, 3, v0
          v_add_u32 v2, s91, v2
          v_lshrrev_b32 v3, 3, v2
          v_lshlrev_b32 v3, 8, v3
          v_and_b32 v2, 7, v2
          v_lshl_add_u32 v3, v2, 2, v3
          v_add_u32 v3, {F_Y}, v3
          v_cmp_gt_u32 vcc, 32, v0
          s_mov_b32 s69, {first}
          s_mov_b32 s72, {first}
          s_mov_b32 s75, 0
          v_cndmask_b32 v249, v3, v249, vcc
          v_readlane_b32 s60, v{T_HG}, {first}
          v_readlane_b32 s61, v{T_HL}, {first}
          s_nop 3''')
NH = [0]
def h_issue(check):
    n = NH[0]; NH[0] += 1
    if check:
        e(f'''s_cmp_lt_u32 s69, s75
              s_cbranch_scc1 L_hk{n}
              s_getpc_b64 s[78:79]
              s_branch L_hpoll
              L_hk{n}:''')
    e(f'''s_mov_b32 m0, s61
          s_add_u32 s69, s69, 1
          buffer_load_dwordx4 v50, s[52:55], s60 offen sc1 lds
          buffer_load_dwordx4 v50, s[52:55], s60 offen offset:1024 sc1 lds
          buffer_load_dwordx4 v51, s[52:55], s60 offen offset:2048 sc1 lds
          buffer_load_dwordx4 v51, s[52:55], s60 offen offset:3072 sc1 lds
          v_readlane_b32 s60, v{T_HG}, s69
          v_readlane_b32 s61, v{T_HL}, s69''')

def poll_eval():
    e(f'''v_cmp_eq_u32 vcc, 1, v247
          s_nop 3
          s_ff0_i32_b64 s15, vcc
          s_lshr_b32 s15, s15, 2
          s_min_u32 s15, s15, 20
          s_mul_i32 s15, s15, 3
          s_add_u32 s75, s15, s72''')

def phase_b():
    e(f'''L_hpoll:
          buffer_load_dword v247, v248, s[{FLG}:{FLG+3}], 0 offen sc1
          s_waitcnt vmcnt(0)
          v_cmp_eq_u32 vcc, 1, v247
          s_nop 3
          s_ff0_i32_b64 s75, vcc
          s_lshr_b32 s75, s75, 2
          s_min_u32 s75, s75, 20
          s_mul_i32 s75, s75, 3
          s_add_u32 s75, s75, s72
          s_cmp_lt_u32 s69, s75
          s_cbranch_scc1 L_hpoll_ok
          s_sleep 1
          s_add_u32 s94, s94, 1
          s_cmp_lt_u32 s94, 0x100000
          s_cbranch_scc1 L_hpoll
          L_hpoll_ok:''')
    if STAMP: e('s_cmp_gt_u32 s69, 3\n s_cbranch_scc1 L_hps')
    stamp(12)
    e('''L_hps:
         s_add_u32 s78, s78, 4
         s_addc_u32 s79, s79, 0
         s_setpc_b64 s[78:79]
         L_g2l_chk:
         s_getpc_b64 s[78:79]
         s_branch L_hpoll
         s_branch L_g2l_h''')
    e(f'L_g2l_pre:\n buffer_load_dword v247, v248, s[{FLG}:{FLG+3}], 0 offen sc1')
    for i in (4, 5):
        w_issue(); h_issue(False)
        stamp_e(i+1, 33)
        e(f's_waitcnt vmcnt({13 if i == 4 else 12})\n s_barrier')
        stamp_b()
    poll_eval()
    e('L_g2l_loop:')
    w_issue()
    e('s_cmp_lt_u32 s69, s75\n s_cbranch_scc0 L_g2l_chk\n L_g2l_h:')
    h_issue(False)
    stamp_e('s69', 33)
    e('s_cmp_lt_u32 s69, 21\n s_waitcnt vmcnt(12)\n s_barrier')
    stamp_b()
    e('s_cbranch_scc1 L_g2l_loop')
    def bar(n, slot):
        stamp_e(slot, 33); e(f's_waitcnt vmcnt({n})\n s_barrier\n s_nop 0'); stamp_b()
    e(f'buffer_load_dword v250, v249, s[{FLG}:{FLG+3}], 0 offen sc1')
    h_issue(True); bar(11, 22)
    h_issue(False)
    aset = f'''s_lshl_b32 s15, s6, 2
          s_add_u32 s15, s15, s9
          s_lshl_b32 s15, s15, 16
          s_lshl_b32 s10, s7, 7
          s_add_u32 s10, s10, s70
          s_lshl_b32 s11, s10, 1
          s_add_u32 s11, s11, s15
          s_add_u32 s11, s11, {WS_Y}
          s_lshl_b32 s10, s10, 2
          s_add_u32 s10, s10, {WS_G}
          s_mov_b32 s64, 0xffff0000
          s_lshl_b32 s15, s9, 12
          s_add_u32 s15, s15, {AB}
          v_add_u32 v54, s15, v50
          v_lshrrev_b32 v55, 1, v53'''
    e(aset)
    bar(8, 23)
    h_issue(False)
    e(f'''L_g2l_yc:
          v_cmp_eq_u32 vcc, 1, v250
          s_nop 3
          s_cmp_eq_u64 vcc, -1
          s_cbranch_scc0 L_g2l_yw
          L_g2l_yok:
          buffer_load_dwordx4 v[36:39], v53, s[52:55], s10 offen sc1
          buffer_load_dwordx4 v[40:43], v53, s[52:55], s10 offen offset:16 sc1''')
    for n in range(4):
        e(f'buffer_load_dwordx4 {vr(20+4*n,4)}, v52, s[52:55], s11 offen sc1')
        if n < 3: e(f's_add_u32 s11, s11, {4*4096}')
    e('s_cmp_eq_u32 s76, 0\n s_cbranch_scc1 L_hl_loop')
    bar(14, 24)
    h_issue(True); bar(14, 25)
    h_issue(False); bar(14, 26)
    h_issue(False)
    def ga(n):
        for q in range(4):
            a_ = 20 + 4*n + q
            e(f'''v_lshlrev_b32 v44, 16, v{a_}
                  v_and_b32 v45, s64, v{a_}
                  v_mul_f32 v44, v44, v{36+2*q}
                  v_mul_f32 v45, v45, v{37+2*q}
                  v_cvt_pk_bf16_f32 v{a_}, v44, v45''')
        e(f'ds_write_b128 v54, {vr(20+4*n,4)} offset:{1024*n}')
    e(f's_setprio {opt("tp", 2)}')
    bar(8, 27)
    ga(0)
    bar(4, 28)
    ga(1)
    bar(0, 29)
    e('L_g2l_g2:')
    ga(2); ga(3)
    for q in range(4):
        e(f'''v_sub_f32 v44, 1.0, v{36+2*q}
              v_sub_f32 v45, 1.0, v{37+2*q}
              v_cvt_pk_bf16_f32 v{46+q}, v44, v45''')
    e(f'ds_write_b128 v55, v[46:49] offset:{OM}')
    stamp_e(30, 33)
    e('s_waitcnt lgkmcnt(0)\n s_barrier')
    finish()
    e(f'''L_g2l_yw:
          s_add_u32 s94, s94, 1
          s_cmp_lt_u32 s94, 0x100000
          s_cbranch_scc0 L_g2l_yok
          s_sleep {opt('ys', 12)}
          buffer_load_dword v250, v249, s[{FLG}:{FLG+3}], 0 offen sc1
          s_waitcnt vmcnt(0)
          s_branch L_g2l_yc''')
    e('''L_hl_loop:
         s_sub_u32 s15, s69, 4
         s_cmp_lt_u32 s15, 17
         s_cbranch_scc0 L_hl_nw''')
    w_issue()
    e(f'''L_hl_nw:
          s_cmp_lt_u32 s69, s75
          s_cbranch_scc1 L_hl_h
          s_getpc_b64 s[78:79]
          s_branch L_hpoll
          L_hl_h:
          s_mov_b32 m0, s61
          s_add_u32 s69, s69, 1
          buffer_load_dwordx4 v50, s[52:55], s60 offen sc1 lds
          buffer_load_dwordx4 v50, s[52:55], s60 offen offset:1024 sc1 lds
          v_readlane_b32 s60, v{T_HG}, s69
          v_readlane_b32 s61, v{T_HL}, s69
          s_cmp_lt_u32 s69, 3
          s_cbranch_scc1 L_hl_loop
          s_sub_u32 s15, s69, 6
          s_cmp_lt_u32 s15, 16
          s_cbranch_scc1 L_hl_w8
          s_waitcnt vmcnt(4)
          L_hl_w8:
          s_waitcnt vmcnt(8)
          s_barrier
          s_cmp_eq_u32 s69, 22
          s_cbranch_scc1 L_hl_y
          s_cmp_eq_u32 s69, 24
          s_cbranch_scc1 L_g2l_yc
          s_cmp_lt_u32 s69, 27
          s_cbranch_scc1 L_hl_loop
          s_waitcnt vmcnt(2)
          s_barrier
          s_waitcnt vmcnt(0)''')
    ga(0)
    e('s_barrier')
    ga(1)
    e(f's_branch L_g2l_g2\n L_hl_y:\n buffer_load_dword v250, v249, s[{FLG}:{FLG+3}], 0 offen sc1')
    e(aset)
    e('s_branch L_hl_loop')

PACC = 192
R_H, R_W0, R_W1, R_A, R_O, R_OM = 224, 225, 226, 227, 228, 229
def pbc_setup():
    srd(60, P_OUT, 2048*1280)
    e(f'''v_and_b32 v230, 15, v0
          v_lshrrev_b32 v231, 4, v0
          s_lshl_b32 s58, s8, s76
          s_lshl_b32 s56, s58, 12
          v_lshl_add_u32 v{R_H}, v0, 4, s56
          v_lshrrev_b32 v232, 2, v0
          v_lshlrev_b32 v233, 7, v232
          v_and_b32 v232, 3, v0
          v_lshl_add_u32 v233, v232, 3, v233
          v_add_u32 v233, {WB}, v233
          v_bfe_u32 v232, v0, 3, 2
          s_lshl_b32 s56, s9, 1
          v_xor_b32 v232, s56, v232
          v_lshl_add_u32 v{R_W0}, v232, 5, v233
          v_xor_b32 v232, 1, v232
          v_lshl_add_u32 v{R_W1}, v232, 5, v233
          v_lshrrev_b32 v232, 2, v0
          v_lshlrev_b32 v{R_A}, 8, v232
          v_and_b32 v232, 3, v0
          v_lshl_add_u32 v{R_A}, v232, 3, v{R_A}
          s_lshl_b32 s56, s9, 13
          s_lshl_b32 s57, s58, 6
          s_add_u32 s56, s56, s57
          s_add_u32 s56, s56, {AB}
          v_add_u32 v{R_A}, s56, v{R_A}
          v_lshl_add_u32 v{R_OM}, v230, 1, s57
          v_mul_u32_u24 v{R_O}, 1280, v230
          v_and_b32 v232, 1, v231
          v_lshl_add_u32 v{R_O}, v232, 5, v{R_O}
          v_lshrrev_b32 v232, 1, v231
          v_lshl_add_u32 v{R_O}, v232, 4, v{R_O}
          s_lshl_b32 s56, s7, 2
          s_add_u32 s56, s56, s58
          s_mul_i32 s65, s56, {32*1280}
          s_lshl_b32 s56, s6, 7
          s_add_u32 s65, s65, s56
          s_lshl_b32 s56, s9, 6
          s_add_u32 s65, s65, s56
          s_mul_i32 s56, s70, 1280
          s_add_u32 s65, s65, s56
          s_mov_b32 s64, 0xffff0000''')
    for i in range(32): e(f'v_mov_b32 v{PACC+i}, 0')
    for i in range(4): e(f'v_mov_b32 v{234+i}, 0')

def phase_b_compute(NT=4):
    ACC = PACC; FR = 16; GA = 112; G = 234; AT = 144; O = 160; T = 176; GL = 230
    e(f's_mov_b32 s12, {H0}\n s_mov_b32 s13, {6*8192}\n s_mov_b32 s15, 0')
    def reads(st):
        r = []
        for ks in range(2):
            b = FR + 48*st + 24*ks
            for j in range(2):
                if NT == 2: r.append(f'ds_read_b128 {vr(b+8+4*j,4)}, v6 offset:{2048*j+1024*ks}')
                else: r.append(f'ds_read_b128 {vr(b+8+8*j,4)}, v6 offset:{4096*j+1024*ks}')
                for half in range(2):
                    r.append(f'ds_read_b64_tr_b16 {vr(b+4*j+2*half,2)}, v{7+j} offset:{4096*ks+2048*half}')
                if NT == 4: r.append(f'ds_read_b128 {vr(b+12+8*j,4)}, v6 offset:{4096*j+2048+1024*ks}')
        return r
    def mfmas(st):
        return [f'v_mfma_f32_16x16x32_bf16 {vr(ACC+8*ti+4*j,4)}, {vr(FR+48*st+24*ks+4*j,4)}, {vr(FR+48*st+24*ks+8+4*ti,4)}, {vr(ACC+8*ti+4*j,4)}'
                for ks in range(2) for ti in range(NT) for j in range(2)]
    upd = ['s_add_u32 s12, s12, 16384', 's_cmp_eq_u32 s12, 163840', 's_cselect_b32 s12, 0, s12', 's_cmp_eq_u32 s12, 16384',
           f's_cselect_b32 s12, {H0}, s12', 's_add_u32 s13, s13, 8192', f's_cmp_ge_u32 s13, {NWS*8192}', 's_cselect_b32 s13, 0, s13',
           f'v_add_u32 v6, s12, v{R_H}', f'v_add_u32 v7, s13, v{R_W0}', f'v_add_u32 v8, s13, v{R_W1}']
    def step(st, mm):
        rd = reads(st)
        e('s_barrier')
        per = [int(c) for c in (OPT.get('sch', '222211111111') if NT == 4 else '3333')]
        up = list(upd)
        for i, m in enumerate(mm):
            e(m)
            if i < len(per):
                for _ in range(per[i]): e(rd.pop(0))
            else:
                for _ in range(3):
                    if up: e(up.pop(0))
        for r in rd + up: e(r)
        if mm: e('s_waitcnt lgkmcnt(0)')
    for x in upd[-3:]: e(x)
    e('s_waitcnt lgkmcnt(0)')
    step(0, [])
    if NT == 4:
        e('s_waitcnt vmcnt(0)')
        stamp(2)
        xcc_check()
        e('s_cmp_eq_u32 s95, 2\n s_cbranch_scc0 L_pbc_sf')
        flag('s89', 1, '')
        e('L_pbc_go:')
    e(f's_waitcnt lgkmcnt(0)\n s_nop 1\n L_g2c_loop{NT}:')
    step(1, mfmas(0))
    step(0, mfmas(1))
    e(f's_add_u32 s15, s15, 1\n s_cmp_lt_u32 s15, 13\n s_cbranch_scc1 L_g2c_loop{NT}')
    mm = mfmas(0)
    order = [mm[2*NT*ks + 2*ti + j] for ti in range(NT) for ks in range(2) for j in range(2)]
    for m in order: e(m)
    stamp(34)
    e('s_mov_b32 s56, 0x3f80\n s_mov_b32 s57, 0x3f800000\n s_barrier')
    for ti in range(NT):
        e(f'ds_read_u16_d16_hi v{G+ti}, v{R_OM} offset:{OM+32*ti}')
        for j in range(2):
            e(f'ds_read_b64_tr_b16 {vr(AT+4*ti+2*j,2)}, v{R_A} offset:{4096*j+32*ti}')
    for p in range(4*NT):
        e(f'v_cvt_pk_bf16_f32 v{T+p}, v{ACC+2*p}, v{ACC+2*p+1}')
    for ti in range(NT):
        e(f's_waitcnt lgkmcnt({3*(NT-1-ti)})\n v_lshrrev_b32 v{GL+ti}, 16, v{G+ti}')
        ins = []
        for p in range(4):
            t = ACC + 8*ti + 2*p; y = GA + 8*ti + 2*p; bp = T + 4*ti + p
            ins.append([f'v_dot2_f32_bf16 v{t+1}, v{bp}, v{G+ti}, 0', f'v_dot2_f32_bf16 v{t}, v{bp}, v{GL+ti}, 0',
                        f'v_lshlrev_b32 v{y}, 16, v{AT+4*ti+p}', f'v_cvt_pk_bf16_f32 v{bp}, v{t}, v{t+1}', f'v_and_b32 v{y+1}, s64, v{AT+4*ti+p}',
                        f'v_dot2_f32_bf16 v{t}, v{bp}, s56, v{y}', f'v_dot2_f32_bf16 v{t+1}, v{bp}, s57, v{y+1}',
                        f'v_cvt_pk_bf16_f32 v{O+4*ti+p}, v{t}, v{t+1}'])
        for k in range(8):
            for p in range(4): e(ins[p][k])
        o = O + 4*ti
        e(f'''s_nop 1
              v_permlane16_swap_b32 v{o}, v{o+2}
              v_permlane16_swap_b32 v{o+1}, v{o+3}
              buffer_store_dwordx4 {vr(o,4)}, v{R_O}, s[60:63], s65 offen {OPT.get('ost', 'sc1').replace('+', ' ')}''')
        if ti < NT-1: e(f's_add_u32 s65, s65, {16*1280}')
    finish()
    if NT == 4:
        e('L_pbc_sf:')
        flag('s89', 1)
        e('s_branch L_pbc_go')

prologue(); gemm1(); phase_b(); helper(); ssm()
if opt('prio', 0):
    L.insert(L.index('L_g1c:') + 1, '    s_setprio 2')
e('L_end:\n L_code_end:\n s_endpgm')

HEAD = open(f'cdna_kernels/{NAME}.s.ref').read().split('; Override launch')[0]
HEAD += f'''; @launch grid=(256,1,1) block=(512,1,1) lds=163840
.amdgcn_target "amdgcn-amd-amdhsa--gfx950"
.text
.globl {NAME}_kernel
.type {NAME}_kernel,@function
.p2align 8
'''
TAIL = f'''.section .rodata,"a"
.p2align 6
.amdhsa_kernel {NAME}_kernel
  .amdhsa_next_free_vgpr 256
  .amdhsa_next_free_sgpr 102
  .amdhsa_accum_offset 256
  .amdhsa_group_segment_fixed_size 0
  .amdhsa_kernarg_size 112
  .amdhsa_user_sgpr_count 2
  .amdhsa_user_sgpr_kernarg_segment_ptr 1
  .amdhsa_system_sgpr_workgroup_id_x 1
.end_amdhsa_kernel
'''
open(OUT, 'w').write(HEAD + '\n'.join(L) + '\n' + TAIL)
print('wrote', OUT, len(L), 'lines')
```

```python
import sys, struct

NAME = 'gated_mix__ssm_conv_s4d__dense_activation_relu__prompt'
OUT = sys.argv[1] if len(sys.argv) > 1 else f'cdna_kernels/{NAME}.s'
OPT = dict(a.split('=') for a in sys.argv[2:])
STAMP = int(OPT.get('stamp', 0))
def opt(k, d): return int(OPT.get(k, d))

L = []
def e(s=''):
    for ln in s.split('\n'):
        ln = ln.strip()
        if not ln: continue
        L.append(ln if ln.endswith(':') else '    ' + ln)
def f2u(x): return struct.unpack('<I', struct.pack('<f', x))[0]
def vr(a, n): return f'v[{a}:{a+n-1}]'

WS_H = 0;        H_BYTES = 128*54*1024
WS_Y = 0x700000; Y_BYTES = 640*4096
WS_G = 0x980000; G_BYTES = 8192
WS_F = 0x990000; F_BYTES = 34*256
WS_ST = 0xC00000
F_Y = 16*256; F_X = 26*256
DBG = 84; FLG = 96

def srd(d, lo, nbytes, off=0):
    if off: e(f's_add_u32 s{d}, s{lo}, {hex(off)}\n s_addc_u32 s{d+1}, s{lo+1}, 0')
    else:   e(f's_mov_b32 s{d}, s{lo}\n s_mov_b32 s{d+1}, s{lo+1}')
    e(f's_mov_b32 s{d+2}, {hex(nbytes)}\n s_mov_b32 s{d+3}, 0x00020000')
P_U, P_LAR, P_AI, P_CR, P_CI, P_LDT, P_DSK, P_W1, P_W2, P_GW, P_OUT, P_DBG, P_WS = 16, 18, 20, 22, 24, 26, 28, 32, 34, 36, 38, 40, 42
def sync_srds():
    srd(DBG, P_DBG, 256); srd(FLG, P_WS, F_BYTES, WS_F)

def stamp(slot):
    if STAMP: e(f's_memrealtime s[80:81]\n s_waitcnt lgkmcnt(0)\n v_writelane_b32 v255, s80, {slot}')
def stamp_b():
    if STAMP: e('s_memtime s[82:83]' if STAMP == 2 else 's_memrealtime s[82:83]')
def stamp_e(slot, base):
    if STAMP: e(f's_waitcnt lgkmcnt(0)\n s_add_u32 m0, {slot}, {base}\n v_writelane_b32 v255, s82, m0')
def stamp_cyc(slot):
    if STAMP: e(f's_memtime s[80:81]\n s_waitcnt lgkmcnt(0)\n v_writelane_b32 v255, s80, {slot}')
def finish():
    if STAMP:
        e('s_waitcnt lgkmcnt(0) vmcnt(0)')
        stamp(35); stamp_cyc(15)
        srd(72, P_WS, 0x100000, WS_ST)
        e('''s_lshl_b32 s76, s2, 3
             s_add_u32 s76, s76, s3
             s_lshl_b32 s76, s76, 8
             v_lshlrev_b32 v1, 2, v0
             buffer_store_dword v255, v1, s[72:75], s76 offen''')
    e('s_endpgm')

def flag(off, val, pol='sc1'):
    e(f'''v_mov_b32 v253, {val}
          s_mov_b64 exec, 1
          buffer_store_dword v253, v252, s[{FLG}:{FLG+3}], {off} offen {pol}
          s_mov_b64 exec, -1''')
def join_load():
    e(f'buffer_load_dword v251, v252, s[{DBG}:{DBG+3}], 0 offen sc1')
NJ = [0]
def join(publish):
    n = NJ[0]; NJ[0] += 1
    e(f'''L_join{n}:
          s_waitcnt vmcnt(0)
          v_readfirstlane_b32 s90, v251
          s_lshl_b32 s91, s4, 6
          s_add_u32 s91, s91, s5
          s_lshl_b32 s91, s91, 2
          s_add_u32 s91, s91, {F_X}
          s_cmp_eq_u32 s90, 1
          s_cbranch_scc1 L_joined{n}
          s_sleep 4
          buffer_load_dword v251, v252, s[{DBG}:{DBG+3}], 0 offen sc1
          s_add_u32 s94, s94, 1
          s_cmp_lt_u32 s94, 0x100000
          s_cbranch_scc1 L_join{n}
          L_joined{n}:''')
    if publish: flag('s91', 's88')
def xcc_load():
    e(f'''s_lshl_b32 s90, s4, 8
          s_add_u32 s90, s90, {F_X}
          v_min_u32 v246, 21, v0
          v_lshlrev_b32 v246, 2, v246
          buffer_load_dword v245, v246, s[{FLG}:{FLG+3}], s90 offen sc1''')
def xcc_check():
    e(f'''v_cmp_eq_u32 vcc, s88, v245
          s_nop 3
          s_cmp_eq_u64 vcc, -1
          s_cselect_b32 s95, {2 if opt('fast', 1) else 1}, 1''')

def prologue():
    e(NAME + '_kernel:')
    if STAMP: e('v_mov_b32 v255, 0')
    stamp(0); stamp_cyc(14)
    if STAMP: e('s_mov_b32 s82, 0')
    e('''s_cmp_ge_u32 s2, 256
         s_cbranch_scc1 L_end
         s_load_dwordx16 s[16:31], s[0:1], 0
         s_load_dwordx8 s[32:39], s[0:1], 64
         s_load_dwordx4 s[40:43], s[0:1], 96
         v_lshrrev_b32 v1, 6, v0
         s_getpc_b64 s[6:7]
         L_pc:
         v_min_u32 v2, (L_code_end-L_pc)/128, v0
         v_lshlrev_b32 v2, 7, v2
         s_cmp_lt_u32 s2, %d
         s_cbranch_scc1 L_ncp
         global_load_dword v254, v2, s[6:7]
         L_ncp:
         v_and_b32 v0, 63, v0
         v_readfirstlane_b32 s3, v1
         s_and_b32 s4, s2, 7
         s_lshr_b32 s5, s2, 3
         s_getreg_b32 s88, hwreg(HW_REG_XCC_ID, 0, 4)
         s_add_u32 s88, s88, 1
         s_mov_b32 s94, 0
         s_mov_b32 s70, 0
         s_mov_b32 s71, 0
         s_mov_b32 s76, 1
         s_mov_b32 s95, 0
         v_mov_b32 v252, 0
         v_mov_b32 v251, 0
         s_cmp_ge_u32 s5, 18
         s_cbranch_scc1 L_not_g1''' % (8*opt('cpm', 18)))

SL = 40960; WR = 16384
H0 = 114688; AB = 16384; WB = 32768; NWS = 10; OM = WB + 3*8192
def tile_ids():
    e('''s_and_b32 s7, s5, 1
         s_lshr_b32 s6, s5, 1
         s_lshl_b32 s8, s4, 1
         s_add_u32 s7, s7, s8''')
T_HG, T_HL, T_WG, T_WL = 56, 57, 58, 59
def wpre_setup():
    srd(56, P_W2, 1728*1280)
    srd(52, P_WS, WS_F)
    e(f'''v_lshrrev_b32 v2, 3, v0
          v_mul_u32_u24 v17, 1280, v2
          v_and_b32 v3, 7, v0
          v_and_b32 v2, 6, v2
          v_xor_b32 v3, v3, v2
          v_lshl_add_u32 v17, v3, 4, v17
          v_add_u32 v18, {8*1280-1024}, v17
          s_mul_i32 s68, s6, 3
          v_min_u32 v2, 26, v0
          v_add_u32 v2, s68, v2
          v_subrev_u32 v3, 27, v2
          v_min_u32 v2, v2, v3
          s_lshl_b32 s66, s7, 3
          s_lshl_b32 s67, s9, s76
          s_add_u32 s66, s66, s67
          s_mul_i32 s66, s66, {54*1024}
          s_mul_i32 s67, s70, {54*64}
          s_add_u32 s66, s66, s67
          v_lshl_add_u32 v{T_HG}, v2, 11, s66
          s_mul_i32 s66, s9, {16*1280}
          s_lshl_b32 s67, s6, 7
          s_add_u32 s66, s66, s67
          v_mul_u32_u24 v2, {64*1280}, v2
          v_add_u32 v{T_WG}, s66, v2
          v_and_b32 v2, 3, v0
          v_lshlrev_b32 v2, 14, v2
          v_add_u32 v2, {H0}, v2
          v_subrev_u32 v3, 163840, v2
          v_min_u32 v2, v2, v3
          s_lshl_b32 s66, s9, 11
          s_lshl_b32 s66, s66, s76
          v_add_u32 v{T_HL}, s66, v2
          v_add_u32 v2, 6, v0
          v_mul_u32_u24 v3, 6554, v2
          v_lshrrev_b32 v3, 16, v3
          v_mul_u32_u24 v3, 10, v3
          v_sub_u32 v2, v2, v3
          s_lshl_b32 s66, s9, 11
          s_add_u32 s66, s66, {WB}
          v_lshl_add_u32 v{T_WL}, v2, 13, s66
          s_mov_b32 s73, 0
          v_readlane_b32 s66, v{T_WG}, 0
          v_readlane_b32 s67, v{T_WL}, 0
          s_nop 2''')
def w_issue():
    e(f'''s_mov_b32 m0, s67
          s_add_u32 s73, s73, 1
          buffer_load_dwordx4 v17, s[56:59], s66 offen lds
          buffer_load_dwordx4 v18, s[56:59], s66 offen offset:1024 lds
          v_readlane_b32 s66, v{T_WG}, s73
          v_readlane_b32 s67, v{T_WL}, s73''')
NW = [0]
def w_preload(upto):
    k = NW[0]; NW[0] += 1
    e(f'L_wp{k}:')
    w_issue()
    e(f's_cmp_lt_u32 s73, {upto}\n s_cbranch_scc1 L_wp{k}')

def gemm1():
    tile_ids()
    e('s_cmp_lt_u32 s3, 4\n s_cbranch_scc1 L_g1c')
    e('''s_sub_u32 s9, s3, 4
         v_lshrrev_b32 v2, 3, v0
         v_mul_u32_u24 v2, 1280, v2
         v_and_b32 v3, 7, v0
         v_lshrrev_b32 v4, 4, v0
         v_xor_b32 v3, v3, v4
         v_lshl_add_u32 v10, v3, 4, v2
         v_xor_b32 v3, 4, v3
         v_lshl_add_u32 v11, v3, 4, v2
         v_add_u32 v11, %d, v11
         v_add_u32 v12, %d, v10
         v_add_u32 v13, %d, v11''' % (9216, 2*9216, 2*9216))
    for b in range(3):
        e(f'''v_add_u32 v2, {64*b}, v0
              v_mul_u32_u24 v3, 2731, v2
              v_lshrrev_b32 v3, 16, v3
              v_mul_u32_u24 v4, 24, v3
              v_sub_u32 v4, v2, v4
              v_and_b32 v5, 2, v3
              v_xor_b32 v4, v4, v5
              v_mul_u32_u24 v3, 3456, v3
              v_subrev_u32 v3, {1024*b}, v3
              v_lshl_add_u32 v{14+b}, v4, 4, v3
              v_xor_b32 v4, 4, v4
              v_lshl_add_u32 v{19+b}, v4, 4, v3''')
    e(f's_mul_i32 s14, s6, {opt("ra", 0)}\n s_lshr_b32 s12, s4, {opt("rs", 0)}\n s_mul_i32 s12, s12, {opt("rb", 1)}\n s_add_u32 s14, s14, s12')
    e('''s_cmp_ge_u32 s14, 10
         s_cselect_b32 s12, 10, 0
         s_sub_u32 s14, s14, s12
         s_lshl_b32 s10, s7, 2
         s_add_u32 s10, s10, s9
         s_mul_i32 s10, s10, %d
         s_lshl_b32 s12, s14, 7
         s_add_u32 s10, s10, s12
         s_mul_i32 s11, s9, %d
         s_mul_i32 s12, s6, 384
         s_add_u32 s11, s11, s12
         s_mul_i32 s12, s14, %d
         s_add_u32 s11, s11, s12
         s_lshl_b32 s12, s9, 12
         s_mul_i32 s13, s9, 6144
         s_add_u32 s13, s13, %d
         s_mov_b32 s8, 0
         s_mov_b32 s64, %d
         s_mov_b32 s65, %d
         s_waitcnt lgkmcnt(0)''' % (32*1280, 16*3456, 64*3456, WR, (-3*SL) & 0xffffffff, SL))
    srd(44, P_U, 2048*1280)
    srd(48, P_W1, 640*3456)
    iblk = '''         s_mov_b32 m0, s12
         s_add_u32 s15, s11, %d
         buffer_load_dwordx4 v10, s[44:47], s10 offen lds
         buffer_load_dwordx4 v11, s[44:47], s10 offen offset:1024 lds
         buffer_load_dwordx4 v12, s[44:47], s10 offen offset:2048 lds
         buffer_load_dwordx4 v13, s[44:47], s10 offen offset:3072 lds
         s_mov_b32 m0, s13
         s_add_u32 s10, s10, 128
         buffer_load_dwordx4 v14, s[48:51], s11 offen lds
         buffer_load_dwordx4 v15, s[48:51], s11 offen offset:1024 lds
         buffer_load_dwordx4 v16, s[48:51], s11 offen offset:2048 lds
         s_add_u32 m0, s13, 3072
         s_add_u32 s11, s11, %d
         buffer_load_dwordx4 v19, s[48:51], s15 offen lds
         buffer_load_dwordx4 v20, s[48:51], s15 offen offset:1024 lds
         buffer_load_dwordx4 v21, s[48:51], s15 offen offset:2048 lds
         s_cmp_ge_u32 s12, %d
         s_cselect_b32 s15, s64, s65
         s_add_u32 s12, s12, s15
         s_add_u32 s13, s13, s15
         s_add_u32 s14, s14, 1
         s_cmp_eq_u32 s14, 10
         s_cselect_b32 s15, 1280, 0
         s_sub_u32 s10, s10, s15
         s_cmp_eq_u32 s14, 10
         s_cselect_b32 s15, %d, 0
         s_sub_u32 s11, s11, s15
         s_add_u32 s8, s8, 1
''' % (8*3456, 64*3456, 3*SL, 640*3456)
    if opt('pk', 0):
        e('L_g1l_first:')
        e(iblk)
        e('s_cmp_lt_u32 s8, 2\n s_cbranch_scc1 L_g1l_first\n s_cmp_eq_u32 s8, 3\n s_cbranch_scc1 L_g1l_set\n s_waitcnt vmcnt(10)\n s_barrier')
        stamp_b()
        e('s_branch L_g1l_first\n L_g1l_set:')
    else:
        e(iblk)
    sync_srds()
    wpre_setup()
    e('s_add_u32 s74, s6, 1')
    pb_setup(3)
    if opt('pk', 0): e('s_branch L_g1l_wt')
    e('L_g1l_loop:')
    e(iblk)
    e('L_g1l_wt:')
    stamp_e('s8', 14)
    e('s_waitcnt vmcnt(10)\n s_barrier')
    stamp_b()
    e('s_cmp_lt_u32 s8, 10\n s_cbranch_scc1 L_g1l_loop')
    def rload(k):
        e(f'''s_add_u32 s73, s73, 1
              buffer_load_dwordx4 {vr(64+8*k,4)}, v17, s[56:59], s66 offen
              buffer_load_dwordx4 {vr(68+8*k,4)}, v18, s[56:59], s66 offen offset:1024
              v_readlane_b32 s66, v{T_WG}, s73
              v_readlane_b32 s67, v{T_WL}, s73
              s_nop 2''')
    R2 = opt('r2', 0)
    e(f'buffer_load_dword v247, v248, s[{FLG}:{FLG+3}], 0 offen sc1')
    w_preload(4)
    e('s_nop 1')
    for k in range(R2): rload(k)
    stamp(7)
    e(f's_waitcnt vmcnt({9+2*R2})\n s_barrier')
    stamp(8)
    for k in range(R2, 6): rload(k)
    e(f'''s_lshl_b32 s15, s9, 11
          s_add_u32 s15, s15, {WB}
          v_add_u32 v54, s15, v50
          s_barrier''')
    for k in range(6):
        e(f's_waitcnt vmcnt({10-2*k})\n ds_write_b128 v54, {vr(64+8*k,4)} offset:{8192*k}\n ds_write_b128 v54, {vr(68+8*k,4)} offset:{8192*k+1024}')
    stamp(10)
    e('s_waitcnt lgkmcnt(0)\n s_barrier')
    stamp(32)
    h_issue(True)
    e('s_barrier')
    stamp(9)
    e('s_branch L_g2l_pre')

    e('L_g1c:')
    ACC = 16; FR = 112; XB = 2; XA = 8
    e(f'''s_lshr_b32 s8, s3, 1
          s_and_b32 s9, s3, 1
          v_and_b32 v14, 15, v0
          s_lshl_b32 s10, s8, 6
          v_add_u32 v15, s10, v14
          v_lshlrev_b32 v15, 7, v15
          v_bfe_u32 v14, v0, 1, 3
          v_lshrrev_b32 v1, 4, v0
          v_xor_b32 v14, v14, v1
          v_lshl_add_u32 v{XB}, v14, 4, v15
          v_xor_b32 v14, 4, v14
          v_lshl_add_u32 v{XB+1}, v14, 4, v15
          v_lshlrev_b32 v1, 3, v1
          v_bfe_u32 v14, v0, 2, 2
          v_add_u32 v1, v1, v14
          v_mul_u32_u24 v1, 384, v1
          v_and_b32 v14, 3, v0
          v_lshl_add_u32 v1, v14, 3, v1
          v_add_u32 v1, {WR}, v1
          v_bfe_u32 v14, v0, 3, 2
          s_mul_i32 s10, s9, 6''')
    for c in range(4):
        e(f'''s_add_u32 s11, s10, {c}
              v_xor_b32 v15, s11, v14
              v_lshl_add_u32 v{XB+2+c}, v15, 5, v1''')
    for i in range(96): e(f'v_mov_b32 v{ACC+i}, 0')
    e(f'''v_lshlrev_b32 v1, 4, v0
          s_lshl_b32 s66, s7, 1
          s_add_u32 s66, s66, s8
          s_mul_i32 s66, s66, {4*54}
          s_mul_i32 s11, s6, 6
          s_mul_i32 s12, s9, 3
          s_add_u32 s11, s11, s12
          s_add_u32 s66, s66, s11
          s_lshl_b32 s66, s66, 10
          s_add_u32 s67, s66, {54*1024}
          s_add_u32 s68, s66, {2*54*1024}
          s_add_u32 s69, s66, {3*54*1024}
          s_lshl_b32 s12, s8, 13
          s_add_u32 s12, s12, {H0}
          s_mul_i32 s13, s9, 31744
          s_add_u32 s13, s13, s12
          v_add_u32 v241, s13, v1
          s_mul_i32 s13, s9, 17408
          s_add_u32 s13, s13, s12
          v_add_u32 v240, s13, v1
          s_waitcnt lgkmcnt(0)''')
    srd(52, P_WS, H_BYTES, WS_H)
    sync_srds()
    pbc_setup()
    e('s_cmp_eq_u32 s3, 0\n s_cselect_b32 s15, 1, 10\n s_mov_b32 s12, 0\n s_mov_b32 s13, 0\n s_mov_b32 s14, 0')
    def reads(ks):
        base = FR + 40*ks
        x = [f'ds_read_b128 {vr(base+24+4*ti,4)}, v{XA+ks} offset:{2048*ti}' for ti in range(4)]
        w = [f'ds_read_b64_tr_b16 {vr(base+4*fi+2*half,2)}, v{XA+2+(fi&3)} offset:{(32*ks+4*half)*384+128*(fi>>2)}' for fi in range(6) for half in range(2)]
        return w[:2] + x + w[2:]
    def acc(fi, ti): return ACC + 32*(fi >> 1) + 8*ti + 4*(fi & 1)
    def mfma(ks, fi, ti):
        base = FR + 40*ks
        return f'v_mfma_f32_16x16x32_bf16 {vr(acc(fi,ti),4)}, {vr(base+4*fi,4)}, {vr(base+24+4*ti,4)}, {vr(acc(fi,ti),4)}'
    def step(ks, other):
        other = list(other)
        for fi in range(6):
            for ti in range(4):
                e(mfma(ks, fi, ti))
                if other: e(other.pop(0))
        assert not other
        e('s_waitcnt lgkmcnt(0)')
    for i in range(6): e(f'v_mov_b32 v{XA+i}, v{XB+i}')
    e('s_barrier')
    for r in reads(0): e(r)
    e('s_waitcnt lgkmcnt(0)\n s_branch L_g1c_mid')
    e('L_g1c_hook:\n s_cmp_eq_u32 s15, 1\n s_cbranch_scc0 L_g1c_hk2')
    join_load()
    e('s_mov_b32 s15, 3\n s_branch L_g1c_loop\n L_g1c_hk2:')
    join(True)
    e('s_mov_b32 s15, 10\n s_nop 2')
    if opt('al', 1): L.append('.p2align 3')
    e('L_g1c_loop:')
    NB = opt('nb', 2)
    if NB == 0: e('s_barrier')
    step(1, ['']*(NB-1) + ['s_barrier\n s_nop 0' if opt('al', 1) else 's_barrier']*(NB > 0) + reads(0))
    if opt('al', 1): e('s_nop 0')
    e('L_g1c_mid:')
    upd = [f's_add_u32 s12, s12, {SL}\n s_cmp_ge_u32 s12, {4*SL}', 's_cselect_b32 s12, 0, s12\n s_add_u32 s14, s14, 1']
    upd += [f'v_add_u32 v{XA+2*i}, s12, v{XB+2*i}\n v_add_u32 v{XA+2*i+1}, s12, v{XB+2*i+1}' for i in range(3)]
    upd += ['s_cmp_lg_u32 s14, s15\n s_nop 0']
    step(0, reads(1) + upd)
    e('s_cbranch_scc1 L_g1c_loop\n s_cmp_lt_u32 s14, 10\n s_cbranch_scc1 L_g1c_hook')
    stamp(3)
    xcc_load()
    ZP = opt('zp', 6)
    if ZP < 0: e('s_barrier')
    def epi(n):
        m, ti = n >> 2, n & 3
        d = acc(2*m, ti)
        out = [f'v_cvt_pk_bf16_f32 v{d+q}, v{d+2*q}, v{d+2*q+1}' for q in range(4)]
        out += [f'v_pk_max_i16 v{d+q}, v{d+q}, 0' for q in range(4)]
        out.append(f'buffer_store_dwordx4 {vr(d,4)}, v1, s[52:55], s{66+ti} offen offset:{1024*m} sc1')
        return out
    mm = [mfma(1, 2*(n >> 2) + j, n & 3) for n in range(12) for j in range(2)]
    for x in mm[:10]: e(x)
    for n in range(12):
        ep = epi(n)
        for k, x in enumerate(ep):
            e(x)
            if k in (3, 7) and 10 + 2*n + (k >> 2) < 24: e(mm[10 + 2*n + (k >> 2)])
        if n == ZP: e('s_barrier')
    stamp(4)
    for n in range(12):
        m, ti = n >> 2, n & 3
        e(f'ds_write_b128 v{240+(m&1)}, {vr(acc(2*m,ti),4)} offset:{[0, 1024, 16384][m] + 2048*ti}')
    stamp(1)
    e('''s_lshl_b32 s89, s7, 4
         s_add_u32 s89, s89, s6
         s_lshl_b32 s89, s89, 2
         s_add_u32 s89, s89, s3
         s_lshl_b32 s89, s89, 2''')
    phase_b_compute()

def helper():
    e('''L_not_g1:
         s_cmp_ge_u32 s5, 22
         s_cbranch_scc1 L_ssm
         s_sub_u32 s8, s5, 18
         s_waitcnt lgkmcnt(0)''')
    sync_srds()
    e(f'''s_cmp_eq_u32 s2, {21*8}
          s_cbranch_scc0 L_hp_nc
          s_lshl_b32 s9, s3, 10
          v_lshl_add_u32 v2, v0, 4, s9
          v_mov_b32 v4, 0
          v_mov_b32 v5, 0
          v_mov_b32 v6, 0
          v_mov_b32 v7, 0
          s_movk_i32 s9, 0x2000
          buffer_store_dwordx4 v[4:7], v2, s[{FLG}:{FLG+3}], 0 offen sc1
          buffer_store_dwordx4 v[4:7], v2, s[{FLG}:{FLG+3}], s9 offen sc1
          s_waitcnt vmcnt(0)
          s_barrier
          s_cmp_eq_u32 s3, 0
          s_cbranch_scc0 L_hp_nc
          v_mov_b32 v5, 1
          s_mov_b64 exec, 1
          buffer_store_dword v5, v4, s[{DBG}:{DBG+3}], 0 offen sc1
          s_mov_b64 exec, -1
          L_hp_nc:''')
    if opt('xpf', 0):
        srd(44, P_U, 2048*1280)
        e(f'''s_lshl_b32 s10, s4, 2
              s_add_u32 s10, s10, s8
              s_lshl_b32 s10, s10, 3
              s_add_u32 s10, s10, s3
              s_mul_i32 s10, s10, {80*128}
              v_min_u32 v10, 39, v0
              v_lshlrev_b32 v10, 7, v10
              s_add_u32 s11, s10, {40*128}
              buffer_load_dword v30, v10, s[44:47], s10 offen
              buffer_load_dword v31, v10, s[44:47], s11 offen''')
    srd(56, P_W2, 1728*1280)
    e(f'''v_min_u32 v5, 59, v0
          v_mul_u32_u24 v6, 6554, v5
          v_lshrrev_b32 v6, 16, v6
          v_mul_u32_u24 v7, 10, v6
          v_sub_u32 v7, v5, v7
          v_mul_u32_u24 v5, 192, v7
          v_add_u32 v5, v5, v6
          v_lshlrev_b32 v7, 7, v7
          s_lshl_b32 s10, s8, 3
          s_add_u32 s10, s10, s3
          s_mul_i32 s10, s10, 6
          s_cmp_eq_u32 s3, 0
          s_cbranch_scc0 L_hp_nj''')
    join_load()
    join(True)
    e('L_hp_nj:\n s_barrier\n L_hp_go:')
    def pf(rb, d):
        e(f'''v_add_u32 v8, {rb}, v5
              v_subrev_u32 v9, 1728, v8
              v_min_u32 v8, v8, v9
              v_mul_u32_u24 v8, 1280, v8
              v_add_u32 v8, v8, v7
              buffer_load_dword v{d}, v8, s[56:59], 0 offen''')
    if opt('wt', 1):
        for n in range(4):
            e(f's_add_u32 s11, s4, {n}\n s_and_b32 s11, s11, 3\n s_mul_i32 s11, s11, 192\n s_add_u32 s11, s11, s10')
            pf('s11', 20+n)
        e('''s_lshl_b32 s11, s8, 3
             s_add_u32 s11, s11, s3
             s_lshl_b32 s11, s11, 3
             s_add_u32 s11, s11, s4
             s_lshl_b32 s11, s11, 2
             s_add_u32 s11, s11, 768
             s_min_u32 s11, s11, 1722
             s_mov_b32 exec_hi, 0xff''')
        pf('s11', 25)
        e('s_mov_b32 exec_hi, -1\n s_barrier')
        stamp(1)
    e('s_waitcnt vmcnt(0)')
    stamp(2)
    e('''s_lshr_b32 s70, s8, 1
         s_lshl_b32 s70, s70, 6
         s_nop 0''')
    tile_ids()
    e('s_mov_b32 s6, 9\n s_mov_b32 s76, 0')
    e('s_cmp_lt_u32 s3, 4\n s_cbranch_scc0 L_hp_l\n s_lshr_b32 s8, s3, 1\n s_and_b32 s9, s3, 1')
    pbc_setup()
    phase_b_compute(2)
    e('L_hp_l:\n s_sub_u32 s9, s3, 4')
    wpre_setup()
    w_preload(10)
    e('s_mov_b32 s74, 0')
    pb_setup(0)
    e('s_branch L_hl_loop')

US = 8704; UO = 4164; RA = 8*8704 + 16; RS = 4592
def ssm():
    U = 228
    e('''L_ssm:
         s_sub_u32 s77, s5, 22
         s_mul_i32 s6, s4, 10
         s_add_u32 s6, s6, s77
         s_lshl_b32 s6, s6, 3
         s_add_u32 s7, s6, s3
         v_lshlrev_b32 v4, 2, v0
         s_lshl_b32 s10, s7, 8
         s_lshl_b32 s11, s7, 1
         s_waitcnt lgkmcnt(0)''')
    srd(48, P_LAR, 163840); srd(64, P_LDT, 1280)
    e('buffer_load_dword v6, v4, s[48:51], s10 offen\n buffer_load_ushort v10, v252, s[64:67], s11 offen')
    srd(52, P_AI, 163840); srd(56, P_CR, 163840); srd(60, P_CI, 163840); srd(44, P_DSK, 1280)
    e('''buffer_load_dword v7, v4, s[52:55], s10 offen
         buffer_load_dword v8, v4, s[56:59], s10 offen
         buffer_load_dword v9, v4, s[60:63], s10 offen
         buffer_load_ushort v11, v252, s[44:47], s11 offen
         s_barrier''')
    srd(72, P_U, 2048*1280)
    sync_srds()
    e(f'''s_mul_i32 s9, s4, 160
          s_and_b32 s9, s9, 0xffffff80
          s_and_b32 s10, s3, 1
          s_lshl_b32 s10, s10, 7
          s_add_u32 s9, s9, s10
          s_lshl_b32 s10, s77, 2
          s_lshr_b32 s11, s3, 1
          s_add_u32 s10, s10, s11
          s_mul_i32 s10, s10, {52*1280}
          s_add_u32 s9, s9, s10
          v_min_u32 v2, 51, v0
          v_mul_u32_u24 v2, 1280, v2
          {'s_mov_b32 s79, s9' if opt('wl', 1) else 'buffer_load_dword v248, v2, s[72:75], s9 offen'}
          v_mul_u32_u24 v3, 5120, v0
          s_mul_i32 s78, s3, {256*1280}
          s_lshl_b32 s9, s6, 1
          s_add_u32 s78, s78, s9
          s_sub_u32 s9, s78, 1280
          v_mov_b32 v5, s9''')
    PF = opt('w1pf', 0)
    if PF:
        srd(80 if not STAMP else 76+0, P_W1, 640*3456) if False else None
        e(f'''s_lshl_b32 s9, s77, 3
              s_add_u32 s9, s9, s3
              s_mul_i32 s9, s9, 58
              s_add_u32 s10, s4, {opt('pf0', 2)}
              s_mul_i32 s10, s10, 1728
              s_add_u32 s9, s9, s10
              v_min_u32 v148, 57, v0
              v_add_u32 v148, s9, v148
              v_add_u32 v149, {80*58}, v148
              v_add_u32 v150, {160*58}, v148''')
        for n in range(3):
            e(f'v_subrev_u32 v151, 17280, v{148+n}\n v_min_u32 v{148+n}, v{148+n}, v151\n v_lshlrev_b32 v{148+n}, 7, v{148+n}')
        e(f'global_load_dword v249, v148, s[{P_W1}:{P_W1+1}]')
    uld = [f'buffer_load_dwordx4 {vr(U+4*r,4)}, v3, s[72:75], s78 offen offset:{1280*r}' for r in range(4)]
    uld[3] += f'\n s_mov_b64 exec, 1\n buffer_load_dwordx4 {vr(U+16,4)}, v5, s[72:75], 0 offen\n s_mov_b64 exec, -1'
    kgen(uld)
    stamp(1)
    e('s_cmp_eq_u32 s3, 0\n s_cbranch_scc0 L_ssm_nj')
    join(False)
    e('L_ssm_nj:\n s_waitcnt lgkmcnt(0)\n s_barrier')
    e(f'''s_mul_i32 s12, s3, {US}
          v_add_u32 v12, s12, v4
          s_mov_b64 exec, 0xff
          ds_write_b32 v12, v252
          ds_write_b32 v12, v252 offset:{UO-4}
          s_mov_b64 exec, -1
          s_lshl_b32 s13, s3, 9
          v_lshl_add_u32 v13, v0, 3, s13
          s_mov_b32 s14, 0x05040100
          s_mov_b32 s15, 0x07060302
          s_waitcnt vmcnt(0)
          s_nop 0''')
    for c in range(4):
        e(f'v_mov_b32_dpp v{U+16+c}, v{U+12+c} wave_shr:1 row_mask:0xf bank_mask:0xf')
    for ch in range(8):
        c = ch >> 1; sel = 14 + (ch & 1); t = 64 + 4*ch
        e(f'''v_perm_b32 v{t}, v{U+4+c}, v{U+c}, s{sel}
              v_perm_b32 v{t+1}, v{U+12+c}, v{U+8+c}, s{sel}
              v_perm_b32 v{t+2}, v{U+c}, v{U+16+c}, s{sel}
              v_perm_b32 v{t+3}, v{U+8+c}, v{U+4+c}, s{sel}
              ds_write_b64 v13, {vr(t,2)} offset:{ch*US+32}
              ds_write_b64 v13, {vr(t+2,2)} offset:{ch*US+UO+28}''')
    e(f'''v_and_b32 v4, 15, v0
          v_lshrrev_b32 v5, 4, v0
          v_add_u32 v6, 1, v4
          v_and_b32 v7, 1, v6
          v_mul_u32_u24 v7, {UO}, v7
          v_lshrrev_b32 v6, 1, v6
          v_lshl_add_u32 v7, v6, 2, v7
          v_lshlrev_b32 v6, 4, v5
          v_sub_u32 v7, v7, v6
          v_add_u32 v7, 48, v7
          v_add_u32 v8, s12, v7
          v_add_u32 v9, 1024, v8
          v_add_u32 v10, 2048, v8
          v_add_u32 v11, 3072, v8
          v_lshlrev_b32 v7, 5, v4
          v_add_u32 v7, v7, v6
          s_mul_i32 s13, s3, {RS}
          s_add_u32 s13, s13, {RA+528}
          v_sub_u32 v12, s13, v7''')
    ACC = 32; F = 64
    for i in range(32): e(f'v_mov_b32 v{ACC+i}, 0')
    srd(48, P_WS, Y_BYTES, WS_Y)
    srd(56, P_W2, 1728*1280)
    e(f'''v_min_u32 v193, 59, v0
          v_mul_u32_u24 v194, 6554, v193
          v_lshrrev_b32 v194, 16, v194
          v_mul_u32_u24 v195, 10, v194
          v_sub_u32 v195, v193, v195
          v_mul_u32_u24 v193, 192, v195
          v_add_u32 v193, v193, v194
          v_lshlrev_b32 v195, 7, v195
          s_lshl_b32 s13, s77, 2
          s_add_u32 s13, s13, s3
          s_mul_i32 s13, s13, 6
          s_add_u32 s13, s13, 768
          v_add_u32 v193, s13, v193''')
    for n in range(4):
        e(f'''v_add_u32 v{196+n}, {240*n}, v193
              v_subrev_u32 v194, 1728, v{196+n}
              v_min_u32 v{196+n}, v{196+n}, v194
              v_mul_u32_u24 v{196+n}, 1280, v{196+n}
              v_add_u32 v{196+n}, v{196+n}, v195''')
    e(f'''s_cmp_ge_u32 s3, 4
          s_cselect_b32 s14, 9, {opt('sp', 0)}
          s_waitcnt lgkmcnt(0)
          s_barrier''')
    stamp(2)
    def reads(st):
        b = F + 64*st; r = []
        for m in range(8):
            r.append(f'ds_read_b128 {vr(b+32+4*m,4)}, v12 offset:{(7-m)*512}')
            o = 128*(m & 1)
            r.append(f'ds_read2_b32 {vr(b+4*m,2)}, v{8+m//2} offset0:{o} offset1:{o+1}')
            r.append(f'ds_read2_b32 {vr(b+4*m+2,2)}, v{8+m//2} offset0:{o+2} offset1:{o+3}')
        return r
    adv = [f'v_add_u32 v{8+i}, 64, v{8+i}' for i in range(5)]
    def unit(st, other):
        b = F + 64*st; other = list(other)
        for m in range(8):
            for h in range(m, 8):
                e(f'v_mfma_f32_16x16x32_bf16 {vr(ACC+4*h,4)}, {vr(b+4*m,4)}, {vr(b+32+4*(h-m),4)}, {vr(ACC+4*h,4)}')
                if other: e(other.pop(0))
        e('s_waitcnt lgkmcnt(0)')
    for r in reads(0): e(r)
    e(f'''s_mov_b32 s15, 0
          s_waitcnt lgkmcnt(0)
          L_conv_loop:
          s_cmp_eq_u32 s15, s14
          s_cbranch_scc0 L_conv_np
          buffer_load_dword v200, v196, s[56:59], 0 offen
          buffer_load_dword v201, v197, s[56:59], 0 offen
          buffer_load_dword v202, v198, s[56:59], 0 offen
          buffer_load_dword v203, v199, s[56:59], 0 offen
          L_conv_np:''')
    unit(0, adv + reads(1))
    unit(1, adv + reads(0))
    e(f's_add_u32 s15, s15, 1\n s_cmp_lt_u32 s15, {opt("cit", 4)}\n s_cbranch_scc1 L_conv_loop')
    stamp(3)
    e(f'''v_lshlrev_b32 v14, 5, v4
          v_lshrrev_b32 v6, 1, v5
          v_lshl_add_u32 v14, v6, 4, v14
          v_and_b32 v6, 1, v5
          v_lshl_add_u32 v14, v6, 9, v14
          s_lshl_b32 s11, s7, 12
          s_nop 0''')
    for hp in range(4):
        a = ACC + 8*hp; o = F + 4*hp
        e(f'''v_cvt_pk_bf16_f32 v{o}, v{a}, v{a+1}
              v_cvt_pk_bf16_f32 v{o+1}, v{a+2}, v{a+3}
              v_cvt_pk_bf16_f32 v{o+2}, v{a+4}, v{a+5}
              v_cvt_pk_bf16_f32 v{o+3}, v{a+6}, v{a+7}
              s_nop 1
              v_permlane16_swap_b32 v{o}, v{o+2}
              v_permlane16_swap_b32 v{o+1}, v{o+3}
              buffer_store_dwordx4 {vr(o,4)}, v14, s[48:51], s11 offen offset:{1024*hp} sc1''')
    e('s_cmp_lt_u32 s3, 4\n s_cbranch_scc0 L_ssm_fin')
    gate()
    e('L_ssm_fin:')
    e(f'''s_lshr_b32 s12, s6, 6
          s_lshl_b32 s12, s12, 8
          s_bfe_u32 s13, s6, 0x30003
          s_lshl_b32 s13, s13, 2
          s_add_u32 s12, s12, s13
          s_add_u32 s12, s12, {F_Y}
          s_waitcnt vmcnt(0)
          s_barrier
          s_cmp_eq_u32 s3, 0
          s_cbranch_scc0 L_ssm_end''')
    flag('s12', 1)
    e('L_ssm_end:')
    finish()

def gate():
    srd(52, P_GW, 1280); srd(60, P_WS, G_BYTES, WS_G)
    e(f'''s_lshl_b32 s9, s77, 2
          s_add_u32 s9, s9, s3
          s_lshl_b32 s10, s4, 5
          s_add_u32 s10, s10, s9
          s_lshl_b32 s10, s10, 3
          v_lshlrev_b32 v3, 4, v4
          v_mul_u32_u24 v6, 1280, v5
          v_add_u32 v6, v6, v3
          s_mul_i32 s11, s10, 1280
          s_add_u32 s12, s11, 5120
          s_cmp_lt_u32 s77, 8
          s_cbranch_scc0 L_ssm_fin''')
    for n in range(5): e(f'buffer_load_dwordx4 {vr(140+4*n,4)}, v3, s[52:55], 0 offen offset:{256*n}')
    for p in range(2):
        for n in range(5): e(f'buffer_load_dwordx4 {vr(100+20*p+4*n,4)}, v6, s[72:75], s{11+p} offen offset:{256*n}')
    e('''s_mov_b32 s13, 0xffff0000
         v_lshlrev_b32 v2, 2, v5
         s_lshl_b32 s10, s10, 2
         s_waitcnt vmcnt(10)''')
    for n in range(20): e(f'v_lshlrev_b32 v{160+2*n}, 16, v{140+n}\n v_and_b32 v{161+2*n}, s13, v{140+n}')
    e('s_mov_b32 s14, 0\n s_waitcnt vmcnt(0)')
    e('L_gate:\n v_mov_b32 v8, 0\n v_mov_b32 v9, 0')
    for n in range(20):
        e(f'''v_lshlrev_b32 v10, 16, v{100+n}
              v_and_b32 v11, s13, v{100+n}
              v_mul_f32 v10, v10, v{160+2*n}
              v_mul_f32 v11, v11, v{161+2*n}
              v_cvt_pk_bf16_f32 v10, v10, v11
              v_mov_b32 v{100+n}, v{120+n}
              v_and_b32 v11, s13, v10
              v_lshlrev_b32 v10, 16, v10
              v_add_f32 v9, v9, v11
              v_add_f32 v8, v8, v10''')
    e('v_add_f32 v8, v8, v9\n s_nop 1')
    for sh in (8, 4, 2, 1):
        e(f'v_add_f32_dpp v8, v8, v8 row_ror:{sh} row_mask:0xf bank_mask:0xf\n s_nop 1')
    e('''v_cvt_pk_bf16_f32 v8, v8, v8
         v_lshlrev_b32 v8, 16, v8
         v_mul_f32 v8, 0xbfb8aa3b, v8
         v_exp_f32 v8, v8
         s_nop 0
         v_add_f32 v8, 1.0, v8
         v_rcp_f32 v8, v8
         s_nop 0
         v_cvt_pk_bf16_f32 v8, v8, v8
         v_lshlrev_b32 v12, 16, v8
         buffer_store_dword v12, v2, s[60:63], s10 offen sc1
         s_add_u32 s10, s10, 16
         s_add_u32 s14, s14, 1
         s_cmp_lt_u32 s14, 2
         s_cbranch_scc1 L_gate''')

def kgen(uld):
    L2E = 1.4426950408889634
    l2e_hi = struct.unpack('<f', struct.pack('<f', L2E))[0]
    l2e_lo = L2E - l2e_hi
    e(f'''s_mul_i32 s12, s3, {RS}
          s_add_u32 s12, s12, {RA}
          v_lshl_add_u32 v13, v0, 3, s12
          v_mov_b32 v14, 0
          v_mov_b32 v15, 0
          s_mov_b32 exec_hi, 0x0fffffff
          ds_write_b64 v13, v[14:15] offset:4096
          s_mov_b32 exec_hi, -1
          s_mul_i32 s13, s3, {US}
          s_mov_b32 m0, s13
          v_and_b32 v18, 15, v0
          v_lshrrev_b32 v19, 4, v0
          v_mul_u32_u24 v17, 544, v18
          v_lshl_add_u32 v17, v19, 4, v17
          v_add_u32 v17, s13, v17
          v_mov_b32 v16, 0x3c00
          ds_write_addtid_b32 v16
          ds_write_addtid_b32 v16 offset:256
          v_lshlrev_b32 v12, 4, v18
          v_sub_u32 v12, s12, v12
          v_lshlrev_b32 v27, 9, v19
          v_sub_u32 v24, v12, v27
          v_add_u32 v24, {2040-256}, v24
          v_lshlrev_b32 v27, 8, v19
          v_sub_u32 v25, v12, v27
          v_add_u32 v25, 3060, v25
          v_lshrrev_b32 v27, 1, v19
          v_lshlrev_b32 v27, 8, v27
          v_sub_u32 v26, v12, v27
          v_and_b32 v27, 1, v19
          v_lshlrev_b32 v27, 3, v27
          v_sub_u32 v26, v26, v27
          s_mov_b32 s68, {hex(f2u(l2e_hi))}
          s_mov_b32 s69, {hex(f2u(l2e_lo))}
          s_mov_b32 s70, {hex(f2u(0.6931471805599453))}
          s_mov_b32 s71, 0xffff0000
          s_waitcnt vmcnt({(4 if opt('wl', 1) else 5) + opt('w1pf', 0)})''')
    if opt('w1pf', 0): e(f'global_load_dword v249, v149, s[{P_W1}:{P_W1+1}]')
    elif opt('wl', 1): e('buffer_load_dword v248, v2, s[72:75], s79 offen')
    stamp(5)
    T = 28
    e('v_lshlrev_b32 v10, 16, v10\n v_lshlrev_b32 v20, 16, v6\n v_and_b32 v21, s71, v6')
    xs = [(10, T, T+1), (20, T+2, T+3), (21, T+4, T+5)]
    for fmt in ('v_mul_f32 v{t}, s68, v{x}', 'v_fma_f32 v{lo}, v{x}, s68, -v{t}', 'v_fma_f32 v{lo}, v{x}, s69, v{lo}',
                'v_exp_f32 v{t}, v{t}', 'v_mul_f32 v{lo}, s70, v{lo}', 'v_fma_f32 v{x}, v{t}, v{lo}, v{t}'):
        for x, t, lo in xs: e(fmt.format(x=x, t=t, lo=lo))
    e('''v_cvt_pk_bf16_f32 v10, v10, v10
         v_cvt_pk_bf16_f32 v20, v20, v21
         v_lshlrev_b32 v10, 16, v10
         v_and_b32 v21, s71, v20
         v_lshlrev_b32 v20, 16, v20
         v_mul_f32 v20, v20, v10
         v_mul_f32 v21, v21, v10
         v_mul_f32 v20, 0xbfb8aa3b, v20
         v_mul_f32 v21, 0xbfb8aa3b, v21
         s_waitcnt vmcnt(%d)
         v_lshlrev_b32 v22, 16, v7
         v_and_b32 v23, s71, v7
         v_mul_f32 v22, v22, v10
         v_mul_f32 v23, v23, v10
         v_mul_f32 v22, 0.15915494, v22
         v_mul_f32 v23, 0.15915494, v23''' % (1 + opt('w1pf', 0)))
    if opt('w1pf', 0): e(f'global_load_dword v249, v150, s[{P_W1}:{P_W1+1}]')
    PA, PB, QA, QB = 44, 48, 52, 56
    MH = 60; X = 84; XK = 100; XL = 116; XM = 132; YY = 100; TT = 28
    BF = 152; AF = 184; D = 216
    ce = [(PA, 20, 22, 1, T), (PA+2, 21, 23, 1, T+4), (QA, 20, 22, 128.0, T+8), (QA+2, 21, 23, 128.0, T+12)]
    ce2 = []
    for dst, a, p, sc, t in ce:
        if sc != 1:
            e(f'v_mul_f32 v{t}, {hex(f2u(sc))}, v{a}\n v_mul_f32 v{t+1}, {hex(f2u(sc))}, v{p}')
            a, p = t, t+1
        ce2.append((dst, a, p, t))
    for fmt in ('v_rndne_f32 v{t2}, v{p}', 'v_exp_f32 v{t3}, v{a}', 'v_sub_f32 v{t2}, v{p}, v{t2}', 'v_cos_f32 v{d0}, v{t2}',
                'v_sin_f32 v{d1}, v{t2}', 'v_mul_f32 v{d0}, v{d0}, v{t3}', 'v_mul_f32 v{d1}, v{d1}, v{t3}'):
        for dst, a, p, t in ce2: e(fmt.format(t2=t+2, t3=t+3, p=p, a=a, d0=dst, d1=dst+1))
    norm = f'''v_and_b32 v28, 0x7fff7fff, v8
          v_and_b32 v29, 0x7fff7fff, v9
          v_pk_max_u16 v28, v28, v29
          v_lshlrev_b32 v29, 16, v28
          v_max_u32 v28, v28, v29
          NOP
          v_max_u32_dpp v28, v28, v28 row_ror:8 row_mask:0xf bank_mask:0xf
          NOP
          v_max_u32_dpp v28, v28, v28 row_ror:4 row_mask:0xf bank_mask:0xf
          NOP
          v_max_u32_dpp v28, v28, v28 row_ror:2 row_mask:0xf bank_mask:0xf
          NOP
          v_max_u32_dpp v28, v28, v28 row_ror:1 row_mask:0xf bank_mask:0xf
          NOP
          v_readlane_b32 s90, v28, 0
          v_readlane_b32 s91, v28, 16
          v_readlane_b32 s92, v28, 32
          v_readlane_b32 s93, v28, 48
          NOP
          s_max_u32 s90, s90, s91
          s_max_u32 s92, s92, s93
          s_max_u32 s90, s90, s92
          s_lshr_b32 s90, s90, 23
          s_max_u32 s90, s90, 1
          s_min_u32 s90, s90, 252
          s_sub_u32 s91, 254, s90
          s_lshl_b32 s91, s91, 23
          s_add_u32 s90, s90, 1
          s_lshl_b32 s90, s90, 23
          v_lshlrev_b32 v28, 16, v8
          v_lshlrev_b32 v29, 16, v9
          v_and_b32 v30, s71, v8
          v_and_b32 v31, s71, v9
          v_mul_f32 v28, s91, v28
          v_mul_f32 v29, s91, v29
          v_mul_f32 v30, s91, v30
          v_mul_f32 v31, s91, v31
          v_mul_f32 v10, s90, v10
          v_cvt_pk_f16_f32 v{X}, v28, -v29
          v_cvt_pk_f16_f32 v{X+1}, v30, -v31'''.split('NOP')
    def sq(dst, x):
        for k in range(2):
            e(f'v_pk_mul_f32 {vr(dst+2*k,2)}, {vr(x+2*k,2)}, {vr(x+2*k,2)} op_sel:[0,0] op_sel_hi:[1,0]')
        for k in range(2):
            e(f'v_pk_fma_f32 {vr(dst+2*k,2)}, {vr(x+2*k,2)}, {vr(x+2*k,2)}, {vr(dst+2*k,2)} op_sel:[1,1,0] op_sel_hi:[0,1,1] neg_lo:[0,1,0]')
    def cv(lg, x):
        e(f'v_cvt_pk_f16_f32 v{MH+2*lg}, v{x}, v{x+1}\n v_cvt_pk_f16_f32 v{MH+2*lg+1}, v{x+2}, v{x+3}')
    def M(k): return MH + 2*(k.bit_length()-1)
    def row(r, x):
        e(f'ds_write_addtid_b32 v{x} offset:{544*r}\n ds_write_addtid_b32 v{x+1} offset:{544*r+256}')
    p, pn, q, qn = PA, PB, QA, QB
    for i in range(7):
        e(norm[i])
        cv(i, p)
        if i >= 3: row(1 << (i-3), MH+2*i)
        if i < 5: cv(7+i, q)
        if i < 6: sq(pn, p); p, pn = pn, p
        if i < 4: sq(qn, q); q, qn = qn, q
    stamp(6)
    if opt('w1pf', 0): e('buffer_load_dword v248, v2, s[72:75], s79 offen')
    def mulrows(items, conj, wait_first=False):
        ng = 'neg_hi:[0,1,0]' if conj else 'neg_lo:[0,1,0]'
        for i in range(0, len(items), 2):
            grp = items[i:i+2]
            for r, dst, x, m in grp:
                for k in range(2): e(f'v_pk_mul_f16 v{dst+k}, v{x+k}, v{m+k} op_sel:[0,0] op_sel_hi:[1,0]')
            for r, dst, x, m in grp:
                for k in range(2): e(f'v_pk_fma_f16 v{dst+k}, v{x+k}, v{m+k}, v{dst+k} op_sel:[1,1,0] op_sel_hi:[0,1,1] {ng}')
            if wait_first and i == 0: e('s_waitcnt lgkmcnt(0)')
            for r, dst, x, m in grp: row(r, dst)
    def rdfr(dst):
        for s_ in range(8): e(f'ds_read_b128 {vr(dst+4*s_,4)}, v17 offset:{64*s_}')
    def mm(d):
        for s_ in range(8):
            c = '0' if s_ == 0 else vr(d,4)
            e(f'v_mfma_f32_16x16x32_f16 {vr(d,4)}, {vr(AF+4*s_,4)}, {vr(BF+4*s_,4)}, {c}')
    Y = {1: M(8), 2: M(16), 4: M(32), 3: YY, 5: YY+2, 6: YY+4, 7: YY+6}
    mulrows([(3, Y[3], Y[1], M(16)), (5, Y[5], Y[1], M(32)), (6, Y[6], Y[2], M(32)), (7, Y[7], Y[3], M(32))], False)
    mulrows([(8+j, TT+2*j, Y[j], M(64)) for j in range(1, 8)], False)
    rdfr(BF)
    e(uld[0])
    mulrows([(1, X+2, X, M(1)), (2, X+4, X, M(2)), (3, X+6, X+2, M(2)), (4, X+8, X, M(4)),
             (5, X+10, X+2, M(4)), (6, X+12, X+4, M(4)), (7, X+14, X+6, M(4)), (8, XK, X, M(128))], True, True)
    row(0, X)
    e(uld[1])
    mulrows([(8+a, XK+2*a, X+2*a, M(128)) for a in range(1, 8)], True)
    rdfr(AF)
    e(uld[2])
    src = [X, X+4, X+8, X+12, XK, XK+4, XK+8, XK+12]
    it = [(n, XL+2*n, src[n], M(256)) for n in range(8)] + [(8, TT, X, M(2048))]
    mulrows(it[:2], True, True)
    mm(D)
    mulrows(it[2:], True)
    rdfr(AF)
    e(uld[3])
    e('s_cmp_eq_u32 s3, 0\n s_cbranch_scc0 L_kg_nj')
    join_load()
    e('L_kg_nj:')
    s2 = [X, X+8, XK, XK+8, XL, XL+4, XL+8, XL+12]
    it = [(4*(n >> 1) + (n & 1), XM+2*n, s2[n], M(512)) for n in range(8)]
    mulrows(it[:2], True, True)
    mm(D+4)
    mulrows(it[2:], True)
    s3 = [X, XK, XL, XL+8, XM, XM+4, XM+8, XM+12]
    mulrows([(4*(i >> 1) + 2 + (i & 1), TT+2*i, s3[i], M(1024)) for i in range(8)], True)
    rdfr(AF)
    B1 = D+4; A = D+8; C = 60
    e(f'''v_mul_f32 v{D}, v{D}, v10
          v_lshlrev_b32 v11, 16, v11
          s_mov_b64 exec, 1
          v_add_f32 v{D}, v{D}, v11
          s_mov_b64 exec, -1''')
    for i in range(1, 8): e(f'v_mul_f32 v{D+i}, v{D+i}, v10')
    e('s_waitcnt lgkmcnt(0)')
    mm(D+8)
    e(f'''v_cvt_pk_bf16_f32 v{C}, v{B1+3}, v{B1+3}
          v_cvt_pk_bf16_f32 v{C+1}, v{B1+2}, v{B1+2}
          v_cvt_pk_bf16_f32 v{C+2}, v{B1+2}, v{B1+1}
          v_cvt_pk_bf16_f32 v{C+3}, v{B1}, v{B1}
          v_cvt_pk_bf16_f32 v{C+4}, v{D+3}, v{D+2}
          v_cvt_pk_bf16_f32 v{C+5}, v{D+1}, v{D}
          s_nop 1
          v_mul_f32 v{A+2}, v{A+2}, v10
          v_mul_f32 v{A+3}, v{A+3}, v10
          v_mul_f32 v{A}, v{A}, v10
          v_mul_f32 v{A+1}, v{A+1}, v10
          v_mov_b32_dpp v{C+6}, v{A+2} quad_perm:[0,0,2,2] row_mask:0xf bank_mask:0xf
          v_mov_b32_dpp v{C+7}, v{A+3} quad_perm:[0,0,2,2] row_mask:0xf bank_mask:0xf
          v_cvt_pk_bf16_f32 v{C+8}, v{A+2}, v{A+2}
          v_cvt_pk_bf16_f32 v{C+9}, v{A+2}, v{C+6}
          v_cvt_pk_bf16_f32 v{C+10}, v{A+3}, v{A+3}
          v_cvt_pk_bf16_f32 v{C+11}, v{A+3}, v{C+7}
          ds_write2_b32 v24, v{C+8}, v{C+8} offset0:64 offset1:65
          ds_write2_b32 v24, v{C+8}, v{C+9} offset0:66 offset1:67
          ds_write2_b32 v24, v{C+10}, v{C+10} offset0:0 offset1:1
          ds_write2_b32 v24, v{C+10}, v{C+11} offset0:2 offset1:3
          v_cvt_pk_bf16_f32 v{C+12}, v{A+1}, v{A+1}
          v_cvt_pk_bf16_f32 v{C+13}, v{A+1}, v{A}
          v_cvt_pk_bf16_f32 v{C+14}, v{A}, v{A}
          ds_write2_b32 v25, v{C+12}, v{C+13} offset0:0 offset1:1
          ds_write2_b32 v25, v{C+14}, v{C+14} offset0:2 offset1:3
          s_mov_b32 exec_lo, 0
          s_mov_b32 exec_hi, 1
          ds_write2_b32 v12, v{C+3}, v{C+3} offset0:0 offset1:1
          s_mov_b32 exec_lo, -1
          s_mov_b32 exec_hi, 0
          ds_write_b16 v25, v{C} offset:510
          ds_write2_b32 v25, v{C+1}, v{C+2} offset0:128 offset1:129
          ds_write_b32 v25, v{C+3} offset:520
          ds_write_b16 v25, v{C+3} offset:524
          s_mov_b64 exec, -1
          ds_write_b64 v26, {vr(C+4,2)} offset:4088''')

def pb_setup(first):
    e(f'''v_lshlrev_b32 v50, 4, v0
          v_add_u32 v51, {54*1024 - 2048}, v50
          v_lshrrev_b32 v2, 4, v0
          v_lshlrev_b32 v52, 12, v2
          v_and_b32 v2, 15, v0
          v_lshl_add_u32 v52, v2, 4, v52
          v_lshlrev_b32 v53, 5, v2
          v_min_u32 v248, 35, v0
          v_lshl_add_u32 v248, s74, 2, v248
          v_subrev_u32 v3, 36, v248
          v_min_u32 v248, v248, v3
          s_lshl_b32 s91, s7, 8
          v_lshl_add_u32 v248, v248, 2, s91
          s_lshl_b32 s91, s6, 8
          s_add_u32 s91, s91, {F_Y}
          v_and_b32 v249, 7, v0
          v_lshl_add_u32 v249, v249, 2, s91
          s_mul_i32 s91, s4, 10
          s_and_b32 s92, s7, 1
          s_lshl_b32 s92, s92, 2
          s_add_u32 s91, s91, s92
          v_and_b32 v2, 3, v0
          v_add_u32 v2, s91, v2
          v_lshrrev_b32 v3, 3, v2
          v_lshlrev_b32 v3, 8, v3
          v_and_b32 v2, 7, v2
          v_lshl_add_u32 v3, v2, 2, v3
          v_add_u32 v3, {F_Y}, v3
          v_cmp_gt_u32 vcc, 32, v0
          s_mov_b32 s69, {first}
          s_mov_b32 s72, {first}
          s_mov_b32 s75, 0
          v_cndmask_b32 v249, v3, v249, vcc
          v_readlane_b32 s60, v{T_HG}, {first}
          v_readlane_b32 s61, v{T_HL}, {first}
          s_nop 3''')
NH = [0]
def h_issue(check):
    n = NH[0]; NH[0] += 1
    if check:
        e(f'''s_cmp_lt_u32 s69, s75
              s_cbranch_scc1 L_hk{n}
              s_getpc_b64 s[78:79]
              s_branch L_hpoll
              L_hk{n}:''')
    e(f'''s_mov_b32 m0, s61
          s_add_u32 s69, s69, 1
          buffer_load_dwordx4 v50, s[52:55], s60 offen sc1 lds
          buffer_load_dwordx4 v50, s[52:55], s60 offen offset:1024 sc1 lds
          buffer_load_dwordx4 v51, s[52:55], s60 offen offset:2048 sc1 lds
          buffer_load_dwordx4 v51, s[52:55], s60 offen offset:3072 sc1 lds
          v_readlane_b32 s60, v{T_HG}, s69
          v_readlane_b32 s61, v{T_HL}, s69''')

def poll_eval():
    e(f'''v_cmp_eq_u32 vcc, 1, v247
          s_nop 3
          s_ff0_i32_b64 s15, vcc
          s_lshr_b32 s15, s15, 2
          s_min_u32 s15, s15, 20
          s_mul_i32 s15, s15, 3
          s_add_u32 s75, s15, s72''')

def phase_b():
    e(f'''L_hpoll:
          buffer_load_dword v247, v248, s[{FLG}:{FLG+3}], 0 offen sc1
          s_waitcnt vmcnt(0)
          v_cmp_eq_u32 vcc, 1, v247
          s_nop 3
          s_ff0_i32_b64 s75, vcc
          s_lshr_b32 s75, s75, 2
          s_min_u32 s75, s75, 20
          s_mul_i32 s75, s75, 3
          s_add_u32 s75, s75, s72
          s_cmp_lt_u32 s69, s75
          s_cbranch_scc1 L_hpoll_ok
          s_sleep 1
          s_add_u32 s94, s94, 1
          s_cmp_lt_u32 s94, 0x100000
          s_cbranch_scc1 L_hpoll
          L_hpoll_ok:''')
    if STAMP: e('s_cmp_gt_u32 s69, 3\n s_cbranch_scc1 L_hps')
    stamp(12)
    e('''L_hps:
         s_add_u32 s78, s78, 4
         s_addc_u32 s79, s79, 0
         s_setpc_b64 s[78:79]
         L_g2l_chk:
         s_getpc_b64 s[78:79]
         s_branch L_hpoll
         s_branch L_g2l_h''')
    e(f'L_g2l_pre:\n buffer_load_dword v247, v248, s[{FLG}:{FLG+3}], 0 offen sc1')
    for i in (4, 5):
        w_issue(); h_issue(False)
        stamp_e(i+1, 33)
        e(f's_waitcnt vmcnt({13 if i == 4 else 12})\n s_barrier')
        stamp_b()
    poll_eval()
    e('L_g2l_loop:')
    w_issue()
    e('s_cmp_lt_u32 s69, s75\n s_cbranch_scc0 L_g2l_chk\n L_g2l_h:')
    h_issue(False)
    stamp_e('s69', 33)
    e('s_cmp_lt_u32 s69, 21\n s_waitcnt vmcnt(12)\n s_barrier')
    stamp_b()
    e('s_cbranch_scc1 L_g2l_loop')
    def bar(n, slot):
        stamp_e(slot, 33); e(f's_waitcnt vmcnt({n})\n s_barrier\n s_nop 0'); stamp_b()
    e(f'buffer_load_dword v250, v249, s[{FLG}:{FLG+3}], 0 offen sc1')
    h_issue(True); bar(11, 22)
    h_issue(False)
    aset = f'''s_lshl_b32 s15, s6, 2
          s_add_u32 s15, s15, s9
          s_lshl_b32 s15, s15, 16
          s_lshl_b32 s10, s7, 7
          s_add_u32 s10, s10, s70
          s_lshl_b32 s11, s10, 1
          s_add_u32 s11, s11, s15
          s_add_u32 s11, s11, {WS_Y}
          s_lshl_b32 s10, s10, 2
          s_add_u32 s10, s10, {WS_G}
          s_mov_b32 s64, 0xffff0000
          s_lshl_b32 s15, s9, 12
          s_add_u32 s15, s15, {AB}
          v_lshrrev_b32 v54, 4, v0
          v_lshlrev_b32 v54, 5, v54
          v_xor_b32 v54, v54, v50
          v_add_u32 v54, s15, v54
          v_xor_b32 v60, 128, v54
          v_lshrrev_b32 v55, 1, v53'''
    e(aset)
    bar(8, 23)
    h_issue(False)
    e(f'''L_g2l_yc:
          v_cmp_eq_u32 vcc, 1, v250
          s_nop 3
          s_cmp_eq_u64 vcc, -1
          s_cbranch_scc0 L_g2l_yw
          L_g2l_yok:
          buffer_load_dwordx4 v[36:39], v53, s[52:55], s10 offen sc1
          buffer_load_dwordx4 v[40:43], v53, s[52:55], s10 offen offset:16 sc1''')
    for n in range(4):
        e(f'buffer_load_dwordx4 {vr(20+4*n,4)}, v52, s[52:55], s11 offen sc1')
        if n < 3: e(f's_add_u32 s11, s11, {4*4096}')
    e('s_cmp_eq_u32 s76, 0\n s_cbranch_scc1 L_hl_loop')
    bar(14, 24)
    h_issue(True); bar(14, 25)
    h_issue(False); bar(14, 26)
    h_issue(False)
    def ga(n):
        for q in range(4):
            a_ = 20 + 4*n + q
            e(f'''v_lshlrev_b32 v44, 16, v{a_}
                  v_and_b32 v45, s64, v{a_}
                  v_mul_f32 v44, v44, v{36+2*q}
                  v_mul_f32 v45, v45, v{37+2*q}
                  v_cvt_pk_bf16_f32 v{a_}, v44, v45''')
        e(f'ds_write_b128 v{60 if n & 1 else 54}, {vr(20+4*n,4)} offset:{1024*n}')
    e(f's_setprio {opt("tp", 2)}')
    bar(8, 27)
    ga(0)
    bar(4, 28)
    ga(1)
    bar(0, 29)
    e('L_g2l_g2:')
    ga(2); ga(3)
    for q in range(4):
        e(f'''v_sub_f32 v44, 1.0, v{36+2*q}
              v_sub_f32 v45, 1.0, v{37+2*q}
              v_cvt_pk_bf16_f32 v{46+q}, v44, v45''')
    e(f'ds_write_b128 v55, v[46:49] offset:{OM}')
    stamp_e(30, 33)
    e('s_waitcnt lgkmcnt(0)\n s_barrier')
    finish()
    e(f'''L_g2l_yw:
          s_add_u32 s94, s94, 1
          s_cmp_lt_u32 s94, 0x100000
          s_cbranch_scc0 L_g2l_yok
          s_sleep {opt('ys', 12)}
          buffer_load_dword v250, v249, s[{FLG}:{FLG+3}], 0 offen sc1
          s_waitcnt vmcnt(0)
          s_branch L_g2l_yc''')
    e('''L_hl_loop:
         s_sub_u32 s15, s69, 4
         s_cmp_lt_u32 s15, 17
         s_cbranch_scc0 L_hl_nw''')
    w_issue()
    e(f'''L_hl_nw:
          s_cmp_lt_u32 s69, s75
          s_cbranch_scc1 L_hl_h
          s_getpc_b64 s[78:79]
          s_branch L_hpoll
          L_hl_h:
          s_mov_b32 m0, s61
          s_add_u32 s69, s69, 1
          buffer_load_dwordx4 v50, s[52:55], s60 offen sc1 lds
          buffer_load_dwordx4 v50, s[52:55], s60 offen offset:1024 sc1 lds
          v_readlane_b32 s60, v{T_HG}, s69
          v_readlane_b32 s61, v{T_HL}, s69
          s_cmp_lt_u32 s69, 3
          s_cbranch_scc1 L_hl_loop
          s_sub_u32 s15, s69, 6
          s_cmp_lt_u32 s15, 16
          s_cbranch_scc1 L_hl_w8
          s_waitcnt vmcnt(4)
          L_hl_w8:
          s_waitcnt vmcnt(8)
          s_barrier
          s_cmp_eq_u32 s69, 22
          s_cbranch_scc1 L_hl_y
          s_cmp_eq_u32 s69, 24
          s_cbranch_scc1 L_g2l_yc
          s_cmp_lt_u32 s69, 27
          s_cbranch_scc1 L_hl_loop
          s_waitcnt vmcnt(2)
          s_barrier
          s_waitcnt vmcnt(0)''')
    ga(0)
    e('s_barrier')
    ga(1)
    e(f's_branch L_g2l_g2\n L_hl_y:\n buffer_load_dword v250, v249, s[{FLG}:{FLG+3}], 0 offen sc1')
    e(aset)
    e('s_branch L_hl_loop')

PACC = 192
R_H, R_W0, R_W1, R_A, R_O, R_OM = 224, 225, 226, 227, 228, 229
def pbc_setup():
    srd(60, P_OUT, 2048*1280)
    e(f'''v_and_b32 v230, 15, v0
          v_lshrrev_b32 v231, 4, v0
          s_lshl_b32 s58, s8, s76
          s_lshl_b32 s56, s58, 12
          v_lshl_add_u32 v{R_H}, v0, 4, s56
          v_lshrrev_b32 v232, 2, v0
          v_lshlrev_b32 v233, 7, v232
          v_and_b32 v232, 3, v0
          v_lshl_add_u32 v233, v232, 3, v233
          v_add_u32 v233, {WB}, v233
          v_bfe_u32 v232, v0, 3, 2
          s_lshl_b32 s56, s9, 1
          v_xor_b32 v232, s56, v232
          v_lshl_add_u32 v{R_W0}, v232, 5, v233
          v_xor_b32 v232, 1, v232
          v_lshl_add_u32 v{R_W1}, v232, 5, v233
          v_lshrrev_b32 v232, 2, v0
          v_lshlrev_b32 v{R_A}, 8, v232
          v_and_b32 v232, 3, v0
          v_lshl_add_u32 v{R_A}, v232, 3, v{R_A}
          s_lshl_b32 s56, s9, 13
          s_lshl_b32 s57, s58, 6
          s_add_u32 s56, s56, s57
          s_add_u32 s56, s56, {AB}
          v_add_u32 v{R_A}, s56, v{R_A}
          v_bfe_u32 v232, v0, 2, 3
          v_lshlrev_b32 v232, 5, v232
          v_xor_b32 v{R_A}, v{R_A}, v232
          v_lshl_add_u32 v{R_OM}, v230, 1, s57
          v_mul_u32_u24 v{R_O}, 1280, v230
          v_and_b32 v232, 1, v231
          v_lshl_add_u32 v{R_O}, v232, 5, v{R_O}
          v_lshrrev_b32 v232, 1, v231
          v_lshl_add_u32 v{R_O}, v232, 4, v{R_O}
          s_lshl_b32 s56, s7, 2
          s_add_u32 s56, s56, s58
          s_mul_i32 s65, s56, {32*1280}
          s_lshl_b32 s56, s6, 7
          s_add_u32 s65, s65, s56
          s_lshl_b32 s56, s9, 6
          s_add_u32 s65, s65, s56
          s_mul_i32 s56, s70, 1280
          s_add_u32 s65, s65, s56
          s_mov_b32 s64, 0xffff0000''')
    for i in range(32): e(f'v_mov_b32 v{PACC+i}, 0')
    for i in range(4): e(f'v_mov_b32 v{234+i}, 0')

def phase_b_compute(NT=4):
    ACC = PACC; FR = 16; GA = 112; G = 234; AT = 144; O = 160; T = 176; GL = 230
    e(f's_mov_b32 s12, {H0}\n s_mov_b32 s13, {6*8192}\n s_mov_b32 s15, 0')
    def reads(st):
        r = []
        for ks in range(2):
            b = FR + 48*st + 24*ks
            for j in range(2):
                if NT == 2: r.append(f'ds_read_b128 {vr(b+8+4*j,4)}, v6 offset:{2048*j+1024*ks}')
                else: r.append(f'ds_read_b128 {vr(b+8+8*j,4)}, v6 offset:{4096*j+1024*ks}')
                for half in range(2):
                    r.append(f'ds_read_b64_tr_b16 {vr(b+4*j+2*half,2)}, v{7+j} offset:{4096*ks+2048*half}')
                if NT == 4: r.append(f'ds_read_b128 {vr(b+12+8*j,4)}, v6 offset:{4096*j+2048+1024*ks}')
        return r
    def mfmas(st):
        return [f'v_mfma_f32_16x16x32_bf16 {vr(ACC+8*ti+4*j,4)}, {vr(FR+48*st+24*ks+4*j,4)}, {vr(FR+48*st+24*ks+8+4*ti,4)}, {vr(ACC+8*ti+4*j,4)}'
                for ks in range(2) for ti in range(NT) for j in range(2)]
    upd = ['s_add_u32 s12, s12, 16384', 's_cmp_eq_u32 s12, 163840', 's_cselect_b32 s12, 0, s12', 's_cmp_eq_u32 s12, 16384',
           f's_cselect_b32 s12, {H0}, s12', 's_add_u32 s13, s13, 8192', f's_cmp_ge_u32 s13, {NWS*8192}', 's_cselect_b32 s13, 0, s13',
           f'v_add_u32 v6, s12, v{R_H}', f'v_add_u32 v7, s13, v{R_W0}', f'v_add_u32 v8, s13, v{R_W1}']
    def step(st, mm):
        rd = reads(st)
        e('s_barrier')
        per = [int(c) for c in (OPT.get('sch', '222211111111') if NT == 4 else '3333')]
        up = list(upd)
        for i, m in enumerate(mm):
            e(m)
            if i < len(per):
                for _ in range(per[i]): e(rd.pop(0))
            else:
                for _ in range(3):
                    if up: e(up.pop(0))
        for r in rd + up: e(r)
        if mm: e('s_waitcnt lgkmcnt(0)')
    for x in upd[-3:]: e(x)
    e('s_waitcnt lgkmcnt(0)')
    step(0, [])
    if NT == 4:
        e('s_waitcnt vmcnt(0)')
        stamp(2)
        xcc_check()
        e('s_cmp_eq_u32 s95, 2\n s_cbranch_scc0 L_pbc_sf')
        flag('s89', 1, '')
        e('L_pbc_go:')
    e(f's_waitcnt lgkmcnt(0)\n s_nop 1\n L_g2c_loop{NT}:')
    step(1, mfmas(0))
    step(0, mfmas(1))
    e(f's_add_u32 s15, s15, 1\n s_cmp_lt_u32 s15, 13\n s_cbranch_scc1 L_g2c_loop{NT}')
    mm = mfmas(0)
    order = [mm[2*NT*ks + 2*ti + j] for ti in range(NT) for ks in range(2) for j in range(2)]
    for m in order: e(m)
    stamp(34)
    for ti in range(NT): e(f'v_xor_b32 v{2+ti}, {32*ti}, v{R_A}')
    e('s_mov_b32 s56, 0x3f80\n s_mov_b32 s57, 0x3f800000\n s_barrier')
    stamp(36)
    for ti in range(NT):
        e(f'ds_read_u16_d16_hi v{G+ti}, v{R_OM} offset:{OM+32*ti}')
        for j in range(2):
            e(f'ds_read_b64_tr_b16 {vr(AT+4*ti+2*j,2)}, v{2+ti} offset:{4096*j}')
    for p in range(4*NT):
        e(f'v_cvt_pk_bf16_f32 v{T+p}, v{ACC+2*p}, v{ACC+2*p+1}')
    for ti in range(NT):
        e(f's_waitcnt lgkmcnt({3*(NT-1-ti)})\n v_lshrrev_b32 v{GL+ti}, 16, v{G+ti}')
        ins = []
        for p in range(4):
            t = ACC + 8*ti + 2*p; y = GA + 8*ti + 2*p; bp = T + 4*ti + p
            ins.append([f'v_dot2_f32_bf16 v{t+1}, v{bp}, v{G+ti}, 0', f'v_dot2_f32_bf16 v{t}, v{bp}, v{GL+ti}, 0',
                        f'v_lshlrev_b32 v{y}, 16, v{AT+4*ti+p}', f'v_cvt_pk_bf16_f32 v{bp}, v{t}, v{t+1}', f'v_and_b32 v{y+1}, s64, v{AT+4*ti+p}',
                        f'v_dot2_f32_bf16 v{t}, v{bp}, s56, v{y}', f'v_dot2_f32_bf16 v{t+1}, v{bp}, s57, v{y+1}',
                        f'v_cvt_pk_bf16_f32 v{O+4*ti+p}, v{t}, v{t+1}'])
        for k in range(8):
            for p in range(4): e(ins[p][k])
        o = O + 4*ti
        e(f'''s_nop 1
              v_permlane16_swap_b32 v{o}, v{o+2}
              v_permlane16_swap_b32 v{o+1}, v{o+3}
              buffer_store_dwordx4 {vr(o,4)}, v{R_O}, s[60:63], s65 offen {OPT.get('ost', 'sc1').replace('+', ' ')}''')
        if ti < NT-1: e(f's_add_u32 s65, s65, {16*1280}')
    stamp(37)
    finish()
    if NT == 4:
        e('L_pbc_sf:')
        flag('s89', 1)
        e('s_branch L_pbc_go')

prologue(); gemm1(); phase_b(); helper(); ssm()
if opt('prio', 0):
    L.insert(L.index('L_g1c:') + 1, '    s_setprio 2')
e('L_end:\n L_code_end:\n s_endpgm')

HEAD = open(f'cdna_kernels/{NAME}.s.ref').read().split('; Override launch')[0]
HEAD += f'''; @launch grid=(256,1,1) block=(512,1,1) lds=163840
.amdgcn_target "amdgcn-amd-amdhsa--gfx950"
.text
.globl {NAME}_kernel
.type {NAME}_kernel,@function
.p2align 8
'''
TAIL = f'''.section .rodata,"a"
.p2align 6
.amdhsa_kernel {NAME}_kernel
  .amdhsa_next_free_vgpr 256
  .amdhsa_next_free_sgpr 102
  .amdhsa_accum_offset 256
  .amdhsa_group_segment_fixed_size 0
  .amdhsa_kernarg_size 112
  .amdhsa_user_sgpr_count 2
  .amdhsa_user_sgpr_kernarg_segment_ptr 1
  .amdhsa_system_sgpr_workgroup_id_x 1
.end_amdhsa_kernel
'''
open(OUT, 'w').write(HEAD + '\n'.join(L) + '\n' + TAIL)
print('wrote', OUT, len(L), 'lines')
```

```python
import sys, struct

NAME = 'gated_mix__ssm_conv_s4d__dense_activation_relu__prompt'
OUT = sys.argv[1] if len(sys.argv) > 1 else f'cdna_kernels/{NAME}.s'
OPT = dict(a.split('=') for a in sys.argv[2:])
STAMP = int(OPT.get('stamp', 0))
def opt(k, d): return int(OPT.get(k, d))

L = []
def e(s=''):
    for ln in s.split('\n'):
        ln = ln.strip()
        if not ln: continue
        L.append(ln if ln.endswith(':') else '    ' + ln)
def f2u(x): return struct.unpack('<I', struct.pack('<f', x))[0]
def vr(a, n): return f'v[{a}:{a+n-1}]'

WS_H = 0;        H_BYTES = 128*54*1024
WS_Y = 0x700000; Y_BYTES = 640*4096
WS_G = 0x980000; G_BYTES = 8192
WS_F = 0x990000; F_BYTES = 34*256
WS_ST = 0xC00000
F_Y = 16*256; F_X = 26*256
DBG = 84; FLG = 96

def srd(d, lo, nbytes, off=0):
    if off: e(f's_add_u32 s{d}, s{lo}, {hex(off)}\n s_addc_u32 s{d+1}, s{lo+1}, 0')
    else:   e(f's_mov_b32 s{d}, s{lo}\n s_mov_b32 s{d+1}, s{lo+1}')
    e(f's_mov_b32 s{d+2}, {hex(nbytes)}\n s_mov_b32 s{d+3}, 0x00020000')
P_U, P_LAR, P_AI, P_CR, P_CI, P_LDT, P_DSK, P_W1, P_W2, P_GW, P_OUT, P_DBG, P_WS = 16, 18, 20, 22, 24, 26, 28, 32, 34, 36, 38, 40, 42
def sync_srds():
    srd(DBG, P_DBG, 256); srd(FLG, P_WS, F_BYTES, WS_F)

def stamp(slot):
    if STAMP: e(f's_memrealtime s[80:81]\n s_waitcnt lgkmcnt(0)\n v_writelane_b32 v255, s80, {slot}')
def stamp_b():
    if STAMP: e('s_memtime s[82:83]' if STAMP == 2 else 's_memrealtime s[82:83]')
def stamp_e(slot, base):
    if STAMP: e(f's_waitcnt lgkmcnt(0)\n s_add_u32 m0, {slot}, {base}\n v_writelane_b32 v255, s82, m0')
def stamp_cyc(slot):
    if STAMP: e(f's_memtime s[80:81]\n s_waitcnt lgkmcnt(0)\n v_writelane_b32 v255, s80, {slot}')
def finish():
    if STAMP:
        e('s_waitcnt lgkmcnt(0) vmcnt(0)')
        stamp(35); stamp_cyc(15)
        srd(72, P_WS, 0x100000, WS_ST)
        e('''s_lshl_b32 s76, s2, 3
             s_add_u32 s76, s76, s3
             s_lshl_b32 s76, s76, 8
             v_lshlrev_b32 v1, 2, v0
             buffer_store_dword v255, v1, s[72:75], s76 offen''')
    e('s_endpgm')

def flag(off, val, pol='sc1'):
    e(f'''v_mov_b32 v253, {val}
          s_mov_b64 exec, 1
          buffer_store_dword v253, v252, s[{FLG}:{FLG+3}], {off} offen {pol}
          s_mov_b64 exec, -1''')
def join_load():
    e(f'buffer_load_dword v251, v252, s[{DBG}:{DBG+3}], 0 offen sc1')
NJ = [0]
def join(publish):
    n = NJ[0]; NJ[0] += 1
    e(f'''L_join{n}:
          s_waitcnt vmcnt(0)
          v_readfirstlane_b32 s90, v251
          s_lshl_b32 s91, s4, 6
          s_add_u32 s91, s91, s5
          s_lshl_b32 s91, s91, 2
          s_add_u32 s91, s91, {F_X}
          s_cmp_eq_u32 s90, 1
          s_cbranch_scc1 L_joined{n}
          s_sleep 4
          buffer_load_dword v251, v252, s[{DBG}:{DBG+3}], 0 offen sc1
          s_add_u32 s94, s94, 1
          s_cmp_lt_u32 s94, 0x100000
          s_cbranch_scc1 L_join{n}
          L_joined{n}:''')
    if publish: flag('s91', 's88')
def xcc_load():
    e(f'''s_lshl_b32 s90, s4, 8
          s_add_u32 s90, s90, {F_X}
          v_min_u32 v246, 21, v0
          v_lshlrev_b32 v246, 2, v246
          buffer_load_dword v245, v246, s[{FLG}:{FLG+3}], s90 offen sc1''')
def xcc_check():
    e(f'''v_cmp_eq_u32 vcc, s88, v245
          s_nop 3
          s_cmp_eq_u64 vcc, -1
          s_cselect_b32 s95, {2 if opt('fast', 1) else 1}, 1''')

def prologue():
    e(NAME + '_kernel:')
    if STAMP: e('v_mov_b32 v255, 0')
    stamp(0); stamp_cyc(14)
    if STAMP: e('s_mov_b32 s82, 0')
    e('''s_cmp_ge_u32 s2, 256
         s_cbranch_scc1 L_end
         s_load_dwordx16 s[16:31], s[0:1], 0
         s_load_dwordx8 s[32:39], s[0:1], 64
         s_load_dwordx4 s[40:43], s[0:1], 96
         v_lshrrev_b32 v1, 6, v0
         s_getpc_b64 s[6:7]
         L_pc:
         v_min_u32 v2, (L_code_end-L_pc)/128, v0
         v_lshlrev_b32 v2, 7, v2
         s_cmp_lt_u32 s2, %d
         s_cbranch_scc1 L_ncp
         global_load_dword v254, v2, s[6:7]
         L_ncp:
         v_and_b32 v0, 63, v0
         v_readfirstlane_b32 s3, v1
         s_and_b32 s4, s2, 7
         s_lshr_b32 s5, s2, 3
         s_getreg_b32 s88, hwreg(HW_REG_XCC_ID, 0, 4)
         s_add_u32 s88, s88, 1
         s_mov_b32 s94, 0
         s_mov_b32 s70, 0
         s_mov_b32 s71, 0
         s_mov_b32 s76, 1
         s_mov_b32 s95, 0
         v_mov_b32 v252, 0
         v_mov_b32 v251, 0
         s_cmp_ge_u32 s5, 18
         s_cbranch_scc1 L_not_g1''' % (8*opt('cpm', 18)))

SL = 40960; WR = 16384
H0 = 114688; AB = 16384; WB = 32768; NWS = 10; OM = WB + 3*8192
def tile_ids():
    e('''s_and_b32 s7, s5, 1
         s_lshr_b32 s6, s5, 1
         s_lshl_b32 s8, s4, 1
         s_add_u32 s7, s7, s8''')
T_HG, T_HL, T_WG, T_WL = 56, 57, 58, 59
def wpre_setup():
    srd(56, P_W2, 1728*1280)
    srd(52, P_WS, WS_F)
    e(f'''v_lshrrev_b32 v2, 3, v0
          v_mul_u32_u24 v17, 1280, v2
          v_and_b32 v3, 7, v0
          v_and_b32 v2, 6, v2
          v_xor_b32 v3, v3, v2
          v_lshl_add_u32 v17, v3, 4, v17
          v_add_u32 v18, {8*1280-1024}, v17
          s_mul_i32 s68, s6, 3
          v_min_u32 v2, 26, v0
          v_add_u32 v2, s68, v2
          v_subrev_u32 v3, 27, v2
          v_min_u32 v2, v2, v3
          s_lshl_b32 s66, s7, 3
          s_lshl_b32 s67, s9, s76
          s_add_u32 s66, s66, s67
          s_mul_i32 s66, s66, {54*1024}
          s_mul_i32 s67, s70, {54*64}
          s_add_u32 s66, s66, s67
          v_lshl_add_u32 v{T_HG}, v2, 11, s66
          s_mul_i32 s66, s9, {16*1280}
          s_lshl_b32 s67, s6, 7
          s_add_u32 s66, s66, s67
          v_mul_u32_u24 v2, {64*1280}, v2
          v_add_u32 v{T_WG}, s66, v2
          v_and_b32 v2, 3, v0
          v_lshlrev_b32 v2, 14, v2
          v_add_u32 v2, {H0}, v2
          v_subrev_u32 v3, 163840, v2
          v_min_u32 v2, v2, v3
          s_lshl_b32 s66, s9, 11
          s_lshl_b32 s66, s66, s76
          v_add_u32 v{T_HL}, s66, v2
          v_add_u32 v2, 6, v0
          v_mul_u32_u24 v3, 6554, v2
          v_lshrrev_b32 v3, 16, v3
          v_mul_u32_u24 v3, 10, v3
          v_sub_u32 v2, v2, v3
          s_lshl_b32 s66, s9, 11
          s_add_u32 s66, s66, {WB}
          v_lshl_add_u32 v{T_WL}, v2, 13, s66
          s_mov_b32 s73, 0
          v_readlane_b32 s66, v{T_WG}, 0
          v_readlane_b32 s67, v{T_WL}, 0
          s_nop 2''')
def w_issue():
    e(f'''s_mov_b32 m0, s67
          s_add_u32 s73, s73, 1
          buffer_load_dwordx4 v17, s[56:59], s66 offen lds
          buffer_load_dwordx4 v18, s[56:59], s66 offen offset:1024 lds
          v_readlane_b32 s66, v{T_WG}, s73
          v_readlane_b32 s67, v{T_WL}, s73''')
NW = [0]
def w_preload(upto):
    k = NW[0]; NW[0] += 1
    e(f'L_wp{k}:')
    w_issue()
    e(f's_cmp_lt_u32 s73, {upto}\n s_cbranch_scc1 L_wp{k}')

def gemm1():
    tile_ids()
    e('s_cmp_lt_u32 s3, 4\n s_cbranch_scc1 L_g1c')
    if opt('lp', 2): e(f's_setprio {opt("lp", 2)}')
    e('''s_sub_u32 s9, s3, 4
         v_lshrrev_b32 v2, 3, v0
         v_mul_u32_u24 v2, 1280, v2
         v_and_b32 v3, 7, v0
         v_lshrrev_b32 v4, 4, v0
         v_xor_b32 v3, v3, v4
         v_lshl_add_u32 v10, v3, 4, v2
         v_xor_b32 v3, 4, v3
         v_lshl_add_u32 v11, v3, 4, v2
         v_add_u32 v11, %d, v11
         v_add_u32 v12, %d, v10
         v_add_u32 v13, %d, v11''' % (9216, 2*9216, 2*9216))
    for b in range(3):
        e(f'''v_add_u32 v2, {64*b}, v0
              v_mul_u32_u24 v3, 2731, v2
              v_lshrrev_b32 v3, 16, v3
              v_mul_u32_u24 v4, 24, v3
              v_sub_u32 v4, v2, v4
              v_and_b32 v5, 2, v3
              v_xor_b32 v4, v4, v5
              v_mul_u32_u24 v3, 3456, v3
              v_subrev_u32 v3, {1024*b}, v3
              v_lshl_add_u32 v{14+b}, v4, 4, v3
              v_xor_b32 v4, 4, v4
              v_lshl_add_u32 v{19+b}, v4, 4, v3''')
    e(f's_mul_i32 s14, s6, {opt("ra", 0)}\n s_lshr_b32 s12, s4, {opt("rs", 0)}\n s_mul_i32 s12, s12, {opt("rb", 1)}\n s_add_u32 s14, s14, s12')
    e(f's_and_b32 s12, s7, 1\n s_mul_i32 s12, s12, {opt("rr", 0)}\n s_add_u32 s14, s14, s12')
    e('''s_cmp_ge_u32 s14, 20
         s_cselect_b32 s12, 10, 0
         s_sub_u32 s14, s14, s12
         s_cmp_ge_u32 s14, 10
         s_cselect_b32 s12, 10, 0
         s_sub_u32 s14, s14, s12
         s_lshl_b32 s10, s7, 2
         s_add_u32 s10, s10, s9
         s_mul_i32 s10, s10, %d
         s_lshl_b32 s12, s14, 7
         s_add_u32 s10, s10, s12
         s_mul_i32 s11, s9, %d
         s_mul_i32 s12, s6, 384
         s_add_u32 s11, s11, s12
         s_mul_i32 s12, s14, %d
         s_add_u32 s11, s11, s12
         s_lshl_b32 s12, s9, 12
         s_mul_i32 s13, s9, 6144
         s_add_u32 s13, s13, %d
         s_mov_b32 s8, 0
         s_mov_b32 s64, %d
         s_mov_b32 s65, %d
         s_waitcnt lgkmcnt(0)''' % (32*1280, 16*3456, 64*3456, WR, (-3*SL) & 0xffffffff, SL))
    srd(44, P_U, 2048*1280)
    srd(48, P_W1, 640*3456)
    iblk = '''         s_mov_b32 m0, s12
         s_add_u32 s15, s11, %d
         buffer_load_dwordx4 v10, s[44:47], s10 offen lds
         buffer_load_dwordx4 v11, s[44:47], s10 offen offset:1024 lds
         buffer_load_dwordx4 v12, s[44:47], s10 offen offset:2048 lds
         buffer_load_dwordx4 v13, s[44:47], s10 offen offset:3072 lds
         s_mov_b32 m0, s13
         s_add_u32 s10, s10, 128
         buffer_load_dwordx4 v14, s[48:51], s11 offen lds
         buffer_load_dwordx4 v15, s[48:51], s11 offen offset:1024 lds
         buffer_load_dwordx4 v16, s[48:51], s11 offen offset:2048 lds
         s_add_u32 m0, s13, 3072
         s_add_u32 s11, s11, %d
         buffer_load_dwordx4 v19, s[48:51], s15 offen lds
         buffer_load_dwordx4 v20, s[48:51], s15 offen offset:1024 lds
         buffer_load_dwordx4 v21, s[48:51], s15 offen offset:2048 lds
         s_cmp_ge_u32 s12, %d
         s_cselect_b32 s15, s64, s65
         s_add_u32 s12, s12, s15
         s_add_u32 s13, s13, s15
         s_add_u32 s14, s14, 1
         s_cmp_eq_u32 s14, 10
         s_cselect_b32 s15, 1280, 0
         s_sub_u32 s10, s10, s15
         s_cmp_eq_u32 s14, 10
         s_cselect_b32 s15, %d, 0
         s_sub_u32 s11, s11, s15
         s_add_u32 s8, s8, 1
''' % (8*3456, 64*3456, 3*SL, 640*3456)
    if opt('pk', 0):
        e('L_g1l_first:')
        e(iblk)
        e('s_cmp_lt_u32 s8, 2\n s_cbranch_scc1 L_g1l_first\n s_cmp_eq_u32 s8, 3\n s_cbranch_scc1 L_g1l_set\n s_waitcnt vmcnt(10)\n s_barrier')
        stamp_b()
        e('s_branch L_g1l_first\n L_g1l_set:')
    else:
        e(iblk)
    sync_srds()
    wpre_setup()
    e('s_add_u32 s74, s6, 1')
    pb_setup(3)
    if opt('pk', 0): e('s_branch L_g1l_wt')
    e('L_g1l_loop:')
    e(iblk)
    e('L_g1l_wt:')
    stamp_e('s8', 14)
    e('s_waitcnt vmcnt(10)\n s_barrier')
    stamp_b()
    e('s_cmp_lt_u32 s8, 10\n s_cbranch_scc1 L_g1l_loop')
    def rload(k):
        e(f'''s_add_u32 s73, s73, 1
              buffer_load_dwordx4 {vr(64+8*k,4)}, v17, s[56:59], s66 offen
              buffer_load_dwordx4 {vr(68+8*k,4)}, v18, s[56:59], s66 offen offset:1024
              v_readlane_b32 s66, v{T_WG}, s73
              v_readlane_b32 s67, v{T_WL}, s73
              s_nop 2''')
    R2 = opt('r2', 0)
    w_preload(4)
    e('s_nop 1')
    for k in range(R2): rload(k)
    stamp(7)
    e(f's_waitcnt vmcnt({8+2*R2})\n s_barrier')
    stamp(8)
    for k in range(R2, 6): rload(k)
    e(f'''s_lshl_b32 s15, s9, 11
          s_add_u32 s15, s15, {WB}
          v_add_u32 v54, s15, v50
          s_barrier''')
    for k in range(6):
        e(f's_waitcnt vmcnt({10-2*k})\n ds_write_b128 v54, {vr(64+8*k,4)} offset:{8192*k}\n ds_write_b128 v54, {vr(68+8*k,4)} offset:{8192*k+1024}')
    stamp(10)
    e('s_waitcnt lgkmcnt(0)\n s_barrier')
    stamp(32)
    h_issue(True)
    e('s_barrier')
    stamp(9)
    e('s_branch L_g2l_pre')

    e('L_g1c:')
    ACC = 16; FR = 112; XB = 2; XA = 8
    e(f'''s_lshr_b32 s8, s3, 1
          s_and_b32 s9, s3, 1
          v_and_b32 v14, 15, v0
          s_lshl_b32 s10, s8, 6
          v_add_u32 v15, s10, v14
          v_lshlrev_b32 v15, 7, v15
          v_bfe_u32 v14, v0, 1, 3
          v_lshrrev_b32 v1, 4, v0
          v_xor_b32 v14, v14, v1
          v_lshl_add_u32 v{XB}, v14, 4, v15
          v_xor_b32 v14, 4, v14
          v_lshl_add_u32 v{XB+1}, v14, 4, v15
          v_lshlrev_b32 v1, 3, v1
          v_bfe_u32 v14, v0, 2, 2
          v_add_u32 v1, v1, v14
          v_mul_u32_u24 v1, 384, v1
          v_and_b32 v14, 3, v0
          v_lshl_add_u32 v1, v14, 3, v1
          v_add_u32 v1, {WR}, v1
          v_bfe_u32 v14, v0, 3, 2
          s_mul_i32 s10, s9, 6''')
    for c in range(4):
        e(f'''s_add_u32 s11, s10, {c}
              v_xor_b32 v15, s11, v14
              v_lshl_add_u32 v{XB+2+c}, v15, 5, v1''')
    for i in range(96): e(f'v_mov_b32 v{ACC+i}, 0')
    e(f'''v_lshlrev_b32 v1, 4, v0
          s_lshl_b32 s66, s7, 1
          s_add_u32 s66, s66, s8
          s_mul_i32 s66, s66, {4*54}
          s_mul_i32 s11, s6, 6
          s_mul_i32 s12, s9, 3
          s_add_u32 s11, s11, s12
          s_add_u32 s66, s66, s11
          s_lshl_b32 s66, s66, 10
          s_add_u32 s67, s66, {54*1024}
          s_add_u32 s68, s66, {2*54*1024}
          s_add_u32 s69, s66, {3*54*1024}
          s_lshl_b32 s12, s8, 13
          s_add_u32 s12, s12, {H0}
          s_mul_i32 s13, s9, 31744
          s_add_u32 s13, s13, s12
          v_add_u32 v241, s13, v1
          s_mul_i32 s13, s9, 17408
          s_add_u32 s13, s13, s12
          v_add_u32 v240, s13, v1
          s_waitcnt lgkmcnt(0)''')
    srd(52, P_WS, H_BYTES, WS_H)
    sync_srds()
    pbc_setup()
    e('v_mov_b32 v245, 0')
    e(f's_cmp_eq_u32 s3, 0\n s_cselect_b32 s15, 1, {opt("xi", 7)}\n s_mov_b32 s12, 0\n s_mov_b32 s13, 0\n s_mov_b32 s14, 0')
    def reads(ks):
        base = FR + 40*ks
        x = [f'ds_read_b128 {vr(base+24+4*ti,4)}, v{XA+ks} offset:{2048*ti}' for ti in range(4)]
        w = [f'ds_read_b64_tr_b16 {vr(base+4*fi+2*half,2)}, v{XA+2+(fi&3)} offset:{(32*ks+4*half)*384+128*(fi>>2)}' for fi in range(6) for half in range(2)]
        return w[:2] + x + w[2:]
    def acc(fi, ti): return ACC + 32*(fi >> 1) + 8*ti + 4*(fi & 1)
    def mfma(ks, fi, ti):
        base = FR + 40*ks
        return f'v_mfma_f32_16x16x32_bf16 {vr(acc(fi,ti),4)}, {vr(base+4*fi,4)}, {vr(base+24+4*ti,4)}, {vr(acc(fi,ti),4)}'
    def step(ks, other):
        other = list(other)
        for fi in range(6):
            for ti in range(4):
                e(mfma(ks, fi, ti))
                if other: e(other.pop(0))
        assert not other
        e('s_waitcnt lgkmcnt(0)')
    for i in range(6): e(f'v_mov_b32 v{XA+i}, v{XB+i}')
    e('s_barrier')
    for r in reads(0): e(r)
    e('s_waitcnt lgkmcnt(0)\n s_branch L_g1c_mid')
    e('L_g1c_hook:\n s_cmp_eq_u32 s15, 1\n s_cbranch_scc0 L_g1c_hk2')
    join_load()
    e('s_mov_b32 s15, 3\n s_branch L_g1c_loop\n L_g1c_hk2:\n s_cmp_eq_u32 s15, 3\n s_cbranch_scc1 L_g1c_hk3')
    xcc_load()
    e('s_mov_b32 s15, 10\n s_branch L_g1c_loop\n L_g1c_hk3:')
    join(True)
    e(f's_mov_b32 s15, {opt("xi", 7)}\n s_nop 2')
    if opt('al', 1): L.append('.p2align 3')
    e('L_g1c_loop:')
    NB = opt('nb', 2)
    if NB == 0: e('s_barrier')
    step(1, ['']*(NB-1) + ['s_barrier\n s_nop 0' if opt('al', 1) else 's_barrier']*(NB > 0) + reads(0))
    if opt('al', 1): e('s_nop 0')
    e('L_g1c_mid:')
    upd = [f's_add_u32 s12, s12, {SL}\n s_cmp_ge_u32 s12, {4*SL}', 's_cselect_b32 s12, 0, s12\n s_add_u32 s14, s14, 1']
    upd += [f'v_add_u32 v{XA+2*i}, s12, v{XB+2*i}\n v_add_u32 v{XA+2*i+1}, s12, v{XB+2*i+1}' for i in range(3)]
    upd += ['s_cmp_lg_u32 s14, s15\n s_nop 0']
    step(0, reads(1) + upd)
    e('s_cbranch_scc1 L_g1c_loop\n s_cmp_lt_u32 s14, 10\n s_cbranch_scc1 L_g1c_hook')
    stamp(3)
    ZP = opt('zp', 6)
    if ZP < 0: e('s_barrier')
    def epi(n):
        m, ti = n >> 2, n & 3
        d = acc(2*m, ti)
        out = [f'v_cvt_pk_bf16_f32 v{d+q}, v{d+2*q}, v{d+2*q+1}' for q in range(4)]
        out += [f'v_pk_max_i16 v{d+q}, v{d+q}, 0' for q in range(4)]
        out.append(f'buffer_store_dwordx4 {vr(d,4)}, v1, s[52:55], s{66+ti} offen offset:{1024*m} sc1')
        return out
    mm = [mfma(1, 2*(n >> 2) + j, n & 3) for n in range(12) for j in range(2)]
    for x in mm[:10]: e(x)
    for n in range(12):
        ep = epi(n)
        for k, x in enumerate(ep):
            e(x)
            if k in (3, 7) and 10 + 2*n + (k >> 2) < 24: e(mm[10 + 2*n + (k >> 2)])
        if n == ZP: e('s_barrier')
    stamp(4)
    for n in range(12):
        m, ti = n >> 2, n & 3
        e(f'ds_write_b128 v{240+(m&1)}, {vr(acc(2*m,ti),4)} offset:{[0, 1024, 16384][m] + 2048*ti}')
    stamp(1)
    e('''s_lshl_b32 s89, s7, 4
         s_add_u32 s89, s89, s6
         s_lshl_b32 s89, s89, 2
         s_add_u32 s89, s89, s3
         s_lshl_b32 s89, s89, 2''')
    phase_b_compute()

def helper():
    e('''L_not_g1:
         s_cmp_ge_u32 s5, 22
         s_cbranch_scc1 L_ssm
         s_sub_u32 s8, s5, 18
         s_waitcnt lgkmcnt(0)''')
    sync_srds()
    e(f'''s_cmp_eq_u32 s2, {21*8}
          s_cbranch_scc0 L_hp_nc
          s_lshl_b32 s9, s3, 10
          v_lshl_add_u32 v2, v0, 4, s9
          v_mov_b32 v4, 0
          v_mov_b32 v5, 0
          v_mov_b32 v6, 0
          v_mov_b32 v7, 0
          s_movk_i32 s9, 0x2000
          buffer_store_dwordx4 v[4:7], v2, s[{FLG}:{FLG+3}], 0 offen sc1
          buffer_store_dwordx4 v[4:7], v2, s[{FLG}:{FLG+3}], s9 offen sc1
          s_waitcnt vmcnt(0)
          s_barrier
          s_cmp_eq_u32 s3, 0
          s_cbranch_scc0 L_hp_nc
          v_mov_b32 v5, 1
          s_mov_b64 exec, 1
          buffer_store_dword v5, v4, s[{DBG}:{DBG+3}], 0 offen sc1
          s_mov_b64 exec, -1
          L_hp_nc:''')
    if opt('xpf', 0):
        srd(44, P_U, 2048*1280)
        e(f'''s_lshl_b32 s10, s4, 2
              s_add_u32 s10, s10, s8
              s_lshl_b32 s10, s10, 3
              s_add_u32 s10, s10, s3
              s_mul_i32 s10, s10, {80*128}
              v_min_u32 v10, 39, v0
              v_lshlrev_b32 v10, 7, v10
              s_add_u32 s11, s10, {40*128}
              buffer_load_dword v30, v10, s[44:47], s10 offen
              buffer_load_dword v31, v10, s[44:47], s11 offen''')
    srd(56, P_W2, 1728*1280)
    e(f'''v_min_u32 v5, 59, v0
          v_mul_u32_u24 v6, 6554, v5
          v_lshrrev_b32 v6, 16, v6
          v_mul_u32_u24 v7, 10, v6
          v_sub_u32 v7, v5, v7
          v_mul_u32_u24 v5, 192, v7
          v_add_u32 v5, v5, v6
          v_lshlrev_b32 v7, 7, v7
          s_lshl_b32 s10, s8, 3
          s_add_u32 s10, s10, s3
          s_mul_i32 s10, s10, 6
          s_cmp_eq_u32 s3, 0
          s_cbranch_scc0 L_hp_nj''')
    join_load()
    join(True)
    if opt('hwt', 0):
        e('L_hp_x:')
        xcc_load()
        e('''s_waitcnt vmcnt(0)
             v_cmp_ne_u32 vcc, 0, v245
             s_nop 3
             s_cmp_eq_u64 vcc, -1
             s_cbranch_scc1 L_hp_nj
             s_sleep 8
             s_add_u32 s94, s94, 1
             s_cmp_lt_u32 s94, 0x100000
             s_cbranch_scc1 L_hp_x''')
    e('L_hp_nj:\n s_barrier\n L_hp_go:')
    def pf(rb, d):
        e(f'''v_add_u32 v8, {rb}, v5
              v_subrev_u32 v9, 1728, v8
              v_min_u32 v8, v8, v9
              v_mul_u32_u24 v8, 1280, v8
              v_add_u32 v8, v8, v7
              buffer_load_dword v{d}, v8, s[56:59], 0 offen''')
    if opt('wt', 1):
        for n in range(4):
            e(f's_add_u32 s11, s4, {n}\n s_and_b32 s11, s11, 3\n s_mul_i32 s11, s11, 192\n s_add_u32 s11, s11, s10')
            pf('s11', 20+n)
        e('''s_lshl_b32 s11, s8, 3
             s_add_u32 s11, s11, s3
             s_lshl_b32 s11, s11, 3
             s_add_u32 s11, s11, s4
             s_lshl_b32 s11, s11, 2
             s_add_u32 s11, s11, 768
             s_min_u32 s11, s11, 1722
             s_mov_b32 exec_hi, 0xff''')
        pf('s11', 25)
        e('s_mov_b32 exec_hi, -1\n s_barrier')
        stamp(1)
    e('s_waitcnt vmcnt(0)')
    stamp(2)
    e('''s_lshr_b32 s70, s8, 1
         s_lshl_b32 s70, s70, 6
         s_nop 0''')
    tile_ids()
    e('s_mov_b32 s6, 9\n s_mov_b32 s76, 0')
    e('s_cmp_lt_u32 s3, 4\n s_cbranch_scc0 L_hp_l\n s_lshr_b32 s8, s3, 1\n s_and_b32 s9, s3, 1')
    pbc_setup()
    phase_b_compute(2)
    e('L_hp_l:\n s_sub_u32 s9, s3, 4')
    wpre_setup()
    w_preload(10)
    e('s_mov_b32 s74, 0')
    pb_setup(0)
    e('s_branch L_hl_loop')

US = 8704; UO = 4164; RA = 8*8704 + 16; RS = 4592
def ssm():
    U = 228
    e('''L_ssm:
         s_sub_u32 s77, s5, 22
         s_mul_i32 s6, s4, 10
         s_add_u32 s6, s6, s77
         s_lshl_b32 s6, s6, 3
         s_add_u32 s7, s6, s3
         v_lshlrev_b32 v4, 2, v0
         s_lshl_b32 s10, s7, 8
         s_lshl_b32 s11, s7, 1
         s_waitcnt lgkmcnt(0)''')
    srd(48, P_LAR, 163840); srd(64, P_LDT, 1280)
    e('buffer_load_dword v6, v4, s[48:51], s10 offen\n buffer_load_ushort v10, v252, s[64:67], s11 offen')
    srd(52, P_AI, 163840); srd(56, P_CR, 163840); srd(60, P_CI, 163840); srd(44, P_DSK, 1280)
    e('''buffer_load_dword v7, v4, s[52:55], s10 offen
         buffer_load_dword v8, v4, s[56:59], s10 offen
         buffer_load_dword v9, v4, s[60:63], s10 offen
         buffer_load_ushort v11, v252, s[44:47], s11 offen
         s_barrier''')
    srd(72, P_U, 2048*1280)
    sync_srds()
    e(f'''s_mul_i32 s9, s4, 160
          s_and_b32 s9, s9, 0xffffff80
          s_and_b32 s10, s3, 1
          s_lshl_b32 s10, s10, 7
          s_add_u32 s9, s9, s10
          s_lshl_b32 s10, s77, 2
          s_lshr_b32 s11, s3, 1
          s_add_u32 s10, s10, s11
          s_mul_i32 s10, s10, {52*1280}
          s_add_u32 s9, s9, s10
          v_min_u32 v2, 51, v0
          v_mul_u32_u24 v2, 1280, v2
          {'s_mov_b32 s79, s9' if opt('wl', 1) else 'buffer_load_dword v248, v2, s[72:75], s9 offen'}
          v_mul_u32_u24 v3, 5120, v0
          s_mul_i32 s78, s3, {256*1280}
          s_lshl_b32 s9, s6, 1
          s_add_u32 s78, s78, s9
          s_sub_u32 s9, s78, 1280
          v_mov_b32 v5, s9''')
    PF = opt('w1pf', 0)
    if PF:
        srd(80 if not STAMP else 76+0, P_W1, 640*3456) if False else None
        e(f'''s_lshl_b32 s9, s77, 3
              s_add_u32 s9, s9, s3
              s_mul_i32 s9, s9, 58
              s_add_u32 s10, s4, {opt('pf0', 2)}
              s_mul_i32 s10, s10, 1728
              s_add_u32 s9, s9, s10
              v_min_u32 v148, 57, v0
              v_add_u32 v148, s9, v148
              v_add_u32 v149, {80*58}, v148
              v_add_u32 v150, {160*58}, v148''')
        for n in range(3):
            e(f'v_subrev_u32 v151, 17280, v{148+n}\n v_min_u32 v{148+n}, v{148+n}, v151\n v_lshlrev_b32 v{148+n}, 7, v{148+n}')
        e(f'global_load_dword v249, v148, s[{P_W1}:{P_W1+1}]')
    uld = [f'buffer_load_dwordx4 {vr(U+4*r,4)}, v3, s[72:75], s78 offen offset:{1280*r}' for r in range(4)]
    uld[3] += f'\n s_mov_b64 exec, 1\n buffer_load_dwordx4 {vr(U+16,4)}, v5, s[72:75], 0 offen\n s_mov_b64 exec, -1'
    kgen(uld)
    stamp(1)
    e('s_cmp_eq_u32 s3, 0\n s_cbranch_scc0 L_ssm_nj')
    join(False)
    e('L_ssm_nj:\n s_waitcnt lgkmcnt(0)\n s_barrier')
    e(f'''s_mul_i32 s12, s3, {US}
          v_add_u32 v12, s12, v4
          s_mov_b64 exec, 0xff
          ds_write_b32 v12, v252
          ds_write_b32 v12, v252 offset:{UO-4}
          s_mov_b64 exec, -1
          s_lshl_b32 s13, s3, 9
          v_lshl_add_u32 v13, v0, 3, s13
          s_mov_b32 s14, 0x05040100
          s_mov_b32 s15, 0x07060302
          s_waitcnt vmcnt(0)
          s_nop 0''')
    for c in range(4):
        e(f'v_mov_b32_dpp v{U+16+c}, v{U+12+c} wave_shr:1 row_mask:0xf bank_mask:0xf')
    for ch in range(8):
        c = ch >> 1; sel = 14 + (ch & 1); t = 64 + 4*ch
        e(f'''v_perm_b32 v{t}, v{U+4+c}, v{U+c}, s{sel}
              v_perm_b32 v{t+1}, v{U+12+c}, v{U+8+c}, s{sel}
              v_perm_b32 v{t+2}, v{U+c}, v{U+16+c}, s{sel}
              v_perm_b32 v{t+3}, v{U+8+c}, v{U+4+c}, s{sel}
              ds_write_b64 v13, {vr(t,2)} offset:{ch*US+32}
              ds_write_b64 v13, {vr(t+2,2)} offset:{ch*US+UO+28}''')
    e(f'''v_and_b32 v4, 15, v0
          v_lshrrev_b32 v5, 4, v0
          v_add_u32 v6, 1, v4
          v_and_b32 v7, 1, v6
          v_mul_u32_u24 v7, {UO}, v7
          v_lshrrev_b32 v6, 1, v6
          v_lshl_add_u32 v7, v6, 2, v7
          v_lshlrev_b32 v6, 4, v5
          v_sub_u32 v7, v7, v6
          v_add_u32 v7, 48, v7
          v_add_u32 v8, s12, v7
          v_add_u32 v9, 1024, v8
          v_add_u32 v10, 2048, v8
          v_add_u32 v11, 3072, v8
          v_lshlrev_b32 v7, 5, v4
          v_add_u32 v7, v7, v6
          s_mul_i32 s13, s3, {RS}
          s_add_u32 s13, s13, {RA+528}
          v_sub_u32 v12, s13, v7''')
    ACC = 32; F = 64
    for i in range(32): e(f'v_mov_b32 v{ACC+i}, 0')
    srd(48, P_WS, Y_BYTES, WS_Y)
    srd(56, P_W2, 1728*1280)
    e(f'''v_min_u32 v193, 59, v0
          v_mul_u32_u24 v194, 6554, v193
          v_lshrrev_b32 v194, 16, v194
          v_mul_u32_u24 v195, 10, v194
          v_sub_u32 v195, v193, v195
          v_mul_u32_u24 v193, 192, v195
          v_add_u32 v193, v193, v194
          v_lshlrev_b32 v195, 7, v195
          s_lshl_b32 s13, s77, 2
          s_and_b32 s14, s3, 3
          s_add_u32 s13, s13, s14
          s_mul_i32 s13, s13, 6
          s_add_u32 s13, s13, 768
          v_add_u32 v193, s13, v193''')
    for n in range(4):
        e(f'''v_add_u32 v{196+n}, {240*n}, v193
              v_subrev_u32 v194, 1728, v{196+n}
              v_min_u32 v{196+n}, v{196+n}, v194
              v_mul_u32_u24 v{196+n}, 1280, v{196+n}
              v_add_u32 v{196+n}, v{196+n}, v195''')
    e(f'''s_cmp_ge_u32 s3, 4
          s_cselect_b32 s14, {opt('sq', 3)}, {opt('sp', 0)}
          s_waitcnt lgkmcnt(0)
          s_barrier''')
    stamp(2)
    def reads(st):
        b = F + 64*st; r = []
        for m in range(8):
            r.append(f'ds_read_b128 {vr(b+32+4*m,4)}, v12 offset:{(7-m)*512}')
            o = 128*(m & 1)
            r.append(f'ds_read2_b32 {vr(b+4*m,2)}, v{8+m//2} offset0:{o} offset1:{o+1}')
            r.append(f'ds_read2_b32 {vr(b+4*m+2,2)}, v{8+m//2} offset0:{o+2} offset1:{o+3}')
        return r
    adv = [f'v_add_u32 v{8+i}, 64, v{8+i}' for i in range(5)]
    def unit(st, other):
        b = F + 64*st; other = list(other)
        for m in range(8):
            for h in range(m, 8):
                e(f'v_mfma_f32_16x16x32_bf16 {vr(ACC+4*h,4)}, {vr(b+4*m,4)}, {vr(b+32+4*(h-m),4)}, {vr(ACC+4*h,4)}')
                if other: e(other.pop(0))
        e('s_waitcnt lgkmcnt(0)')
    for r in reads(0): e(r)
    e(f'''s_mov_b32 s15, 0
          s_waitcnt lgkmcnt(0)
          L_conv_loop:
          s_cmp_eq_u32 s15, s14
          s_cbranch_scc0 L_conv_np
          s_cmp_ge_u32 s3, 4
          s_cbranch_scc1 L_conv_hi
          {chr(10).join(f'buffer_load_dword v{200+n}, v{196+n}, s[56:59], 0 offen' for n in range(opt('sn', 1)))}
          s_branch L_conv_np
          L_conv_hi:
          {chr(10).join(f'buffer_load_dword v{200+n}, v{196+n}, s[56:59], 0 offen' for n in range(opt('sn', 1), 4))}
          L_conv_np:''')
    unit(0, adv + reads(1))
    unit(1, adv + reads(0))
    e(f's_add_u32 s15, s15, 1\n s_cmp_lt_u32 s15, {opt("cit", 4)}\n s_cbranch_scc1 L_conv_loop')
    stamp(3)
    e(f'''v_lshlrev_b32 v14, 5, v4
          v_lshrrev_b32 v6, 1, v5
          v_lshl_add_u32 v14, v6, 4, v14
          v_and_b32 v6, 1, v5
          v_lshl_add_u32 v14, v6, 9, v14
          s_lshl_b32 s11, s7, 12
          s_nop 0''')
    for hp in range(4):
        a = ACC + 8*hp; o = F + 4*hp
        e(f'''v_cvt_pk_bf16_f32 v{o}, v{a}, v{a+1}
              v_cvt_pk_bf16_f32 v{o+1}, v{a+2}, v{a+3}
              v_cvt_pk_bf16_f32 v{o+2}, v{a+4}, v{a+5}
              v_cvt_pk_bf16_f32 v{o+3}, v{a+6}, v{a+7}
              s_nop 1
              v_permlane16_swap_b32 v{o}, v{o+2}
              v_permlane16_swap_b32 v{o+1}, v{o+3}
              buffer_store_dwordx4 {vr(o,4)}, v14, s[48:51], s11 offen offset:{1024*hp} sc1''')
    e('s_cmp_lt_u32 s3, 4\n s_cbranch_scc0 L_ssm_fin')
    gate()
    e('L_ssm_fin:')
    e(f'''s_lshr_b32 s12, s6, 6
          s_lshl_b32 s12, s12, 8
          s_bfe_u32 s13, s6, 0x30003
          s_lshl_b32 s13, s13, 2
          s_add_u32 s12, s12, s13
          s_add_u32 s12, s12, {F_Y}
          s_waitcnt vmcnt(0)
          s_barrier
          s_cmp_eq_u32 s3, 0
          s_cbranch_scc0 L_ssm_end''')
    flag('s12', 1)
    e('L_ssm_end:')
    finish()

def gate():
    srd(52, P_GW, 1280); srd(60, P_WS, G_BYTES, WS_G)
    e(f'''s_lshl_b32 s9, s77, 2
          s_add_u32 s9, s9, s3
          s_lshl_b32 s10, s4, 5
          s_add_u32 s10, s10, s9
          s_lshl_b32 s10, s10, 3
          v_lshlrev_b32 v3, 4, v4
          v_mul_u32_u24 v6, 1280, v5
          v_add_u32 v6, v6, v3
          s_mul_i32 s11, s10, 1280
          s_add_u32 s12, s11, 5120
          s_cmp_lt_u32 s77, 8
          s_cbranch_scc0 L_ssm_fin''')
    for n in range(5): e(f'buffer_load_dwordx4 {vr(140+4*n,4)}, v3, s[52:55], 0 offen offset:{256*n}')
    for p in range(2):
        for n in range(5): e(f'buffer_load_dwordx4 {vr(100+20*p+4*n,4)}, v6, s[72:75], s{11+p} offen offset:{256*n}')
    e('''s_mov_b32 s13, 0xffff0000
         v_lshlrev_b32 v2, 2, v5
         s_lshl_b32 s10, s10, 2
         s_waitcnt vmcnt(10)''')
    for n in range(20): e(f'v_lshlrev_b32 v{160+2*n}, 16, v{140+n}\n v_and_b32 v{161+2*n}, s13, v{140+n}')
    e('s_mov_b32 s14, 0\n s_waitcnt vmcnt(0)')
    e('L_gate:\n v_mov_b32 v8, 0\n v_mov_b32 v9, 0')
    for n in range(20):
        e(f'''v_lshlrev_b32 v10, 16, v{100+n}
              v_and_b32 v11, s13, v{100+n}
              v_mul_f32 v10, v10, v{160+2*n}
              v_mul_f32 v11, v11, v{161+2*n}
              v_cvt_pk_bf16_f32 v10, v10, v11
              v_mov_b32 v{100+n}, v{120+n}
              v_and_b32 v11, s13, v10
              v_lshlrev_b32 v10, 16, v10
              v_add_f32 v9, v9, v11
              v_add_f32 v8, v8, v10''')
    e('v_add_f32 v8, v8, v9\n s_nop 1')
    for sh in (8, 4, 2, 1):
        e(f'v_add_f32_dpp v8, v8, v8 row_ror:{sh} row_mask:0xf bank_mask:0xf\n s_nop 1')
    e('''v_cvt_pk_bf16_f32 v8, v8, v8
         v_lshlrev_b32 v8, 16, v8
         v_mul_f32 v8, 0xbfb8aa3b, v8
         v_exp_f32 v8, v8
         s_nop 0
         v_add_f32 v8, 1.0, v8
         v_rcp_f32 v8, v8
         s_nop 0
         v_cvt_pk_bf16_f32 v8, v8, v8
         v_lshlrev_b32 v12, 16, v8
         buffer_store_dword v12, v2, s[60:63], s10 offen sc1
         s_add_u32 s10, s10, 16
         s_add_u32 s14, s14, 1
         s_cmp_lt_u32 s14, 2
         s_cbranch_scc1 L_gate''')

def kgen(uld):
    L2E = 1.4426950408889634
    l2e_hi = struct.unpack('<f', struct.pack('<f', L2E))[0]
    l2e_lo = L2E - l2e_hi
    e(f'''s_mul_i32 s12, s3, {RS}
          s_add_u32 s12, s12, {RA}
          v_lshl_add_u32 v13, v0, 3, s12
          v_mov_b32 v14, 0
          v_mov_b32 v15, 0
          s_mov_b32 exec_hi, 0x0fffffff
          ds_write_b64 v13, v[14:15] offset:4096
          s_mov_b32 exec_hi, -1
          s_mul_i32 s13, s3, {US}
          s_mov_b32 m0, s13
          v_and_b32 v18, 15, v0
          v_lshrrev_b32 v19, 4, v0
          v_mul_u32_u24 v17, 544, v18
          v_lshl_add_u32 v17, v19, 4, v17
          v_add_u32 v17, s13, v17
          v_mov_b32 v16, 0x3c00
          ds_write_addtid_b32 v16
          ds_write_addtid_b32 v16 offset:256
          v_lshlrev_b32 v12, 4, v18
          v_sub_u32 v12, s12, v12
          v_lshlrev_b32 v27, 9, v19
          v_sub_u32 v24, v12, v27
          v_add_u32 v24, {2040-256}, v24
          v_lshlrev_b32 v27, 8, v19
          v_sub_u32 v25, v12, v27
          v_add_u32 v25, 3060, v25
          v_lshrrev_b32 v27, 1, v19
          v_lshlrev_b32 v27, 8, v27
          v_sub_u32 v26, v12, v27
          v_and_b32 v27, 1, v19
          v_lshlrev_b32 v27, 3, v27
          v_sub_u32 v26, v26, v27
          s_mov_b32 s68, {hex(f2u(l2e_hi))}
          s_mov_b32 s69, {hex(f2u(l2e_lo))}
          s_mov_b32 s70, {hex(f2u(0.6931471805599453))}
          s_mov_b32 s71, 0xffff0000
          s_waitcnt vmcnt({(4 if opt('wl', 1) else 5) + opt('w1pf', 0)})''')
    if opt('w1pf', 0): e(f'global_load_dword v249, v149, s[{P_W1}:{P_W1+1}]')
    elif opt('wl', 1): e('buffer_load_dword v248, v2, s[72:75], s79 offen')
    stamp(5)
    T = 28
    e('v_lshlrev_b32 v10, 16, v10\n v_lshlrev_b32 v20, 16, v6\n v_and_b32 v21, s71, v6')
    xs = [(10, T, T+1), (20, T+2, T+3), (21, T+4, T+5)]
    for fmt in ('v_mul_f32 v{t}, s68, v{x}', 'v_fma_f32 v{lo}, v{x}, s68, -v{t}', 'v_fma_f32 v{lo}, v{x}, s69, v{lo}',
                'v_exp_f32 v{t}, v{t}', 'v_mul_f32 v{lo}, s70, v{lo}', 'v_fma_f32 v{x}, v{t}, v{lo}, v{t}'):
        for x, t, lo in xs: e(fmt.format(x=x, t=t, lo=lo))
    e('''v_cvt_pk_bf16_f32 v10, v10, v10
         v_cvt_pk_bf16_f32 v20, v20, v21
         v_lshlrev_b32 v10, 16, v10
         v_and_b32 v21, s71, v20
         v_lshlrev_b32 v20, 16, v20
         v_mul_f32 v20, v20, v10
         v_mul_f32 v21, v21, v10
         v_mul_f32 v20, 0xbfb8aa3b, v20
         v_mul_f32 v21, 0xbfb8aa3b, v21
         s_waitcnt vmcnt(%d)
         v_lshlrev_b32 v22, 16, v7
         v_and_b32 v23, s71, v7
         v_mul_f32 v22, v22, v10
         v_mul_f32 v23, v23, v10
         v_mul_f32 v22, 0.15915494, v22
         v_mul_f32 v23, 0.15915494, v23''' % (1 + opt('w1pf', 0)))
    if opt('w1pf', 0): e(f'global_load_dword v249, v150, s[{P_W1}:{P_W1+1}]')
    PA, PB, QA, QB = 44, 48, 52, 56
    MH = 60; X = 84; XK = 100; XL = 116; XM = 132; YY = 100; TT = 28
    BF = 152; AF = 184; D = 216
    ce = [(PA, 20, 22, 1, T), (PA+2, 21, 23, 1, T+4), (QA, 20, 22, 128.0, T+8), (QA+2, 21, 23, 128.0, T+12)]
    ce2 = []
    for dst, a, p, sc, t in ce:
        if sc != 1:
            e(f'v_mul_f32 v{t}, {hex(f2u(sc))}, v{a}\n v_mul_f32 v{t+1}, {hex(f2u(sc))}, v{p}')
            a, p = t, t+1
        ce2.append((dst, a, p, t))
    for fmt in ('v_rndne_f32 v{t2}, v{p}', 'v_exp_f32 v{t3}, v{a}', 'v_sub_f32 v{t2}, v{p}, v{t2}', 'v_cos_f32 v{d0}, v{t2}',
                'v_sin_f32 v{d1}, v{t2}', 'v_mul_f32 v{d0}, v{d0}, v{t3}', 'v_mul_f32 v{d1}, v{d1}, v{t3}'):
        for dst, a, p, t in ce2: e(fmt.format(t2=t+2, t3=t+3, p=p, a=a, d0=dst, d1=dst+1))
    norm = f'''v_and_b32 v28, 0x7fff7fff, v8
          v_and_b32 v29, 0x7fff7fff, v9
          v_pk_max_u16 v28, v28, v29
          v_lshlrev_b32 v29, 16, v28
          v_max_u32 v28, v28, v29
          NOP
          v_max_u32_dpp v28, v28, v28 row_ror:8 row_mask:0xf bank_mask:0xf
          NOP
          v_max_u32_dpp v28, v28, v28 row_ror:4 row_mask:0xf bank_mask:0xf
          NOP
          v_max_u32_dpp v28, v28, v28 row_ror:2 row_mask:0xf bank_mask:0xf
          NOP
          v_max_u32_dpp v28, v28, v28 row_ror:1 row_mask:0xf bank_mask:0xf
          NOP
          v_readlane_b32 s90, v28, 0
          v_readlane_b32 s91, v28, 16
          v_readlane_b32 s92, v28, 32
          v_readlane_b32 s93, v28, 48
          NOP
          s_max_u32 s90, s90, s91
          s_max_u32 s92, s92, s93
          s_max_u32 s90, s90, s92
          s_lshr_b32 s90, s90, 23
          s_max_u32 s90, s90, 1
          s_min_u32 s90, s90, 252
          s_sub_u32 s91, 254, s90
          s_lshl_b32 s91, s91, 23
          s_add_u32 s90, s90, 1
          s_lshl_b32 s90, s90, 23
          v_lshlrev_b32 v28, 16, v8
          v_lshlrev_b32 v29, 16, v9
          v_and_b32 v30, s71, v8
          v_and_b32 v31, s71, v9
          v_mul_f32 v28, s91, v28
          v_mul_f32 v29, s91, v29
          v_mul_f32 v30, s91, v30
          v_mul_f32 v31, s91, v31
          v_mul_f32 v10, s90, v10
          v_cvt_pk_f16_f32 v{X}, v28, -v29
          v_cvt_pk_f16_f32 v{X+1}, v30, -v31'''.split('NOP')
    def sq(dst, x):
        for k in range(2):
            e(f'v_pk_mul_f32 {vr(dst+2*k,2)}, {vr(x+2*k,2)}, {vr(x+2*k,2)} op_sel:[0,0] op_sel_hi:[1,0]')
        for k in range(2):
            e(f'v_pk_fma_f32 {vr(dst+2*k,2)}, {vr(x+2*k,2)}, {vr(x+2*k,2)}, {vr(dst+2*k,2)} op_sel:[1,1,0] op_sel_hi:[0,1,1] neg_lo:[0,1,0]')
    def cv(lg, x):
        e(f'v_cvt_pk_f16_f32 v{MH+2*lg}, v{x}, v{x+1}\n v_cvt_pk_f16_f32 v{MH+2*lg+1}, v{x+2}, v{x+3}')
    def M(k): return MH + 2*(k.bit_length()-1)
    def row(r, x):
        e(f'ds_write_addtid_b32 v{x} offset:{544*r}\n ds_write_addtid_b32 v{x+1} offset:{544*r+256}')
    p, pn, q, qn = PA, PB, QA, QB
    for i in range(7):
        e(norm[i])
        cv(i, p)
        if i >= 3: row(1 << (i-3), MH+2*i)
        if i < 5: cv(7+i, q)
        if i < 6: sq(pn, p); p, pn = pn, p
        if i < 4: sq(qn, q); q, qn = qn, q
    stamp(6)
    if opt('w1pf', 0): e('buffer_load_dword v248, v2, s[72:75], s79 offen')
    def mulrows(items, conj, wait_first=False):
        ng = 'neg_hi:[0,1,0]' if conj else 'neg_lo:[0,1,0]'
        for i in range(0, len(items), 2):
            grp = items[i:i+2]
            for r, dst, x, m in grp:
                for k in range(2): e(f'v_pk_mul_f16 v{dst+k}, v{x+k}, v{m+k} op_sel:[0,0] op_sel_hi:[1,0]')
            for r, dst, x, m in grp:
                for k in range(2): e(f'v_pk_fma_f16 v{dst+k}, v{x+k}, v{m+k}, v{dst+k} op_sel:[1,1,0] op_sel_hi:[0,1,1] {ng}')
            if wait_first and i == 0: e('s_waitcnt lgkmcnt(0)')
            for r, dst, x, m in grp: row(r, dst)
    def rdfr(dst):
        for s_ in range(8): e(f'ds_read_b128 {vr(dst+4*s_,4)}, v17 offset:{64*s_}')
    def mm(d):
        for s_ in range(8):
            c = '0' if s_ == 0 else vr(d,4)
            e(f'v_mfma_f32_16x16x32_f16 {vr(d,4)}, {vr(AF+4*s_,4)}, {vr(BF+4*s_,4)}, {c}')
    Y = {1: M(8), 2: M(16), 4: M(32), 3: YY, 5: YY+2, 6: YY+4, 7: YY+6}
    mulrows([(3, Y[3], Y[1], M(16)), (5, Y[5], Y[1], M(32)), (6, Y[6], Y[2], M(32)), (7, Y[7], Y[3], M(32))], False)
    mulrows([(8+j, TT+2*j, Y[j], M(64)) for j in range(1, 8)], False)
    rdfr(BF)
    e(uld[0])
    mulrows([(1, X+2, X, M(1)), (2, X+4, X, M(2)), (3, X+6, X+2, M(2)), (4, X+8, X, M(4)),
             (5, X+10, X+2, M(4)), (6, X+12, X+4, M(4)), (7, X+14, X+6, M(4)), (8, XK, X, M(128))], True, True)
    row(0, X)
    e(uld[1])
    mulrows([(8+a, XK+2*a, X+2*a, M(128)) for a in range(1, 8)], True)
    rdfr(AF)
    e(uld[2])
    src = [X, X+4, X+8, X+12, XK, XK+4, XK+8, XK+12]
    it = [(n, XL+2*n, src[n], M(256)) for n in range(8)] + [(8, TT, X, M(2048))]
    mulrows(it[:2], True, True)
    mm(D)
    mulrows(it[2:], True)
    rdfr(AF)
    e(uld[3])
    e('s_cmp_eq_u32 s3, 0\n s_cbranch_scc0 L_kg_nj')
    join_load()
    e('L_kg_nj:')
    s2 = [X, X+8, XK, XK+8, XL, XL+4, XL+8, XL+12]
    it = [(4*(n >> 1) + (n & 1), XM+2*n, s2[n], M(512)) for n in range(8)]
    mulrows(it[:2], True, True)
    mm(D+4)
    mulrows(it[2:], True)
    s3 = [X, XK, XL, XL+8, XM, XM+4, XM+8, XM+12]
    mulrows([(4*(i >> 1) + 2 + (i & 1), TT+2*i, s3[i], M(1024)) for i in range(8)], True)
    rdfr(AF)
    B1 = D+4; A = D+8; C = 60
    e(f'''v_mul_f32 v{D}, v{D}, v10
          v_lshlrev_b32 v11, 16, v11
          s_mov_b64 exec, 1
          v_add_f32 v{D}, v{D}, v11
          s_mov_b64 exec, -1''')
    for i in range(1, 8): e(f'v_mul_f32 v{D+i}, v{D+i}, v10')
    e('s_waitcnt lgkmcnt(0)')
    mm(D+8)
    e(f'''v_cvt_pk_bf16_f32 v{C}, v{B1+3}, v{B1+3}
          v_cvt_pk_bf16_f32 v{C+1}, v{B1+2}, v{B1+2}
          v_cvt_pk_bf16_f32 v{C+2}, v{B1+2}, v{B1+1}
          v_cvt_pk_bf16_f32 v{C+3}, v{B1}, v{B1}
          v_cvt_pk_bf16_f32 v{C+4}, v{D+3}, v{D+2}
          v_cvt_pk_bf16_f32 v{C+5}, v{D+1}, v{D}
          s_nop 1
          v_mul_f32 v{A+2}, v{A+2}, v10
          v_mul_f32 v{A+3}, v{A+3}, v10
          v_mul_f32 v{A}, v{A}, v10
          v_mul_f32 v{A+1}, v{A+1}, v10
          v_mov_b32_dpp v{C+6}, v{A+2} quad_perm:[0,0,2,2] row_mask:0xf bank_mask:0xf
          v_mov_b32_dpp v{C+7}, v{A+3} quad_perm:[0,0,2,2] row_mask:0xf bank_mask:0xf
          v_cvt_pk_bf16_f32 v{C+8}, v{A+2}, v{A+2}
          v_cvt_pk_bf16_f32 v{C+9}, v{A+2}, v{C+6}
          v_cvt_pk_bf16_f32 v{C+10}, v{A+3}, v{A+3}
          v_cvt_pk_bf16_f32 v{C+11}, v{A+3}, v{C+7}
          ds_write2_b32 v24, v{C+8}, v{C+8} offset0:64 offset1:65
          ds_write2_b32 v24, v{C+8}, v{C+9} offset0:66 offset1:67
          ds_write2_b32 v24, v{C+10}, v{C+10} offset0:0 offset1:1
          ds_write2_b32 v24, v{C+10}, v{C+11} offset0:2 offset1:3
          v_cvt_pk_bf16_f32 v{C+12}, v{A+1}, v{A+1}
          v_cvt_pk_bf16_f32 v{C+13}, v{A+1}, v{A}
          v_cvt_pk_bf16_f32 v{C+14}, v{A}, v{A}
          ds_write2_b32 v25, v{C+12}, v{C+13} offset0:0 offset1:1
          ds_write2_b32 v25, v{C+14}, v{C+14} offset0:2 offset1:3
          s_mov_b32 exec_lo, 0
          s_mov_b32 exec_hi, 1
          ds_write2_b32 v12, v{C+3}, v{C+3} offset0:0 offset1:1
          s_mov_b32 exec_lo, -1
          s_mov_b32 exec_hi, 0
          ds_write_b16 v25, v{C} offset:510
          ds_write2_b32 v25, v{C+1}, v{C+2} offset0:128 offset1:129
          ds_write_b32 v25, v{C+3} offset:520
          ds_write_b16 v25, v{C+3} offset:524
          s_mov_b64 exec, -1
          ds_write_b64 v26, {vr(C+4,2)} offset:4088''')

def pb_setup(first):
    e(f'''v_lshlrev_b32 v50, 4, v0
          v_add_u32 v51, {54*1024 - 2048}, v50
          v_lshrrev_b32 v2, 4, v0
          v_lshlrev_b32 v52, 12, v2
          v_and_b32 v2, 15, v0
          v_lshl_add_u32 v52, v2, 4, v52
          v_lshlrev_b32 v53, 5, v2
          v_min_u32 v248, 35, v0
          v_lshl_add_u32 v248, s74, 2, v248
          v_subrev_u32 v3, 36, v248
          v_min_u32 v248, v248, v3
          s_lshl_b32 s91, s7, 8
          v_lshl_add_u32 v248, v248, 2, s91
          s_lshl_b32 s91, s6, 8
          s_add_u32 s91, s91, {F_Y}
          v_and_b32 v249, 7, v0
          v_lshl_add_u32 v249, v249, 2, s91
          s_mul_i32 s91, s4, 10
          s_and_b32 s92, s7, 1
          s_lshl_b32 s92, s92, 2
          s_add_u32 s91, s91, s92
          v_and_b32 v2, 3, v0
          v_add_u32 v2, s91, v2
          v_lshrrev_b32 v3, 3, v2
          v_lshlrev_b32 v3, 8, v3
          v_and_b32 v2, 7, v2
          v_lshl_add_u32 v3, v2, 2, v3
          v_add_u32 v3, {F_Y}, v3
          v_cmp_gt_u32 vcc, 32, v0
          s_mov_b32 s69, {first}
          s_mov_b32 s72, {first}
          s_mov_b32 s75, 0
          v_cndmask_b32 v249, v3, v249, vcc
          v_readlane_b32 s60, v{T_HG}, {first}
          v_readlane_b32 s61, v{T_HL}, {first}
          s_nop 3''')
NH = [0]
def h_issue(check):
    n = NH[0]; NH[0] += 1
    if check:
        e(f'''s_cmp_lt_u32 s69, s75
              s_cbranch_scc1 L_hk{n}
              s_getpc_b64 s[78:79]
              s_branch L_hpoll
              L_hk{n}:''')
    e(f'''s_mov_b32 m0, s61
          s_add_u32 s69, s69, 1
          buffer_load_dwordx4 v50, s[52:55], s60 offen sc1 lds
          buffer_load_dwordx4 v50, s[52:55], s60 offen offset:1024 sc1 lds
          buffer_load_dwordx4 v51, s[52:55], s60 offen offset:2048 sc1 lds
          buffer_load_dwordx4 v51, s[52:55], s60 offen offset:3072 sc1 lds
          v_readlane_b32 s60, v{T_HG}, s69
          v_readlane_b32 s61, v{T_HL}, s69''')

def poll_eval():
    e(f'''v_cmp_eq_u32 vcc, 1, v247
          s_nop 3
          s_ff0_i32_b64 s15, vcc
          s_lshr_b32 s15, s15, 2
          s_min_u32 s15, s15, 20
          s_mul_i32 s15, s15, 3
          s_add_u32 s75, s15, s72''')

def phase_b():
    e(f'''L_hpoll:
          buffer_load_dword v247, v248, s[{FLG}:{FLG+3}], 0 offen sc1
          s_waitcnt vmcnt(0)
          v_cmp_eq_u32 vcc, 1, v247
          s_nop 3
          s_ff0_i32_b64 s75, vcc
          s_lshr_b32 s75, s75, 2
          s_min_u32 s75, s75, 20
          s_mul_i32 s75, s75, 3
          s_add_u32 s75, s75, s72
          s_cmp_lt_u32 s69, s75
          s_cbranch_scc1 L_hpoll_ok
          s_sleep 1
          s_add_u32 s94, s94, 1
          s_cmp_lt_u32 s94, 0x100000
          s_cbranch_scc1 L_hpoll
          L_hpoll_ok:''')
    if STAMP: e('s_cmp_gt_u32 s69, 3\n s_cbranch_scc1 L_hps')
    stamp(12)
    e('''L_hps:
         s_add_u32 s78, s78, 4
         s_addc_u32 s79, s79, 0
         s_setpc_b64 s[78:79]
         L_g2l_chk:
         s_getpc_b64 s[78:79]
         s_branch L_hpoll
         s_branch L_g2l_h''')
    e(f'L_g2l_pre:\n buffer_load_dword v247, v248, s[{FLG}:{FLG+3}], 0 offen sc1')
    for i in (4, 5):
        w_issue(); h_issue(False)
        stamp_e(i+1, 33)
        e(f's_waitcnt vmcnt({13 if i == 4 else 12})\n s_barrier')
        stamp_b()
    poll_eval()
    e('L_g2l_loop:')
    w_issue()
    e('s_cmp_lt_u32 s69, s75\n s_cbranch_scc0 L_g2l_chk\n L_g2l_h:')
    h_issue(False)
    stamp_e('s69', 33)
    e('s_cmp_lt_u32 s69, 21\n s_waitcnt vmcnt(12)\n s_barrier')
    stamp_b()
    e('s_cbranch_scc1 L_g2l_loop')
    def bar(n, slot):
        stamp_e(slot, 33); e(f's_waitcnt vmcnt({n})\n s_barrier\n s_nop 0'); stamp_b()
    e(f'buffer_load_dword v250, v249, s[{FLG}:{FLG+3}], 0 offen sc1')
    h_issue(True); bar(11, 22)
    h_issue(False)
    aset = f'''s_lshl_b32 s15, s6, 2
          s_add_u32 s15, s15, s9
          s_lshl_b32 s15, s15, 16
          s_lshl_b32 s10, s7, 7
          s_add_u32 s10, s10, s70
          s_lshl_b32 s11, s10, 1
          s_add_u32 s11, s11, s15
          s_add_u32 s11, s11, {WS_Y}
          s_lshl_b32 s10, s10, 2
          s_add_u32 s10, s10, {WS_G}
          s_mov_b32 s64, 0xffff0000
          s_lshl_b32 s15, s9, 12
          s_add_u32 s15, s15, {AB}
          v_lshrrev_b32 v54, 4, v0
          v_lshlrev_b32 v54, 5, v54
          v_xor_b32 v54, v54, v50
          v_add_u32 v54, s15, v54
          v_xor_b32 v60, 128, v54
          v_lshrrev_b32 v55, 1, v53'''
    e(aset)
    bar(8, 23)
    h_issue(False)
    e(f'''L_g2l_yc:
          v_cmp_eq_u32 vcc, 1, v250
          s_nop 3
          s_cmp_eq_u64 vcc, -1
          s_cbranch_scc0 L_g2l_yw
          L_g2l_yok:
          buffer_load_dwordx4 v[36:39], v53, s[52:55], s10 offen sc1
          buffer_load_dwordx4 v[40:43], v53, s[52:55], s10 offen offset:16 sc1''')
    for n in range(4):
        e(f'buffer_load_dwordx4 {vr(20+4*n,4)}, v52, s[52:55], s11 offen sc1')
        if n < 3: e(f's_add_u32 s11, s11, {4*4096}')
    e('s_cmp_eq_u32 s76, 0\n s_cbranch_scc1 L_hl_loop')
    bar(14, 24)
    h_issue(True); bar(14, 25)
    h_issue(False); bar(14, 26)
    h_issue(False)
    def ga(n):
        for q in range(4):
            a_ = 20 + 4*n + q
            e(f'''v_lshlrev_b32 v44, 16, v{a_}
                  v_and_b32 v45, s64, v{a_}
                  v_mul_f32 v44, v44, v{36+2*q}
                  v_mul_f32 v45, v45, v{37+2*q}
                  v_cvt_pk_bf16_f32 v{a_}, v44, v45''')
        e(f'ds_write_b128 v{60 if n & 1 else 54}, {vr(20+4*n,4)} offset:{1024*n}')
    e(f's_setprio {opt("tp", 2)}')
    bar(8, 27)
    ga(0)
    bar(4, 28)
    ga(1)
    bar(0, 29)
    e('L_g2l_g2:')
    ga(2); ga(3)
    for q in range(4):
        e(f'''v_sub_f32 v44, 1.0, v{36+2*q}
              v_sub_f32 v45, 1.0, v{37+2*q}
              v_cvt_pk_bf16_f32 v{46+q}, v44, v45''')
    e(f'ds_write_b128 v55, v[46:49] offset:{OM}')
    stamp_e(30, 33)
    e('s_waitcnt lgkmcnt(0)\n s_barrier')
    finish()
    e(f'''L_g2l_yw:
          s_add_u32 s94, s94, 1
          s_cmp_lt_u32 s94, 0x100000
          s_cbranch_scc0 L_g2l_yok
          s_sleep {opt('ys', 12)}
          buffer_load_dword v250, v249, s[{FLG}:{FLG+3}], 0 offen sc1
          s_waitcnt vmcnt(0)
          s_branch L_g2l_yc''')
    e('''L_hl_loop:
         s_sub_u32 s15, s69, 4
         s_cmp_lt_u32 s15, 17
         s_cbranch_scc0 L_hl_nw''')
    w_issue()
    e(f'''L_hl_nw:
          s_cmp_lt_u32 s69, s75
          s_cbranch_scc1 L_hl_h
          s_getpc_b64 s[78:79]
          s_branch L_hpoll
          L_hl_h:
          s_mov_b32 m0, s61
          s_add_u32 s69, s69, 1
          buffer_load_dwordx4 v50, s[52:55], s60 offen sc1 lds
          buffer_load_dwordx4 v50, s[52:55], s60 offen offset:1024 sc1 lds
          v_readlane_b32 s60, v{T_HG}, s69
          v_readlane_b32 s61, v{T_HL}, s69
          s_cmp_lt_u32 s69, 3
          s_cbranch_scc1 L_hl_loop
          s_sub_u32 s15, s69, 6
          s_cmp_lt_u32 s15, 16
          s_cbranch_scc1 L_hl_w8
          s_waitcnt vmcnt(4)
          L_hl_w8:
          s_waitcnt vmcnt(8)
          s_barrier
          s_cmp_eq_u32 s69, 22
          s_cbranch_scc1 L_hl_y
          s_cmp_eq_u32 s69, 24
          s_cbranch_scc1 L_g2l_yc
          s_cmp_lt_u32 s69, 27
          s_cbranch_scc1 L_hl_loop
          s_waitcnt vmcnt(2)
          s_barrier
          s_waitcnt vmcnt(0)''')
    ga(0)
    e('s_barrier')
    ga(1)
    e(f's_branch L_g2l_g2\n L_hl_y:\n buffer_load_dword v250, v249, s[{FLG}:{FLG+3}], 0 offen sc1')
    e(aset)
    e('s_branch L_hl_loop')

PACC = 192
R_H, R_W0, R_W1, R_A, R_O, R_OM = 224, 225, 226, 227, 228, 229
def pbc_setup():
    srd(60, P_OUT, 2048*1280)
    e(f'''v_and_b32 v230, 15, v0
          v_lshrrev_b32 v231, 4, v0
          s_lshl_b32 s58, s8, s76
          s_lshl_b32 s56, s58, 12
          v_lshl_add_u32 v{R_H}, v0, 4, s56
          v_lshrrev_b32 v232, 2, v0
          v_lshlrev_b32 v233, 7, v232
          v_and_b32 v232, 3, v0
          v_lshl_add_u32 v233, v232, 3, v233
          v_add_u32 v233, {WB}, v233
          v_bfe_u32 v232, v0, 3, 2
          s_lshl_b32 s56, s9, 1
          v_xor_b32 v232, s56, v232
          v_lshl_add_u32 v{R_W0}, v232, 5, v233
          v_xor_b32 v232, 1, v232
          v_lshl_add_u32 v{R_W1}, v232, 5, v233
          v_lshrrev_b32 v232, 2, v0
          v_lshlrev_b32 v{R_A}, 8, v232
          v_and_b32 v232, 3, v0
          v_lshl_add_u32 v{R_A}, v232, 3, v{R_A}
          s_lshl_b32 s56, s9, 13
          s_lshl_b32 s57, s58, 6
          s_add_u32 s56, s56, s57
          s_add_u32 s56, s56, {AB}
          v_add_u32 v{R_A}, s56, v{R_A}
          v_bfe_u32 v232, v0, 2, 3
          v_lshlrev_b32 v232, 5, v232
          v_xor_b32 v{R_A}, v{R_A}, v232
          v_lshl_add_u32 v{R_OM}, v230, 1, s57
          v_mul_u32_u24 v{R_O}, 1280, v230
          v_and_b32 v232, 1, v231
          v_lshl_add_u32 v{R_O}, v232, 5, v{R_O}
          v_lshrrev_b32 v232, 1, v231
          v_lshl_add_u32 v{R_O}, v232, 4, v{R_O}
          s_lshl_b32 s56, s7, 2
          s_add_u32 s56, s56, s58
          s_mul_i32 s65, s56, {32*1280}
          s_lshl_b32 s56, s6, 7
          s_add_u32 s65, s65, s56
          s_lshl_b32 s56, s9, 6
          s_add_u32 s65, s65, s56
          s_mul_i32 s56, s70, 1280
          s_add_u32 s65, s65, s56
          s_mov_b32 s64, 0xffff0000''')
    for i in range(32): e(f'v_mov_b32 v{PACC+i}, 0')
    for i in range(4): e(f'v_mov_b32 v{234+i}, 0')

def phase_b_compute(NT=4):
    ACC = PACC; FR = 16; GA = 112; G = 234; AT = 144; O = 160; T = 176; GL = 230
    e(f's_mov_b32 s12, {H0}\n s_mov_b32 s13, {6*8192}\n s_mov_b32 s15, 0')
    def reads(st):
        r = []
        for ks in range(2):
            b = FR + 48*st + 24*ks
            for j in range(2):
                if NT == 2: r.append(f'ds_read_b128 {vr(b+8+4*j,4)}, v6 offset:{2048*j+1024*ks}')
                else: r.append(f'ds_read_b128 {vr(b+8+8*j,4)}, v6 offset:{4096*j+1024*ks}')
                for half in range(2):
                    r.append(f'ds_read_b64_tr_b16 {vr(b+4*j+2*half,2)}, v{7+j} offset:{4096*ks+2048*half}')
                if NT == 4: r.append(f'ds_read_b128 {vr(b+12+8*j,4)}, v6 offset:{4096*j+2048+1024*ks}')
        return r
    def mfmas(st):
        return [f'v_mfma_f32_16x16x32_bf16 {vr(ACC+8*ti+4*j,4)}, {vr(FR+48*st+24*ks+4*j,4)}, {vr(FR+48*st+24*ks+8+4*ti,4)}, {vr(ACC+8*ti+4*j,4)}'
                for ks in range(2) for ti in range(NT) for j in range(2)]
    upd = ['s_add_u32 s12, s12, 16384', 's_cmp_eq_u32 s12, 163840', 's_cselect_b32 s12, 0, s12', 's_cmp_eq_u32 s12, 16384',
           f's_cselect_b32 s12, {H0}, s12', 's_add_u32 s13, s13, 8192', f's_cmp_ge_u32 s13, {NWS*8192}', 's_cselect_b32 s13, 0, s13',
           f'v_add_u32 v6, s12, v{R_H}', f'v_add_u32 v7, s13, v{R_W0}', f'v_add_u32 v8, s13, v{R_W1}']
    def step(st, mm):
        rd = reads(st)
        e('s_barrier')
        per = [int(c) for c in (OPT.get('sch', '222211111111') if NT == 4 else '3333')]
        up = list(upd)
        for i, m in enumerate(mm):
            e(m)
            if i < len(per):
                for _ in range(per[i]): e(rd.pop(0))
            else:
                for _ in range(3):
                    if up: e(up.pop(0))
        for r in rd + up: e(r)
        if mm: e('s_waitcnt lgkmcnt(0)')
    for x in upd[-3:]: e(x)
    e('s_waitcnt lgkmcnt(0)')
    step(0, [])
    if NT == 4:
        e('s_waitcnt vmcnt(0)')
        stamp(2)
        xcc_check()
        e('s_cmp_eq_u32 s95, 2\n s_cbranch_scc0 L_pbc_sf\n L_pbc_ff:')
        flag('s89', 1, '')
        e('L_pbc_go:')
    e(f's_waitcnt lgkmcnt(0)\n s_nop 1\n L_g2c_loop{NT}:')
    step(1, mfmas(0))
    step(0, mfmas(1))
    e(f's_add_u32 s15, s15, 1\n s_cmp_lt_u32 s15, 13\n s_cbranch_scc1 L_g2c_loop{NT}')
    mm = mfmas(0)
    order = [mm[2*NT*ks + 2*ti + j] for ti in range(NT) for ks in range(2) for j in range(2)]
    for m in order: e(m)
    stamp(34)
    for ti in range(NT): e(f'v_xor_b32 v{2+ti}, {32*ti}, v{R_A}')
    e('s_mov_b32 s56, 0x3f80\n s_mov_b32 s57, 0x3f800000\n s_barrier')
    stamp(36)
    for ti in range(NT):
        e(f'ds_read_u16_d16_hi v{G+ti}, v{R_OM} offset:{OM+32*ti}')
        for j in range(2):
            e(f'ds_read_b64_tr_b16 {vr(AT+4*ti+2*j,2)}, v{2+ti} offset:{4096*j}')
    for p in range(4*NT):
        e(f'v_cvt_pk_bf16_f32 v{T+p}, v{ACC+2*p}, v{ACC+2*p+1}')
    for ti in range(NT):
        e(f's_waitcnt lgkmcnt({3*(NT-1-ti)})\n v_lshrrev_b32 v{GL+ti}, 16, v{G+ti}')
        ins = []
        for p in range(4):
            t = ACC + 8*ti + 2*p; y = GA + 8*ti + 2*p; bp = T + 4*ti + p
            ins.append([f'v_dot2_f32_bf16 v{t+1}, v{bp}, v{G+ti}, 0', f'v_dot2_f32_bf16 v{t}, v{bp}, v{GL+ti}, 0',
                        f'v_lshlrev_b32 v{y}, 16, v{AT+4*ti+p}', f'v_cvt_pk_bf16_f32 v{bp}, v{t}, v{t+1}', f'v_and_b32 v{y+1}, s64, v{AT+4*ti+p}',
                        f'v_dot2_f32_bf16 v{t}, v{bp}, s56, v{y}', f'v_dot2_f32_bf16 v{t+1}, v{bp}, s57, v{y+1}',
                        f'v_cvt_pk_bf16_f32 v{O+4*ti+p}, v{t}, v{t+1}'])
        for k in range(8):
            for p in range(4): e(ins[p][k])
        o = O + 4*ti
        e(f'''s_nop 1
              v_permlane16_swap_b32 v{o}, v{o+2}
              v_permlane16_swap_b32 v{o+1}, v{o+3}
              buffer_store_dwordx4 {vr(o,4)}, v{R_O}, s[60:63], s65 offen {OPT.get('ost', 'sc1').replace('+', ' ')}''')
        if ti < NT-1: e(f's_add_u32 s65, s65, {16*1280}')
    stamp(37)
    finish()
    if NT == 4:
        e('L_pbc_sf:')
        xcc_load()
        e('s_waitcnt vmcnt(0)')
        xcc_check()
        e('s_cmp_eq_u32 s95, 2\n s_cbranch_scc1 L_pbc_ff')
        flag('s89', 1)
        e('s_branch L_pbc_go')

prologue(); gemm1(); phase_b(); helper(); ssm()
if opt('prio', 0):
    L.insert(L.index('L_g1c:') + 1, '    s_setprio 2')
e('L_end:\n L_code_end:\n s_endpgm')

HEAD = open(f'cdna_kernels/{NAME}.s.ref').read().split('; Override launch')[0]
HEAD += f'''; @launch grid=(256,1,1) block=(512,1,1) lds=163840
.amdgcn_target "amdgcn-amd-amdhsa--gfx950"
.text
.globl {NAME}_kernel
.type {NAME}_kernel,@function
.p2align 8
'''
TAIL = f'''.section .rodata,"a"
.p2align 6
.amdhsa_kernel {NAME}_kernel
  .amdhsa_next_free_vgpr 256
  .amdhsa_next_free_sgpr 102
  .amdhsa_accum_offset 256
  .amdhsa_group_segment_fixed_size 0
  .amdhsa_kernarg_size 112
  .amdhsa_user_sgpr_count 2
  .amdhsa_user_sgpr_kernarg_segment_ptr 1
  .amdhsa_system_sgpr_workgroup_id_x 1
.end_amdhsa_kernel
'''
open(OUT, 'w').write(HEAD + '\n'.join(L) + '\n' + TAIL)
print('wrote', OUT, len(L), 'lines')
```
